```python
import torch

def _softmax(x, axis=-1):
    return torch.softmax(x, dim=axis)
def _gelu(x):
    return torch.nn.functional.gelu(x, approximate="tanh")
def _silu(x):
    return torch.nn.functional.silu(x)
def _sigmoid(x):
    return torch.sigmoid(x)
def _layernorm(x, axis=-1, eps=1e-5):
    m = x.mean(dim=axis, keepdim=True)
    v = x.var(dim=axis, keepdim=True, unbiased=False)
    return (x - m) / torch.sqrt(v + eps)
def _scatter_add(tgt, idx, src, axis=0):
    return tgt.clone().index_add_(axis, idx, src)
def _segment_sum(src, seg, n):
    out = torch.zeros((n,) + src.shape[1:], dtype=src.dtype)
    return out.index_add_(0, seg, src)
def _pad(x, pw):
    flat = tuple(v for pair in reversed(pw) for v in pair)
    return torch.nn.functional.pad(x, flat)

kernel_name = 'sequential_preLN__gqa_block_cached__glu_gated_geglu__decode'

def setup_inputs():

    _w = (lambda a: (lambda t: t.to(torch.bfloat16) if t.is_floating_point() else t)(torch.as_tensor(a)))
    def _A_setup():
        B, Sq, D = 1, 1, 512
        Hq, Hkv, Sk, Dh = 32, 8, 32768, 128
        assert Hq % Hkv == 0, (Hq, Hkv)
        return {
            "x": _w((lambda *s: torch.randn(*s, dtype=torch.bfloat16) * 0.05)(B, Sq, D)),
            "k_cache": _w((lambda *s: torch.randn(*s, dtype=torch.bfloat16) * 3.2)(B, Hkv, Sk, Dh)),
            "v_cache": _w((lambda *s: torch.randn(*s, dtype=torch.bfloat16) * 1.6)(B, Hkv, Sk, Dh)),
            "wq": _w((lambda *s: torch.randn(*s, dtype=torch.bfloat16) * 3.2)(D, Hq * Dh) * (D ** -0.5)),
            "wo": _w((lambda *s: torch.randn(*s, dtype=torch.bfloat16) * 1.6)(Hq * Dh, D) * ((Hq * Dh) ** -0.5)),
        }
    _A_in = _A_setup()

    def _B_setup():
        B, S, Dm, Df = 1, 1, 512, 1792
        return {
            "x": _w((lambda *s: torch.randn(*s, dtype=torch.bfloat16) * 0.05)(B, S, Dm)),
            "w_gate": _w((lambda *s: torch.randn(*s, dtype=torch.bfloat16) * 1.6)(Dm, Df) * (Dm ** -0.5)),
            "w_up": _w((lambda *s: torch.randn(*s, dtype=torch.bfloat16) * 1.6)(Dm, Df) * (Dm ** -0.5)),
            "w_down": _w((lambda *s: torch.randn(*s, dtype=torch.bfloat16) * 1.6)(Df, Dm) * (Df ** -0.5)),
        }
    _B_in = _B_setup()

    return {
        "A_x": _A_in["x"],
        "A_k_cache": _A_in["k_cache"],
        "A_v_cache": _A_in["v_cache"],
        "A_wq": _A_in["wq"],
        "A_wo": _A_in["wo"],
        "B_x": _B_in["x"],
        "B_w_gate": _B_in["w_gate"],
        "B_w_up": _B_in["w_up"],
        "B_w_down": _B_in["w_down"],
    }

def reference(A_x, A_k_cache, A_v_cache, A_wq, A_wo, B_x, B_w_gate, B_w_up, B_w_down):
    def _A_ref(x, k_cache, v_cache, wq, wo):
        B, Sq, D = x.shape
        Hq, Dh = 32, 128
        Hkv = k_cache.shape[1]
        rep = Hq // Hkv
        q = (lambda x, *d: x.permute(*d))((x @ wq).reshape(B, Sq, Hq, Dh), 0, 2, 1, 3)
        k = (lambda x, n, axis: torch.repeat_interleave(x, n, dim=axis))(k_cache, rep, axis=1)
        v = (lambda x, n, axis: torch.repeat_interleave(x, n, dim=axis))(v_cache, rep, axis=1)
        scores = torch.einsum("bhqd,bhkd->bhqk", q, k) * (Dh ** -0.5)
        p = _softmax(scores, axis=-1)
        o = torch.einsum("bhqk,bhkd->bhqd", p, v)
        return (lambda x, *d: x.permute(*d))(o, 0, 2, 1, 3).reshape(B, Sq, Hq * Dh) @ wo

    def _B_ref(x, w_gate, w_up, w_down):
        g = torch.einsum("bsd,df->bsf", x, w_gate)
        u = torch.einsum("bsd,df->bsf", x, w_up)
        h = _gelu(g) * u
        return torch.einsum("bsf,fd->bsd", h, w_down)

    x = A_x
    h = x + _A_ref(_layernorm(x, axis=-1), A_k_cache, A_v_cache, A_wq, A_wo)
    h2 = h + _B_ref(_layernorm(h, axis=-1), B_w_gate, B_w_up, B_w_down)
    return h2
```

```python
import re, subprocess, os

RE_V = re.compile(r'\bv\[(\d+):(\d+)\]|\bv(\d+)\b')
RE_S = re.compile(r'\bs\[(\d+):(\d+)\]|\bs(\d+)\b')

def regs(op):
    out = set()
    for m in RE_V.finditer(op):
        if m.group(3) is not None: out.add(('v', int(m.group(3))))
        else: out.update(('v', i) for i in range(int(m.group(1)), int(m.group(2)) + 1))
    for m in RE_S.finditer(op):
        if m.group(3) is not None: out.add(('s', int(m.group(3))))
        else: out.update(('s', i) for i in range(int(m.group(1)), int(m.group(2)) + 1))
    if re.search(r'\bvcc\b', op): out.add(('s', 'vcc'))
    if re.search(r'\bexec\b', op): out.add(('s', 'exec'))
    if re.search(r'\bm0\b', op): out.add(('s', 'm0'))
    return out

TRANS = ('v_exp_f32', 'v_log_f32', 'v_rcp_f32', 'v_rsq_f32', 'v_sqrt_f32', 'v_sin_f32', 'v_cos_f32')

class Ins:
    def __init__(self, text):
        self.text = text
        t = text.split(';')[0].strip()
        self.label = t.endswith(':')
        self.directive = t.startswith('.')
        self.empty = (t == '')
        parts = t.split(None, 1)
        self.mn = parts[0] if parts else ''
        ops = [o.strip() for o in parts[1].split(',')] if len(parts) > 1 else []
        self.ops = ops
        mn = self.mn
        self.real = not (self.label or self.directive or self.empty)
        self.mfma = mn.startswith('v_mfma')
        self.valu = mn.startswith('v_') and not self.mfma
        self.dot = mn.startswith('v_dot')
        self.trans = mn.replace('_e32', '').replace('_e64', '') in TRANS
        self.dpp = '_dpp' in mn or 'row_' in t or 'quad_perm' in t
        self.permlane = mn.startswith('v_permlane')
        self.readlane = mn.startswith('v_readlane') or mn.startswith('v_readfirstlane')
        self.writelane = mn.startswith('v_writelane')
        self.vmem = mn.startswith('buffer_') or mn.startswith('global_')
        self.ds = mn.startswith('ds_')
        self.salu = mn.startswith('s_')
        self.ldsdma = self.vmem and re.search(r'\blds\b', t) is not None
        self.branch = mn.startswith('s_cbranch') or mn == 's_branch'
        self.defs = set(); self.uses = set(); self.srcC = set(); self.srcAB = set()
        self.nop = 0
        if mn == 's_nop': self.nop = int(ops[0]) + 1
        if not self.real: return
        R = [regs(o) for o in ops]
        if self.mfma:
            self.defs = R[0]; self.srcAB = R[1] | R[2]; self.srcC = R[3]; self.uses = self.srcAB | self.srcC
            self.passes = 2 if '4x4x4' in mn else (4 if '16x16' in mn else 8)
        elif self.valu:
            if mn.startswith('v_cmp'):
                self.defs = R[0]; self.uses = set().union(*R[1:])
            elif self.permlane:
                self.defs = R[0] | R[1]; self.uses = R[0] | R[1]
            else:
                self.defs = R[0]; self.uses = set().union(*R[1:]) if len(R) > 1 else set()
                if mn.startswith('v_fmac') or mn.startswith('v_dot2c') or self.writelane or (self.dpp and True):
                    self.uses |= R[0]
                if mn.startswith('v_cndmask') and len(ops) == 4: pass
                if mn.startswith('v_add_co') or mn.startswith('v_addc_co'):
                    self.defs |= R[1]
        elif self.vmem:
            if 'load' in mn and not self.ldsdma:
                self.defs = R[0]; self.uses = set().union(*R[1:])
            else:
                self.uses = set().union(*R)
                if self.ldsdma: self.uses.add(('s', 'm0'))
            self.wide_store = ('store' in mn) and (mn.endswith('x4') or mn.endswith('x3'))
            self.store_data = R[0] if 'store' in mn else set()
        elif self.ds:
            if 'read' in mn or 'bpermute' in mn or 'swizzle' in mn:
                self.defs = R[0]; self.uses = set().union(*R[1:])
            else:
                self.uses = set().union(*R)
        elif self.salu:
            if mn.startswith('s_cmp') or mn.startswith('s_bitcmp') or self.branch or mn in ('s_waitcnt', 's_nop', 's_barrier', 's_endpgm', 's_sleep', 's_setprio'):
                self.uses = set().union(*R) if R else set()
            else:
                self.defs = R[0] if R else set(); self.uses = set().union(*R[1:]) if len(R) > 1 else set()
                if 'saveexec' in mn: self.defs = self.defs | {('s', 'exec')}

def need(p, c):
    n = 0
    vd = {r for r in p.defs if r[0] == 'v'}; sd = {r for r in p.defs if r[0] == 's'}
    if p.valu:
        if c.permlane and vd & c.uses: n = max(n, 2)
        if c.valu and c.dpp and vd & c.uses: n = max(n, 2)
        if c.readlane and vd & c.uses: n = max(n, 1)
        if p.trans and (c.valu or c.mfma) and not c.trans and vd & c.uses: n = max(n, 1)
        if c.mfma and vd & c.uses: n = max(n, 2)
        if c.vmem and sd & c.uses: n = max(n, 5)
        if c.valu and sd & c.uses: n = max(n, 4 if (c.readlane or c.writelane) else 2)
        if p.dot and (c.valu or c.vmem or c.ds or c.mfma) and vd & (c.uses | c.defs) and not (c.mn == p.mn and not (vd & (c.uses - c.defs))): n = max(n, 3)
        if ('s', 'exec') in p.defs and (c.dpp or c.mfma or c.permlane or c.readlane): n = max(n, 5)
    if p.mfma:
        k = {2: 0, 4: 1, 8: 2}[p.passes]
        if c.mfma:
            if vd & c.srcAB: n = max(n, (5, 8, 12)[k])
            if vd & c.srcC:
                if c.srcC == vd and c.passes == p.passes: n = max(n, (2, 0, 0)[k])
                else: n = max(n, (4, 6, 10)[k])
            elif vd & c.defs: n = max(n, (4, 6, 10)[k])
        elif (c.valu or c.vmem or c.ds) and vd & (c.uses | c.defs): n = max(n, (5, 8, 12)[k])
        if c.valu and p.srcC & c.defs: n = max(n, (1, 3, 7)[k])
    if p.salu and ('s', 'm0') in p.defs and c.ldsdma: n = max(n, 1)
    if p.vmem and getattr(p, 'wide_store', False) and p.store_data & c.defs: n = max(n, 2)
    return n

class Asm:
    def __init__(self):
        self.L = []
        self.ncand = 0
    def __call__(self, text):
        for line in text.split('\n'):
            self.L.append(line.strip())
    def cand(self):
        self.L.append(f'@CAND{self.ncand}'); self.ncand += 1
    def fix(self, lines):
        out = []; win = []
        ins_all = [Ins(l) for l in lines]
        labels = {i.text.split(':')[0].strip(): k for k, i in enumerate(ins_all) if i.label}
        added = 0
        for k, c in enumerate(ins_all):
            if not c.real:
                out.append(c.text); continue
            req = 0
            for p, d in win:
                req = max(req, need(p, c) - d)
            if req > 0:
                out.append(f's_nop {req - 1}'); added += 1
                win = [(p, d + req) for p, d in win]
            out.append(c.text)
            st = c.nop if c.nop else 1
            win = [(p, d + st) for p, d in win if d + st < 14]
            win.append((c, 0))
            if c.mn in ('s_branch', 's_endpgm'):
                tgtwin = win; win = []
            if c.branch:
                tgt = labels.get(c.ops[0])
                w2 = list(tgtwin if c.mn == 's_branch' else win)
                j = tgt; cnt = 0
                while j is not None and j < len(ins_all) and cnt < 14:
                    t = ins_all[j]; j += 1
                    if not t.real: continue
                    for p, d in w2:
                        if need(p, t) - d > 0:
                            raise RuntimeError(f'hazard across branch {c.text} -> {t.text} (producer {p.text})')
                    s2 = t.nop if t.nop else 1
                    w2 = [(p, d + s2) for p, d in w2]; cnt += s2
                    if t.mn in ('s_branch', 's_endpgm'): break
        return out
    def render(self, chosen=None, pad_end='L_warm_end'):
        lines = []
        for l in self.L:
            if l.startswith('@CAND'):
                n = int(l[5:])
                if chosen is None: lines.append(f'L_cand{n}:')
                elif n in chosen:
                    i = chosen.index(n)
                    nxt = f'L_pad{i+1}' if i + 1 < len(chosen) else pad_end
                    lines.append(f'L_pad{i}:'); lines.append(f's_cbranch_execz {nxt}')
            else:
                lines.append(l)
        return self.fix(lines)

def assemble_syms(text, tmp='_pass1'):
    open(tmp + '.s', 'w').write(text)
    r = subprocess.run(['clang', '-x', 'assembler', '-target', 'amdgcn-amd-amdhsa', '-mcpu=gfx950', '-c', tmp + '.s', '-o', tmp + '.o'], capture_output=True, text=True)
    if r.returncode: raise RuntimeError(r.stderr[:3000])
    o = subprocess.run(['llvm-objdump', '-t', tmp + '.o'], capture_output=True, text=True).stdout
    syms = {}
    for line in o.splitlines():
        p = line.split()
        if len(p) >= 4 and re.fullmatch(r'[0-9a-f]{16}', p[0]): syms[p[-1]] = int(p[0], 16)
    return syms
```

```python
import sys, math
from asmlib import Asm, assemble_syms
NAME = 'sequential_preLN__gqa_block_cached__glu_gated_geglu__decode'
KN = NAME + '_kernel'

QB   = 0x00000
LAM  = 0x04000
M2   = 0x08000
M1   = 0x10000
M3   = 0x80000
STAMP = 0x8000000
L_WQ = 0
L_GU = 16384
L_XN = 33792
L_Q  = 34816
L_MX = 35840
L_LS = 35904
L_EP = 36864
L_YW = 45056
L_HB = 46080
L_FW = 48128
LDS_BYTES = 52224
SX, SK, SV, SWQ, SWO, SG, SU, SD, SO, SDBG, SWS = 40, 44, 48, 52, 56, 60, 64, 68, 72, 76, 80
def srd(b): return f's[{b}:{b+3}]'
LOG2E = 0x3fb8aa3b
SPIN = 1 << 16

HEADER = open('cdna_kernels/' + NAME + '.s.ref').read().split('; Override launch')[0]

def gen(D=12, lead_ss=12, lead_sm=24, weights='last', m3t=False, stamps=False, warm=True, wnt='nt', qnt='nt', nslots=40, mask_poll=True, dump=False):
    a = Asm()
    nst = {}
    def stamp(role, name, vreg):
        if not stamps: return
        idx = nst.setdefault(role, []); idx.append(name)
        a(f's_memrealtime s[90:91]\ns_waitcnt lgkmcnt(0)\nv_writelane_b32 v{vreg}, s90, {len(idx)-1}')
    def stamp_store(vreg):
        if not stamps: return
        a(f's_lshl_b32 s92, s2, 3\ns_add_u32 s92, s92, s3\ns_lshl_b32 s92, s92, 8\ns_add_u32 s92, s92, {STAMP}')
        a(f's_mov_b64 exec, -1\nv_lshlrev_b32 v{vreg+1}, 2, v0\nbuffer_store_dword v{vreg}, v{vreg+1}, {srd(SWS)}, s92 offen')
    SST, HST = 88, 200
    a(f'{KN}:')
    a('s_cmp_ge_u32 s2, 256\ns_cbranch_scc1 L_end')
    if stamps: a('s_memrealtime s[94:95]')
    for b, off in ((SK, 8), (SX, 0), (SWQ, 24), (SWS, 88), (SV, 16), (SDBG, 80), (SWO, 32), (SG, 48), (SU, 56), (SD, 64), (SO, 72)):
        a(f's_load_dwordx2 s[{b}:{b+1}], s[0:1], {off}')
    a('v_lshrrev_b32 v1, 6, v0\nv_and_b32 v0, 63, v0')
    a('v_readfirstlane_b32 s3, v1')
    for b, n in ((SX, 1024), (SK, 64 << 20), (SV, 64 << 20), (SWQ, 4 << 20), (SWO, 4 << 20), (SG, 512 * 3584), (SU, 512 * 3584), (SD, 1792 * 1024), (SO, 1024), (SDBG, 256), (SWS, 268435456)):
        a(f's_mov_b32 s{b+2}, {n}\ns_mov_b32 s{b+3}, 0x20000')
    a('s_and_b32 s4, s2, 7\ns_lshr_b32 s5, s2, 3')
    a('s_and_b32 s6, s3, 3')
    a('s_cmp_lt_u32 s3, 4\ns_cbranch_scc1 L_H')
    RING = 96
    def slot(k): return RING + 4 * k
    a('v_and_b32 v1, 3, v0\nv_lshlrev_b32 v1, 8, v1\nv_lshrrev_b32 v2, 2, v0\nv_lshl_add_u32 v1, v2, 4, v1')
    a('v_lshlrev_b32 v2, 4, v0')
    a('s_lshl_b32 s7, s4, 23\ns_lshl_b32 s8, s5, 18\ns_add_u32 s7, s7, s8\ns_lshl_b32 s8, s6, 12\ns_add_u32 s7, s7, s8')
    a('s_mov_b32 s8, s7')
    if stamps: a(f'v_mov_b32 v{SST}, 0')
    a('s_waitcnt lgkmcnt(0)')
    if stamps: a(f'v_writelane_b32 v{SST}, s94, 0'); nst['S'] = ['start']
    st = dict(I=0, free=list(range(nslots)), where={})
    def issue(pace=True):
        n = st['I']
        if n >= 128: return
        fl = st['free']
        k = next(x for x in fl if n < 64 or x >= 8)
        fl.remove(k); st['where'][n] = k
        if pace and n >= D: a(f's_waitcnt vmcnt({D-1})')
        if n == 64: a('s_mov_b32 s8, s7')
        if n < 64: a(f'buffer_load_dwordx4 v[{slot(k)}:{slot(k)+3}], v1, {srd(SK)}, s8 offen offset:{(n & 3) * 1024} nt')
        else:      a(f'buffer_load_dwordx4 v[{slot(k)}:{slot(k)+3}], v2, {srd(SV)}, s8 offen offset:{(n & 3) * 1024} nt')
        if n & 3 == 3 and n != 63 and n != 127: a('s_add_u32 s8, s8, 0x4000')
        st['I'] = n + 1
    def can_issue():
        n = st['I']
        return n < 128 and any(n < 64 or x >= 8 for x in st['free'])
    for n in range(nslots): issue()
    stamp('S', 'pref', SST)
    a('s_barrier')
    a('s_branch L_S')
    a('L_H:')
    if stamps: a(f'v_mov_b32 v{HST}, 0')
    a('s_cmp_lg_u32 s3, 0\ns_cbranch_scc1 L_Hwarm')
    a('s_setprio 2')
    a('v_lshlrev_b32 v2, 4, v0')
    a('v_lshrrev_b32 v1, 1, v0\nv_lshlrev_b32 v1, 13, v1\nv_and_b32 v3, 1, v0\nv_lshl_add_u32 v1, v3, 4, v1')
    a('s_lshl_b32 s7, s4, 10\ns_lshl_b32 s8, s5, 5\ns_add_u32 s7, s7, s8')
    a('s_mov_b32 s8, s7\ns_mov_b32 m0, %d' % L_WQ)
    a('v_mov_b32 v8, -1\nv_mov_b32 v9, -1\nv_mov_b32 v10, -1\nv_mov_b32 v11, -1')
    a('v_lshrrev_b32 v12, 4, v0\nv_lshlrev_b32 v12, 13, v12\nv_bfe_u32 v13, v0, 2, 2\nv_lshl_add_u32 v12, v13, 11, v12\nv_and_b32 v13, 3, v0\nv_lshl_add_u32 v12, v13, 4, v12')
    a(f's_lshl_b32 s9, s4, 15\ns_lshl_b32 s10, s5, 6\ns_add_u32 s9, s9, s10\ns_add_u32 s9, s9, {M1}')
    a(f's_lshl_b32 s15, s4, 11\ns_add_u32 s15, s15, s10\ns_add_u32 s15, s15, {M2}')
    a(f'v_lshlrev_b32 v14, 7, v0\ns_lshl_b32 s11, s4, 9\ns_lshl_b32 s10, s5, 2\ns_add_u32 s11, s11, s10\ns_add_u32 s11, s11, {LAM}')
    if m3t:
        a(f's_movk_i32 s10, 7168\nv_mul_u32_u24 v13, s10, v0\ns_lshl_b32 s16, s2, 5\ns_add_u32 s16, s16, {M3}')
    else:
        a(f's_lshl_b32 s16, s2, 11\ns_add_u32 s16, s16, {M3}')
    a('s_waitcnt lgkmcnt(0)')
    if stamps: a(f'v_writelane_b32 v{HST}, s94, 0'); nst['H'] = ['start']
    a(f'buffer_store_dwordx4 v[8:11], v12, {srd(SWS)}, s9 offen sc1')
    a('s_mov_b64 exec, 15')
    a(f'buffer_store_dwordx4 v[8:11], v2, {srd(SWS)}, s15 offen sc1')
    a(f'buffer_store_dword v8, v14, {srd(SWS)}, s11 offen sc1')
    a('s_mov_b64 exec, -1')
    a('s_cmp_ge_u32 s2, 224\ns_cbranch_scc1 L_noclr3')
    if m3t:
        a(f'buffer_store_dwordx4 v[8:11], v13, {srd(SWS)}, s16 offen sc1\nbuffer_store_dwordx4 v[8:11], v13, {srd(SWS)}, s16 offen offset:16 sc1')
    else:
        a(f'buffer_store_dwordx4 v[8:11], v2, {srd(SWS)}, s16 offen sc1\nbuffer_store_dwordx4 v[8:11], v2, {srd(SWS)}, s16 offen offset:1024 sc1')
    a('L_noclr3:')
    a(f'buffer_load_dwordx4 v[4:7], v2, {srd(SX)}, 0 offen')
    for m in range(16):
        a(f'buffer_load_dwordx4 v1, {srd(SWQ)}, s8 offen {qnt} lds')
        if m < 15: a(f's_add_u32 m0, m0, 1024\ns_add_u32 s8, s8, 0x40000')
    a.cand()
    a('s_mov_b32 s12, 0xffff0000')
    a('s_waitcnt vmcnt(16)')
    for d in range(4):
        a(f'v_lshlrev_b32 v{8+2*d}, 16, v{4+d}\nv_and_b32 v{9+2*d}, s12, v{4+d}')
    def allreduce(r, t, op='add'):
        for sh in (8, 4, 2, 1):
            a(f'v_{op}_f32_dpp v{r}, v{r}, v{r} row_ror:{sh} row_mask:0xf bank_mask:0xf')
        crossg(r, t, op)
    def crossg(r, t, op='add'):
        a(f'v_mov_b32 v{t}, v{r}\nv_permlane16_swap_b32 v{t}, v{r}\nv_{op}_f32 v{r}, v{r}, v{t}')
        a(f'v_mov_b32 v{t}, v{r}\nv_permlane32_swap_b32 v{t}, v{r}\nv_{op}_f32 v{r}, v{r}, v{t}')
    def rbf(r):
        a(f'v_cvt_pk_bf16_f32 v{r}, v{r}, v{r}\nv_lshlrev_b32 v{r}, 16, v{r}')
    a('v_add_f32 v16, v8, v9\nv_add_f32 v17, v10, v11\nv_add_f32 v18, v12, v13\nv_add_f32 v19, v14, v15\nv_add_f32 v16, v16, v17\nv_add_f32 v18, v18, v19\nv_add_f32 v16, v16, v18')
    allreduce(16, 17)
    a('v_mul_f32 v16, 0x3b000000, v16')
    a('v_sub_f32 v17, v8, v16\nv_mul_f32 v18, v17, v17')
    for e in range(1, 8): a(f'v_sub_f32 v17, v{8+e}, v16\nv_fmac_f32 v18, v17, v17')
    allreduce(18, 17)
    a('v_mul_f32 v18, 0x3b000000, v18'); rbf(18)
    a('v_add_f32 v18, 0x3727c5ac, v18'); rbf(18)
    a('v_sqrt_f32 v18, v18'); rbf(18)
    a('v_rcp_f32 v18, v18'); rbf(16)
    for e in range(8): a(f'v_sub_f32 v{8+e}, v{8+e}, v16')
    for d in range(4): a(f'v_cvt_pk_bf16_f32 v{4+d}, v{8+2*d}, v{9+2*d}')
    for d in range(4): a(f'v_lshlrev_b32 v{8+2*d}, 16, v{4+d}\nv_and_b32 v{9+2*d}, s12, v{4+d}')
    for e in range(8): a(f'v_mul_f32 v{8+e}, v{8+e}, v18')
    for d in range(4): a(f'v_cvt_pk_bf16_f32 v{4+d}, v{8+2*d}, v{9+2*d}')
    a(f'ds_write_b128 v2, v[4:7] offset:{L_XN}')
    a.cand()
    a('v_lshrrev_b32 v3, 4, v0\nv_lshlrev_b32 v16, 4, v3')
    a('v_lshlrev_b32 v17, 8, v3\nv_bfe_u32 v18, v0, 2, 2\nv_lshl_add_u32 v17, v18, 5, v17\nv_and_b32 v18, 3, v0\nv_lshl_add_u32 v17, v18, 3, v17')
    a('s_waitcnt lgkmcnt(0)')
    for s in range(16): a(f'ds_read_b128 v[{64+4*s}:{67+4*s}], v16 offset:{L_XN + s*64}')
    a('s_waitcnt vmcnt(0) lgkmcnt(0)')
    stamp('H', 'wq', HST)
    a.cand()
    for s in range(16):
        for eh in range(2): a(f'ds_read_b64_tr_b16 v[{128+4*s+2*eh}:{129+4*s+2*eh}], v17 offset:{L_WQ + s*1024 + eh*128}')
        if s >= 4:
            q = s - 4
            a(f's_waitcnt lgkmcnt(8)')
            a(f'v_mfma_f32_16x16x32_bf16 v[24:27], v[{64+4*q}:{67+4*q}], v[{128+4*q}:{131+4*q}], {"0" if q == 0 else "v[24:27]"}')
    for q in range(12, 16):
        a(f's_waitcnt lgkmcnt({2*(15-q)})')
        a(f'v_mfma_f32_16x16x32_bf16 v[24:27], v[{64+4*q}:{67+4*q}], v[{128+4*q}:{131+4*q}], v[24:27]')
    a(f'v_lshlrev_b32 v3, 1, v0\ns_add_u32 s9, s7, {QB}')
    a('v_cvt_pk_bf16_f32 v24, v24, v24')
    a('s_mov_b64 exec, 0xffff')
    a(f'buffer_store_short v24, v3, {srd(SWS)}, s9 offen sc1')
    a('s_mov_b64 exec, 1\nv_mov_b32 v4, 1\nv_mov_b32 v5, 0\ns_lshl_b32 s9, s4, 5\ns_add_u32 s10, s9, s5')
    a('s_waitcnt vmcnt(0)')
    a(f'buffer_store_byte v4, v5, {srd(SDBG)}, s10 offen sc1')
    stamp('H', 'qpub', HST)
    a('s_mov_b64 exec, 0xff\nv_lshlrev_b32 v5, 2, v0\ns_mov_b32 s13, 0x01010101\ns_mov_b32 s14, 0')
    a('L_qpoll:')
    a(f'buffer_load_dword v6, v5, {srd(SDBG)}, s9 offen sc1')
    a(f's_add_u32 s14, s14, 1\ns_cmp_gt_u32 s14, {SPIN}\ns_cbranch_scc1 L_qdone')
    a('s_waitcnt vmcnt(0)\nv_cmp_ne_u32 vcc, s13, v6\ns_cbranch_vccnz L_qpoll')
    a('L_qdone:')
    a('s_mov_b64 exec, -1')
    stamp('H', 'qflag', HST)
    a(f's_lshl_b32 s9, s4, 10\ns_add_u32 s9, s9, {QB}')
    a(f'buffer_load_dwordx4 v[4:7], v2, {srd(SWS)}, s9 offen sc1')
    a('s_waitcnt vmcnt(0)')
    a(f'ds_write_b128 v2, v[4:7] offset:{L_Q}')
    a('s_waitcnt lgkmcnt(0)')
    stamp('H', 'qgot', HST)
    a('s_setprio 0')
    a('s_branch L_Hb1')
    a('L_Hwarm:')
    a('s_waitcnt lgkmcnt(0)')
    if stamps:
        a(f'v_writelane_b32 v{HST}, s94, 0')
    if warm:
        a('s_mov_b64 exec, 0')
        a('s_cmp_eq_u32 s3, 1\ns_cbranch_scc1 @W0\ns_cmp_eq_u32 s3, 2\ns_cbranch_scc1 @W1\ns_branch @W2')
        a('L_warm_end:')
        a('s_mov_b64 exec, -1')
        if stamps:
            a(f's_memrealtime s[90:91]\ns_waitcnt lgkmcnt(0)\nv_writelane_b32 v{HST}, s90, 1')
    a('L_Hb1:')
    a('s_barrier')
    a('s_branch L_Hmid')

    a('L_S:')
    a.cand()
    Q, P, ACC = 20, 24, 56
    a(f'ds_read_b128 v[{Q}:{Q+3}], v1 offset:{L_Q}')
    a('s_mov_b32 s12, 0xffff0000\ns_mov_b32 s13, 0x3db504f3\nv_mov_b32 v3, 0xff800000')
    a(f'v_lshrrev_b32 v14, 4, v0\nv_lshlrev_b32 v13, 4, v14')
    a('s_waitcnt lgkmcnt(0)')
    stamp('S', 'q', SST)
    C = 0
    lead = nslots
    for u in range(16):
        a.cand()
        ks = [slot(st['where'][4*u+e]) for e in range(4)]
        T = [ACC + 4*e for e in range(4)]
        a(f's_waitcnt vmcnt({st["I"] - (4*u+4)})')
        for e in range(4): a(f'v_mfma_f32_4x4x4_16b_bf16 v[{T[e]}:{T[e]+3}], v[{ks[e]}:{ks[e]+1}], v[{Q}:{Q+1}], 0')
        for e in range(4): a(f'v_mfma_f32_4x4x4_16b_bf16 v[{T[e]}:{T[e]+3}], v[{ks[e]+2}:{ks[e]+3}], v[{Q+2}:{Q+3}], v[{T[e]}:{T[e]+3}]')
        for e in range(4): st['free'].append(st['where'][4*u+e])
        C = 4*u + 4
        lead = max(lead_ss, lead - 2)
        tgt = C + lead if u < 15 else C + lead_sm
        while st['I'] < tgt and can_issue(): issue(pace=(u < 15))
        for e in range(4): a(f'v_permlane32_swap_b32 v{T[e]}, v{T[e]+2}\nv_permlane32_swap_b32 v{T[e]+1}, v{T[e]+3}')
        for e in range(4): a(f'v_add_f32 v{T[e]}, v{T[e]}, v{T[e]+2}\nv_add_f32 v{T[e]+1}, v{T[e]+1}, v{T[e]+3}')
        for e in range(4): a(f'v_permlane16_swap_b32 v{T[e]}, v{T[e]+1}')
        for e in range(4): a(f'v_add_f32 v{T[e]}, v{T[e]}, v{T[e]+1}')
        for e in range(4): a(f'v_add_f32_dpp v{T[e]+1}, v{T[e]}, v{T[e]} row_ror:4 row_mask:0xf bank_mask:0xf')
        for e in range(4): a(f'v_add_f32_dpp v{T[e]}, v{T[e]+1}, v{T[e]+1} row_ror:8 row_mask:0xf bank_mask:0xf')
        a(f'v_cvt_pk_bf16_f32 v5, v{T[0]}, v{T[1]}\nv_cvt_pk_bf16_f32 v6, v{T[2]}, v{T[3]}')
        a('v_lshlrev_b32 v7, 16, v5\nv_and_b32 v8, s12, v5\nv_lshlrev_b32 v9, 16, v6\nv_and_b32 v10, s12, v6')
        a('v_mul_f32 v7, s13, v7\nv_mul_f32 v8, s13, v8\nv_mul_f32 v9, s13, v9\nv_mul_f32 v10, s13, v10')
        a(f'v_cvt_pk_bf16_f32 v{P+2*u}, v7, v8\nv_cvt_pk_bf16_f32 v{P+2*u+1}, v9, v10')
        a('v_max3_f32 v3, v3, v7, v8\nv_max3_f32 v3, v3, v9, v10')
    stamp('S', 'kdone', SST)
    a.cand()
    crossg(3, 5, 'max')
    a(f'v_and_b32 v5, 3, v0\nv_lshlrev_b32 v5, 4, v5\ns_lshl_b32 s9, s6, 2\nv_add_u32 v6, s9, v5')
    a(f's_mov_b64 exec, 15\nds_write_b32 v6, v3 offset:{L_MX}\ns_mov_b64 exec, -1\ns_waitcnt lgkmcnt(0)')
    a('s_barrier')
    a(f'ds_read_b128 v[8:11], v5 offset:{L_MX}')
    a(f's_mov_b32 s14, {LOG2E}\nv_mov_b32 v4, 0')
    a('s_waitcnt lgkmcnt(0)')
    a('v_max3_f32 v3, v8, v9, v10\nv_max_f32 v3, v3, v11'); rbf(3)
    a('v_mul_f32 v3, s14, v3')
    for r in range(0, 32, 2):
        if r % 8 == 0: a.cand()
        a(f'v_lshlrev_b32 v7, 16, v{P+r}\nv_and_b32 v8, s12, v{P+r}\nv_lshlrev_b32 v9, 16, v{P+r+1}\nv_and_b32 v10, s12, v{P+r+1}')
        for t in range(7, 11): a(f'v_fma_f32 v{t}, v{t}, s14, -v3')
        for t in range(7, 11): a(f'v_exp_f32 v{t}, v{t}')
        a(f'v_cvt_pk_bf16_f32 v{P+r}, v7, v8\nv_add_f32 v7, v7, v8\nv_cvt_pk_bf16_f32 v{P+r+1}, v9, v10\nv_add_f32 v9, v9, v10\nv_add_f32 v4, v4, v7\nv_add_f32 v4, v4, v9')
    crossg(4, 7, 'add')
    a(f's_mov_b64 exec, 15\nds_write_b32 v6, v4 offset:{L_LS}\ns_mov_b64 exec, -1\ns_waitcnt lgkmcnt(0)')
    a('s_barrier')
    stamp('S', 'smdone', SST)
    a(f'ds_read_b128 v[8:11], v13 offset:{L_LS}')
    a(f's_lshl_b32 s9, s6, 11\nv_lshlrev_b32 v15, 6, v14\nv_add_u32 v15, v15, v5\nv_add_u32 v15, s9, v15')
    a(f'v_bfe_u32 v16, v0, 2, 2\nv_lshlrev_b32 v16, 6, v16\nv_add_u32 v16, v16, v13\nv_and_b32 v17, 3, v0\nv_lshl_add_u32 v16, v17, 2, v16\ns_lshl_b32 s9, s6, 9\ns_add_u32 s9, s9, {L_EP}\nv_add_u32 v16, s9, v16')
    a(f'v_and_b32 v17, 15, v0\nv_lshlrev_b32 v17, 2, v17\nv_lshl_add_u32 v17, v14, 13, v17')
    a(f's_lshl_b32 s9, s4, 15\ns_lshl_b32 s10, s5, 6\ns_add_u32 s9, s9, s10\ns_lshl_b32 s10, s6, 11\ns_add_u32 s9, s9, s10\ns_add_u32 s15, s9, {M1}')
    a('s_mov_b32 s16, 0x05040100\ns_mov_b32 s17, 0x07060302')
    a('s_waitcnt lgkmcnt(0)')
    a('v_add_f32 v8, v8, v9\nv_add_f32 v10, v10, v11\nv_add_f32 v8, v8, v10\nv_rcp_f32 v18, v8')
    AT = RING
    b4_done = False
    for G in range(8):
        a.cand()
        for p in range(4):
            n = 64 + 8*G + 2*p
            k0, k1 = slot(st['where'][n]), slot(st['where'][n+1])
            a(f's_waitcnt vmcnt({st["I"] - (n+2)})')
            for d in range(4):
                a(f'v_perm_b32 v{AT+8*d+p}, v{k1+d}, v{k0+d}, s16\nv_perm_b32 v{AT+8*d+4+p}, v{k1+d}, v{k0+d}, s17')
            st['free'] += [st['where'][n], st['where'][n+1]]
            C = n + 2
            while st['I'] < C + lead_ss and can_issue(): issue(pace=False)
            if st['I'] == 128 and not b4_done and weights == 'last':
                a('s_barrier'); b4_done = True
                stamp('S', 'lastiss', SST)
        if G == 7: stamp('S', 'lastdata', SST)
        for dd in range(8):
            a(f'v_mfma_f32_16x16x32_bf16 v[{ACC+4*dd}:{ACC+4*dd+3}], v[{AT+4*dd}:{AT+4*dd+3}], v[{P+4*G}:{P+4*G+3}], {"0" if G == 0 else f"v[{ACC+4*dd}:{ACC+4*dd+3}]"}')
    a('s_mov_b32 exec_lo, 0x000f000f\ns_mov_b32 exec_hi, 0x000f000f')
    for dd in range(8): a(f'ds_write_b128 v15, v[{ACC+4*dd}:{ACC+4*dd+3}] offset:{L_EP + dd*256}')
    a('s_mov_b64 exec, -1\ns_waitcnt lgkmcnt(0)')
    a('s_barrier')
    for w in range(4): a(f'ds_read2st64_b32 v[{4+2*w}:{5+2*w}], v16 offset0:{8*w} offset1:{8*w+1}')
    a('s_waitcnt lgkmcnt(2)\nv_add_f32 v4, v4, v6\nv_add_f32 v5, v5, v7\ns_waitcnt lgkmcnt(0)\nv_add_f32 v8, v8, v10\nv_add_f32 v9, v9, v11')
    a('v_add_f32 v4, v4, v8\nv_add_f32 v5, v5, v9\nv_mul_f32 v4, v4, v18\nv_mul_f32 v5, v5, v18\nv_cvt_pk_bf16_f32 v4, v4, v5\nv_min_u32 v4, -2, v4')
    a(f'buffer_store_dword v4, v17, {srd(SWS)}, s15 offen sc1')
    stamp('S', 'pub', SST)
    stamp_store(SST)
    a('s_endpgm')

    a('L_Hmid:')
    a.cand()
    W8, XF, WOB, GUB, WDR, WDF, A1, D0, D1, Y = 28, 36, 40, 56, 72, 80, 96, 128, 132, 136
    a('v_lshrrev_b32 v3, 4, v0\nv_and_b32 v4, 15, v0\nv_lshlrev_b32 v5, 4, v3')
    a('s_mov_b32 s12, 0xffff0000')
    a(f'v_and_b32 v6, 31, v0\nv_lshlrev_b32 v7, 3, v6\ns_lshl_b32 s9, s6, 8')
    a(f'buffer_load_dwordx2 v[8:9], v7, {srd(SX)}, s9 offen')
    a(f's_lshl_b32 s18, s6, 9\ns_add_u32 s18, s18, {L_HB}\nv_lshlrev_b32 v10, 2, v0\nv_add_u32 v10, s18, v10\nv_mov_b32 v11, 0x3f803f80\nds_write_b32 v10, v11 offset:256')
    a('v_lshlrev_b32 v20, 6, v4\nv_add_u32 v20, v20, v5')
    a(f's_lshl_b32 s20, s4, 15\ns_lshl_b32 s9, s6, 13\ns_add_u32 s20, s20, s9\ns_add_u32 s20, s20, {M1}\ns_add_u32 s21, s20, 4096')
    a('v_lshrrev_b32 v21, 5, v0\nv_lshlrev_b32 v22, 11, v21\nv_lshl_add_u32 v22, v6, 4, v22\ns_lshl_b32 s9, s6, 9\nv_add_u32 v22, s9, v22')
    for j in range(4): a(f's_mov_b32 s{24+j}, {M2 + j*4096}')
    a('v_lshlrev_b32 v23, 3, v6\nv_lshl_add_u32 v23, v21, 2, v23\nv_add_u32 v23, s18, v23')
    a('v_cmp_eq_u32 vcc, 1, v4\nv_add_u32 v24, s18, v5\nv_add_u32 v25, 0x100, v24\nv_cndmask_b32 v24, v24, v25, vcc')
    a(f's_lshl_b32 s9, s6, 8\ns_add_u32 s9, s9, {L_YW}\nv_lshlrev_b32 v25, 2, v0\nv_add_u32 v26, s9, v25')
    a(f's_lshl_b32 s9, s6, 10\ns_add_u32 s9, s9, {L_FW}\nv_lshlrev_b32 v27, 4, v0\nv_add_u32 v27, s9, v27')
    a('s_waitcnt vmcnt(0)')
    a(f'v_lshlrev_b32 v{XF}, 16, v8\nv_and_b32 v{XF+1}, s12, v8\nv_lshlrev_b32 v{XF+2}, 16, v9\nv_and_b32 v{XF+3}, s12, v9')
    a('s_mov_b32 exec_lo, 0')
    for e in range(4): a(f'v_mov_b32 v{XF+e}, 0')
    a('s_mov_b64 exec, -1')
    def weights_issue():
        a('v_lshrrev_b32 v12, 4, v0\nv_lshlrev_b32 v12, 15, v12\nv_bfe_u32 v13, v0, 2, 2\nv_lshl_add_u32 v12, v13, 13, v12\nv_bfe_u32 v13, v0, 1, 1\nv_lshl_add_u32 v12, v13, 10, v12\nv_and_b32 v13, 1, v0\nv_lshl_add_u32 v12, v13, 4, v12')
        a(f's_lshl_b32 s9, s4, 19\ns_lshl_b32 s10, s6, 17\ns_add_u32 s9, s9, s10\ns_lshl_b32 s10, s5, 5\ns_add_u32 s9, s9, s10\ns_lshl_b32 s10, s6, 12\ns_add_u32 m0, s10, {L_WQ}')
        for s in range(4):
            a(f'buffer_load_dwordx4 v12, {srd(SWO)}, s9 offen {wnt} lds')
            if s < 3: a('s_add_u32 m0, m0, 1024\ns_add_u32 s9, s9, 2048')
        a('s_cmp_ge_u32 s2, 224\ns_cbranch_scc1 L_now')
        a(f's_movk_i32 s10, 3584\nv_mul_u32_u24 v12, s10, v0\ns_mul_i32 s9, s6, {128*3584}\ns_mul_i32 s10, s4, 448\ns_add_u32 s9, s9, s10\ns_lshl_b32 s10, s5, 4\ns_add_u32 s9, s9, s10\ns_add_u32 s10, s9, {64*3584}')
        a(f's_mul_i32 s19, s6, 4352\ns_add_u32 m0, s19, {L_GU}')
        a(f'buffer_load_dwordx4 v12, {srd(SG)}, s9 offen {wnt} lds\ns_add_u32 m0, m0, 1024')
        a(f'buffer_load_dwordx4 v12, {srd(SG)}, s10 offen {wnt} lds\ns_add_u32 m0, m0, 1152')
        a(f'buffer_load_dwordx4 v12, {srd(SU)}, s9 offen {wnt} lds\ns_add_u32 m0, m0, 1024')
        a(f'buffer_load_dwordx4 v12, {srd(SU)}, s10 offen {wnt} lds')
        a(f's_mul_i32 s9, s4, {224*1024}\ns_lshl_b32 s10, s5, 13\ns_add_u32 s9, s9, s10\ns_lshl_b32 s10, s6, 8\ns_add_u32 s9, s9, s10\ns_add_u32 s10, s9, 4096')
        for k in range(8): a(f'buffer_load_dword v{WDR+k}, v25, {srd(SD)}, {"s9" if k < 4 else "s10"} offen offset:{(k & 3) * 1024} {wnt}')
        a('L_now:')
    def weights_read():
        a('v_lshlrev_b32 v12, 8, v3\nv_bfe_u32 v13, v0, 2, 2\nv_lshl_add_u32 v12, v13, 5, v12\nv_and_b32 v14, 3, v0\nv_lshl_add_u32 v12, v14, 3, v12\ns_lshl_b32 s9, s6, 12\nv_add_u32 v12, s9, v12')
        for s in range(4):
            for eh in range(2): a(f'ds_read_b64_tr_b16 v[{WOB+4*s+2*eh}:{WOB+4*s+2*eh+1}], v12 offset:{L_WQ + s*1024 + eh*128}')
        a('v_lshlrev_b32 v12, 7, v3\nv_lshl_add_u32 v12, v13, 4, v12\nv_and_b32 v14, 1, v0\nv_lshl_add_u32 v12, v14, 3, v12\nv_bfe_u32 v14, v0, 1, 1\nv_mul_u32_u24 v14, 0x880, v14\nv_add_u32 v12, v12, v14\ns_mul_i32 s19, s6, 4352\nv_add_u32 v12, s19, v12')
        for s in range(4):
            for eh in range(2): a(f'ds_read_b64_tr_b16 v[{GUB+4*s+2*eh}:{GUB+4*s+2*eh+1}], v12 offset:{L_GU + s*512 + eh*64}')
        for k in range(8): a(f'v_lshlrev_b32 v{WDF+2*k}, 16, v{WDR+k}\nv_and_b32 v{WDF+2*k+1}, s12, v{WDR+k}')
    if weights == 'first':
        weights_issue()
    a('s_barrier')
    a('s_barrier')
    a.cand()
    if weights == 'mid': weights_issue()
    a('s_cmp_lg_u32 s3, 0\ns_cbranch_scc1 L_nolam')
    a(f'v_and_b32 v12, 3, v0\nv_lshlrev_b32 v12, 4, v12\nds_read_b128 v[8:11], v12 offset:{L_MX}\nds_read_b128 v[16:19], v12 offset:{L_LS}\ns_mov_b32 s14, {LOG2E}\ns_waitcnt lgkmcnt(0)')
    a('v_max3_f32 v8, v8, v9, v10\nv_max_f32 v8, v8, v11'); rbf(8)
    a('v_add_f32 v16, v16, v17\nv_add_f32 v18, v18, v19\nv_add_f32 v16, v16, v18\nv_log_f32 v16, v16\nv_mul_f32 v8, s14, v8\nv_add_f32 v8, v8, v16\nv_min_u32 v8, -2, v8')
    a(f'v_lshlrev_b32 v12, 7, v0\ns_mov_b64 exec, 15\nbuffer_store_dword v8, v12, {srd(SWS)}, s11 offen sc1\ns_mov_b64 exec, -1')
    a('s_mov_b32 s13, 0x01010101\ns_mov_b32 s14, 0')
    a('L_cpoll:')
    a(f'buffer_load_dword v8, v25, {srd(SDBG)}, 0 offen sc1')
    a(f's_add_u32 s14, s14, 1\ns_cmp_gt_u32 s14, {SPIN}\ns_cbranch_scc1 L_nolam')
    a('s_waitcnt vmcnt(0)\nv_cmp_ne_u32 vcc, s13, v8\ns_cbranch_vccnz L_cpoll')
    a('L_nolam:')
    a(f's_lshl_b32 s9, s4, 9\ns_lshl_b32 s10, s6, 7\ns_add_u32 s9, s9, s10\ns_add_u32 s9, s9, {LAM}\ns_mov_b32 s14, 0')
    a('L_lpoll:')
    a(f'buffer_load_dwordx4 v[{W8}:{W8+3}], v5, {srd(SWS)}, s9 offen sc1\nbuffer_load_dwordx4 v[{W8+4}:{W8+7}], v5, {srd(SWS)}, s9 offen offset:64 sc1')
    a(f's_add_u32 s14, s14, 1\ns_cmp_gt_u32 s14, {SPIN}\ns_cbranch_scc1 L_ldone')
    a(f's_waitcnt vmcnt(0)\nv_max3_u32 v8, v{W8}, v{W8+1}, v{W8+2}\nv_max3_u32 v9, v{W8+3}, v{W8+4}, v{W8+5}\nv_max3_u32 v8, v8, v{W8+6}, v{W8+7}\nv_max_u32 v8, v8, v9\nv_cmp_eq_u32 vcc, -1, v8')
    a('s_cbranch_vccz L_ldone\ns_sleep 8\ns_branch L_lpoll')
    a('L_ldone:')
    a('s_waitcnt vmcnt(0)')
    a(f'v_max3_f32 v8, v{W8}, v{W8+1}, v{W8+2}\nv_max3_f32 v9, v{W8+3}, v{W8+4}, v{W8+5}\nv_max3_f32 v8, v8, v{W8+6}, v{W8+7}\nv_max_f32 v8, v8, v9')
    crossg(8, 9, 'max')
    for r in range(8): a(f'v_sub_f32 v{W8+r}, v{W8+r}, v8')
    for r in range(8): a(f'v_exp_f32 v{W8+r}, v{W8+r}')
    a(f'v_add_f32 v8, v{W8}, v{W8+1}')
    for r in range(2, 8): a(f'v_add_f32 v8, v8, v{W8+r}')
    crossg(8, 9, 'add')
    a('v_rcp_f32 v8, v8')
    for r in range(8): a(f'v_mul_f32 v{W8+r}, v{W8+r}, v8')
    stamp('H', 'lam', HST)
    a.cand()
    if weights == 'last':
        a('s_barrier')
        weights_issue()
    else:
        a('s_waitcnt vmcnt(0)')
        weights_read()
    a.cand()
    a('s_barrier')
    stamp('H', 'b5', HST)
    if weights == 'last':
        a('s_waitcnt vmcnt(0)')
        weights_read()
        stamp('H', 'wts', HST)
    a.cand()
    def poll(name, loads, nreg, base, tmp=8):
        a('s_mov_b32 s14, 0')
        a(f'L_{name}:')
        for l in loads: a(l)
        a(f's_add_u32 s14, s14, 1\ns_cmp_gt_u32 s14, {SPIN}\ns_cbranch_scc1 L_{name}_x')
        rr = list(range(base, base + nreg))
        n = len(loads); per = nreg // n
        a(f's_waitcnt vmcnt({n-1})')
        a(f'v_max3_u32 v{tmp}, v{rr[0]}, v{rr[1]}, v{rr[2]}')
        k = 3; done = 1
        while k < nreg:
            if k + 1 >= done * per and done < n:
                done += 1; a(f's_waitcnt vmcnt({n-done})')
            if k + 1 < nreg: a(f'v_max3_u32 v{tmp}, v{tmp}, v{rr[k]}, v{rr[k+1]}'); k += 2
            else: a(f'v_max_u32 v{tmp}, v{tmp}, v{rr[k]}'); k += 1
        a(f'v_cmp_eq_u32 vcc, -1, v{tmp}')
        if mask_poll: a(f's_and_b64 exec, exec, vcc\ns_cbranch_execnz L_{name}')
        else: a(f's_cbranch_vccnz L_{name}')
        a(f'L_{name}_x:')
        a('s_mov_b64 exec, -1')
    poll('p1', [f'buffer_load_dwordx4 v[{A1+16*t+4*s}:{A1+16*t+4*s+3}], v20, {srd(SWS)}, {"s20" if s < 2 else "s21"} offen offset:{t*1024 + (s & 1)*2048} sc1' for t in range(2) for s in range(4)], 32, A1)
    a('s_waitcnt vmcnt(0) lgkmcnt(0)')
    stamp('H', 'hop1', HST)
    for s in range(4):
        for t, Dr in ((0, D0), (1, D1)):
            a(f'v_mfma_f32_16x16x32_bf16 v[{Dr}:{Dr+3}], v[{A1+16*t+4*s}:{A1+16*t+4*s+3}], v[{WOB+4*s}:{WOB+4*s+3}], {"0" if s == 0 else f"v[{Dr}:{Dr+3}]"}')
    a(f's_lshl_b32 s9, s4, 11\ns_lshl_b32 s10, s5, 6\ns_add_u32 s9, s9, s10\ns_add_u32 s9, s9, {M2}')
    a(f'v_mul_f32 v8, v{W8}, v{D0}\nv_mul_f32 v9, v{W8+1}, v{D0+1}\nv_fmac_f32 v8, v{W8+2}, v{D0+2}\nv_fmac_f32 v9, v{W8+3}, v{D0+3}')
    a(f'v_fmac_f32 v8, v{W8+4}, v{D1}\nv_fmac_f32 v9, v{W8+5}, v{D1+1}\nv_fmac_f32 v8, v{W8+6}, v{D1+2}\nv_fmac_f32 v9, v{W8+7}, v{D1+3}\nv_add_f32 v8, v8, v9')
    crossg(8, 9, 'add')
    a('ds_write_b32 v26, v8\ns_waitcnt lgkmcnt(0)')
    a('s_barrier')
    a('s_cmp_lg_u32 s3, 0\ns_cbranch_scc1 L_nowpub')
    a(f'ds_read2st64_b32 v[8:9], v25 offset0:{L_YW//256} offset1:{L_YW//256+1}\nds_read2st64_b32 v[10:11], v25 offset0:{L_YW//256+2} offset1:{L_YW//256+3}')
    a('s_mov_b64 exec, 0xffff\ns_waitcnt lgkmcnt(0)\nv_add_f32 v8, v8, v9\nv_add_f32 v10, v10, v11\nv_add_f32 v8, v8, v10\nv_min_u32 v8, -2, v8')
    a(f'buffer_store_dword v8, v25, {srd(SWS)}, s9 offen sc1\ns_mov_b64 exec, -1')
    a('L_nowpub:')
    stamp('H', 'wpub', HST)
    a('s_cmp_ge_u32 s2, 224\ns_cbranch_scc1 L_Hend')
    a.cand()
    poll('p2', [f'buffer_load_dwordx4 v[{Y+4*j}:{Y+4*j+3}], v22, {srd(SWS)}, s{24+j} offen sc1' for j in range(4)], 16, Y)
    a('s_waitcnt vmcnt(0)')
    stamp('H', 'hop2', HST)
    for e in range(4): a(f'v_add_f32 v{Y+e}, v{Y+e}, v{Y+4+e}\nv_add_f32 v{Y+8+e}, v{Y+8+e}, v{Y+12+e}')
    for e in range(4): a(f'v_add_f32 v{Y+e}, v{Y+e}, v{XF+e}')
    for e in range(4): a(f'v_add_f32 v{Y+e}, v{Y+e}, v{Y+8+e}')
    a(f'v_permlane32_swap_b32 v{Y}, v{Y+2}\nv_permlane32_swap_b32 v{Y+1}, v{Y+3}\nv_add_f32 v{Y}, v{Y}, v{Y+2}\nv_add_f32 v{Y+1}, v{Y+1}, v{Y+3}\nv_cvt_pk_bf16_f32 v8, v{Y}, v{Y+1}')
    a('ds_write_b32 v23, v8\ns_waitcnt lgkmcnt(0)')
    for s in range(4): a(f'ds_read_b128 v[{A1+4*s}:{A1+4*s+3}], v24 offset:{s*64}')
    for s in range(4):
        a(f's_waitcnt lgkmcnt({3-s})')
        a(f'v_mfma_f32_16x16x32_bf16 v[{D0}:{D0+3}], v[{A1+4*s}:{A1+4*s+3}], v[{GUB+4*s}:{GUB+4*s+3}], {"0" if s == 0 else f"v[{D0}:{D0+3}]"}')
        a(f'v_mfma_f32_16x16x32_bf16 v[{D1}:{D1+3}], v[{A1+4*s}:{A1+4*s+3}], v[{A1+4*s}:{A1+4*s+3}], {"0" if s == 0 else f"v[{D1}:{D1+3}]"}')
    a(f'v_lshlrev_b32 v12, 4, v4\nv_add_u32 v12, {L_FW}, v12\nv_mov_b32 v13, {L_FW + 8}')
    if m3t:
        a(f'v_lshrrev_b32 v14, 2, v0\ns_lshl_b32 s9, s6, 4\nv_add_u32 v14, s9, v14\ns_movk_i32 s10, 7168\nv_mul_u32_u24 v14, s10, v14\nv_and_b32 v15, 3, v0\nv_lshl_add_u32 v14, v15, 3, v14\ns_lshl_b32 s9, s2, 5\ns_add_u32 s9, s9, {M3}')
    else:
        a(f'v_lshlrev_b32 v14, 3, v0\ns_lshl_b32 s9, s2, 11\ns_lshl_b32 s10, s6, 9\ns_add_u32 s9, s9, s10\ns_add_u32 s9, s9, {M3}')
    a(f'ds_write2_b64 v27, v[{D0}:{D0+1}], v[{D1}:{D1+1}] offset0:0 offset1:1\ns_waitcnt lgkmcnt(0)')
    a('s_barrier')
    a.cand()
    a(f'ds_read2st64_b64 v[{Y}:{Y+3}], v13 offset0:0 offset1:2\nds_read2st64_b64 v[{Y+4}:{Y+7}], v13 offset0:4 offset1:6')
    a(f'ds_read2st64_b64 v[{Y+8}:{Y+11}], v12 offset0:0 offset1:2\nds_read2st64_b64 v[{Y+12}:{Y+15}], v12 offset0:4 offset1:6')
    a('s_mov_b32 s13, 0x3b000000\ns_mov_b32 s16, 0xc0135761\ns_mov_b32 s17, 0xbdd2d3e8')
    a('s_waitcnt lgkmcnt(2)')
    a(f'v_add_f32 v8, v{Y}, v{Y+2}\nv_add_f32 v9, v{Y+1}, v{Y+3}\nv_add_f32 v10, v{Y+4}, v{Y+6}\nv_add_f32 v11, v{Y+5}, v{Y+7}\nv_add_f32 v8, v8, v10\nv_add_f32 v9, v9, v11')
    a('v_mul_f32 v9, s13, v9\nv_mul_f32 v10, v9, v9\nv_fma_f32 v8, v8, s13, -v10\nv_max_f32 v8, 0, v8\nv_add_f32 v8, 0x3727c5ac, v8\nv_rsq_f32 v8, v8')
    a('s_waitcnt lgkmcnt(0)')
    a(f'v_add_f32 v10, v{Y+8}, v{Y+10}\nv_add_f32 v11, v{Y+9}, v{Y+11}\nv_add_f32 v15, v{Y+12}, v{Y+14}\nv_add_f32 v16, v{Y+13}, v{Y+15}\nv_add_f32 v10, v10, v15\nv_add_f32 v11, v11, v16')
    a('v_fma_f32 v10, -v9, v11, v10\nv_mul_f32 v10, v10, v8')
    a('v_mul_f32 v11, v10, v10\nv_mov_b32 v16, s16\nv_fmac_f32 v16, s17, v11\nv_mul_f32 v16, v16, v10\nv_exp_f32 v16, v16')
    a('v_mov_b32_dpp v15, v10 row_ror:8 row_mask:0xf bank_mask:0xf')
    a('v_add_f32 v16, 1.0, v16\nv_rcp_f32 v16, v16\nv_mul_f32 v10, v10, v15\nv_mul_f32 v10, v10, v16')
    a(f'v_mul_f32_dpp v16, v10, v{WDF} row_newbcast:0 row_mask:0xf bank_mask:0xf\nv_mul_f32_dpp v17, v10, v{WDF+1} row_newbcast:0 row_mask:0xf bank_mask:0xf')
    a(f'v_mul_f32_dpp v18, v10, v{WDF+2} row_newbcast:1 row_mask:0xf bank_mask:0xf\nv_mul_f32_dpp v19, v10, v{WDF+3} row_newbcast:1 row_mask:0xf bank_mask:0xf')
    for k in range(2, 8):
        o = 16 + 2 * (k & 1)
        a(f'v_fmac_f32 v{o}, v10, v{WDF+2*k} row_newbcast:{k} row_mask:0xf bank_mask:0xf\nv_fmac_f32 v{o+1}, v10, v{WDF+2*k+1} row_newbcast:{k} row_mask:0xf bank_mask:0xf')
    a('v_add_f32 v16, v16, v18\nv_add_f32 v17, v17, v19\nv_min_u32 v16, -2, v16\nv_min_u32 v17, -2, v17')
    a(f'buffer_store_dwordx2 v[16:17], v14, {srd(SWS)}, s9 offen sc1')
    stamp('H', 'fpub', HST)
    a('s_cmp_ge_u32 s2, 64\ns_cbranch_scc1 L_Hend\ns_cmp_lg_u32 s3, 0\ns_cbranch_scc1 L_Hend')
    a.cand()
    a(f'v_and_b32 v12, 1, v0\nv_lshl_add_u32 v13, v12, 2, v3\nv_lshlrev_b32 v13, 1, v13')
    a(f's_lshr_b32 s9, s2, 4\ns_lshl_b32 s9, s9, 9\ns_and_b32 s10, s2, 15\ns_lshl_b32 s10, s10, 4\ns_add_u32 s9, s9, s10\ns_add_u32 s9, s9, {L_HB}\nv_add_u32 v15, s9, v13\nds_read_u16 v19, v15')
    R = A1
    if m3t:
        a(f'v_lshlrev_b32 v14, 4, v0\ns_mul_i32 s9, s2, 7168\ns_add_u32 s9, s9, {M3}\ns_add_u32 s10, s9, 4096')
        loads = [f'buffer_load_dwordx4 v[{R+4*m}:{R+4*m+3}], v14, {srd(SWS)}, {"s9" if m < 4 else "s10"} offen offset:{(m & 3)*1024} sc1' for m in range(7)]
    else:
        a(f'v_lshrrev_b32 v14, 1, v0\nv_lshlrev_b32 v14, 11, v14\nv_lshl_add_u32 v14, v12, 4, v14\ns_lshl_b32 s9, s2, 5')
        for m in range(7): a(f's_add_u32 s{24+m}, s9, {M3 + m*65536}')
        loads = [f'buffer_load_dwordx4 v[{R+4*m}:{R+4*m+3}], v14, {srd(SWS)}, s{24+m} offen sc1' for m in range(7)]
    a('s_lshl_b32 s15, s2, 4')
    poll('p3', loads, 28, R)
    a('s_waitcnt vmcnt(0) lgkmcnt(0)')
    stamp('H', 'hop3', HST)
    for e in range(4): a(f'v_add_f32 v{R+e}, v{R+e}, v{R+4+e}\nv_add_f32 v{R+8+e}, v{R+8+e}, v{R+12+e}\nv_add_f32 v{R+16+e}, v{R+16+e}, v{R+20+e}')
    for e in range(4): a(f'v_add_f32 v{R+e}, v{R+e}, v{R+8+e}\nv_add_f32 v{R+16+e}, v{R+16+e}, v{R+24+e}')
    for e in range(4): a(f'v_add_f32 v{R+e}, v{R+e}, v{R+16+e}')
    a(f'v_permlane32_swap_b32 v{R}, v{R+2}\nv_permlane32_swap_b32 v{R+1}, v{R+3}\nv_add_f32 v{R}, v{R}, v{R+2}\nv_add_f32 v{R+1}, v{R+1}, v{R+3}')
    a(f'v_permlane16_swap_b32 v{R}, v{R+1}\nv_add_f32 v8, v{R}, v{R+1}')
    a('v_add_f32_dpp v8, v8, v8 row_ror:8 row_mask:0xf bank_mask:0xf\nv_add_f32_dpp v8, v8, v8 row_ror:4 row_mask:0xf bank_mask:0xf\nv_add_f32_dpp v8, v8, v8 quad_perm:[2,3,0,1] row_mask:0xf bank_mask:0xf')
    a('v_lshlrev_b32 v19, 16, v19'); rbf(8)
    a('v_add_f32 v8, v8, v19\nv_cvt_pk_bf16_f32 v8, v8, v8')
    a('s_mov_b32 exec_lo, 0x00030003\ns_mov_b32 exec_hi, 0x00030003')
    a(f'buffer_store_short v8, v13, {srd(SO)}, s15 offen')
    stamp('H', 'out', HST)
    a('L_Hend:')
    stamp_store(HST)
    a('L_end:')
    a('s_endpgm')

    head = HEADER + f'; Generated by gen/gen.py (hand-written generator); one persistent launch, 256 workgroups x 8 waves.\n; @launch grid=(256,1,1) block=(512,1,1) lds={LDS_BYTES}\n'
    pre = f'.amdgcn_target "amdgcn-amd-amdhsa--gfx950"\n.text\n.globl {KN}\n.p2align 8\n.type {KN},@function\n'
    post = f'''.section .rodata,"a"
.p2align 6
.amdhsa_kernel {KN}
  .amdhsa_next_free_vgpr 256
  .amdhsa_next_free_sgpr 96
  .amdhsa_accum_offset 256
  .amdhsa_group_segment_fixed_size 0
  .amdhsa_kernarg_size 96
  .amdhsa_user_sgpr_count 2
  .amdhsa_user_sgpr_kernarg_segment_ptr 1
  .amdhsa_system_sgpr_workgroup_id_x 1
  .amdhsa_float_denorm_mode_32 3
.end_amdhsa_kernel
'''
    if not warm:
        body = a.render(chosen=[])
        return head + pre + '\n'.join(body) + '\n' + post, nst
    saveL = list(a.L)
    a.L = [l.replace('@W0', 'L_warm_end').replace('@W1', 'L_warm_end').replace('@W2', 'L_warm_end') for l in saveL]
    syms = assemble_syms(pre + '\n'.join(a.render(None)) + '\n')
    pos = [syms[f'L_cand{n}'] for n in range(a.ncand)]
    end = syms['L_end']
    chosen = []; last = None
    for n in range(a.ncand):
        nxt = pos[n+1] if n + 1 < a.ncand else end
        if last is None or nxt - last > 860:
            chosen.append(n); last = pos[n]
    k = len(chosen)
    ent = [0, (k + 2) // 3, (2 * k + 2) // 3]
    a.L = [l.replace('@W0', f'L_pad{ent[0]}').replace('@W1', f'L_pad{ent[1]}').replace('@W2', f'L_pad{ent[2]}') for l in saveL]
    body = a.render(chosen)
    gaps = [pos[chosen[i+1]] - pos[chosen[i]] for i in range(k-1)] + [end - pos[chosen[-1]]]
    print('pads', k, 'first', pos[chosen[0]], 'gaps', gaps, 'code bytes', end, file=sys.stderr)
    return head + pre + '\n'.join(body) + '\n' + post, nst

if __name__ == '__main__':
    kw = eval('dict(' + (sys.argv[2] if len(sys.argv) > 2 else '') + ')')
    s, nst = gen(**kw)
    open(sys.argv[1], 'w').write(s)
    if nst: print(nst)
```

```python
import sys, math
from asmlib import Asm, assemble_syms
NAME = 'sequential_preLN__gqa_block_cached__glu_gated_geglu__decode'
KN = NAME + '_kernel'

QP   = 0x00000
LAM  = 0x10000
M2   = 0x20000
M1   = 0x40000
M3   = 0x80000
MF   = 0x100000
FL   = 0x18000
EPOCH = 0x19000
STAMP = 0x8000000
L_WQ = 0
L_G  = 16384
L_U  = 24576 + 64
L_XN = 33792
L_Q  = 34816
L_MX = 35840
L_LS = 35904
L_EP = 36864
L_YW = 45568
L_HB = 46592
LDS_BYTES = 47616
SX, SK, SV, SWQ, SWO, SG, SU, SD, SO, SDBG, SWS = 40, 44, 48, 52, 56, 60, 64, 68, 72, 76, 80
def srd(b): return f's[{b}:{b+3}]'
LOG2E = 0x3fb8aa3b
SPIN = 1 << 16

HEADER = open('cdna_kernels/' + NAME + '.s.ref').read().split('; Override launch')[0]

def gen(D=7, lead_ss=8, lead_sm=16, D0=4, n0=8, weights='last', wf='b4', qdelay=0, knt='nt', vnt='nt', pd=(0,0,0,0), m3t=False, stamps=False, warm=True, wnt='nt', qnt='nt', nslots=40, mask_poll=True, dump=False):
    a = Asm()
    use_b4 = True
    nst = {}
    def stamp(role, name, vreg):
        if not stamps: return
        idx = nst.setdefault(role, []); idx.append(name)
        a(f's_memrealtime s[90:91]\ns_waitcnt lgkmcnt(0)\nv_writelane_b32 v{vreg}, s90, {len(idx)-1}')
    def stamp_store(vreg):
        if not stamps: return
        a(f's_lshl_b32 s92, s2, 3\ns_add_u32 s92, s92, s3\ns_lshl_b32 s92, s92, 8\ns_add_u32 s92, s92, {STAMP}')
        a(f's_mov_b64 exec, -1\nv_lshlrev_b32 v{vreg+1}, 2, v0\nbuffer_store_dword v{vreg}, v{vreg+1}, {srd(SWS)}, s92 offen')
    SST, HST = 88, 200
    a(f'{KN}:')
    a('s_cmp_ge_u32 s2, 256\ns_cbranch_scc1 L_end')
    if stamps: a('s_memrealtime s[94:95]')
    for b, off in ((SK, 8), (SX, 0), (SWQ, 24), (SWS, 88), (SV, 16), (SDBG, 80), (SWO, 32), (SG, 48), (SU, 56), (SD, 64), (SO, 72)):
        a(f's_load_dwordx2 s[{b}:{b+1}], s[0:1], {off}')
    a('v_lshrrev_b32 v1, 6, v0\nv_and_b32 v0, 63, v0')
    a('v_readfirstlane_b32 s3, v1')
    for b, n in ((SX, 1024), (SK, 64 << 20), (SV, 64 << 20), (SWQ, 4 << 20), (SWO, 4 << 20), (SG, 512 * 3584), (SU, 512 * 3584), (SD, 1792 * 1024), (SO, 1024), (SDBG, 256), (SWS, 268435456)):
        a(f's_mov_b32 s{b+2}, {n}\ns_mov_b32 s{b+3}, 0x20000')
    a('s_and_b32 s4, s2, 7\ns_lshr_b32 s5, s2, 3')
    a('s_and_b32 s6, s3, 3')
    a('s_cmp_lt_u32 s3, 4\ns_cbranch_scc1 L_H')
    RING = 96
    def slot(k): return RING + 4 * k
    a('v_and_b32 v1, 3, v0\nv_lshlrev_b32 v1, 8, v1\nv_lshrrev_b32 v2, 2, v0\nv_lshl_add_u32 v1, v2, 4, v1')
    a('v_lshlrev_b32 v2, 4, v0')
    a('s_lshl_b32 s7, s4, 23\ns_lshl_b32 s8, s5, 18\ns_add_u32 s7, s7, s8\ns_lshl_b32 s8, s6, 12\ns_add_u32 s7, s7, s8')
    a('s_mov_b32 s8, s7')
    if stamps: a(f'v_mov_b32 v{SST}, 0')
    a('s_waitcnt lgkmcnt(0)')
    if stamps: a(f'v_writelane_b32 v{SST}, s94, 0'); nst['S'] = ['start']
    st = dict(I=0, free=list(range(nslots)), where={})
    def issue(pace=True):
        n = st['I']
        if n >= 128: return
        fl = st['free']
        k = next(x for x in fl if n < 64 or x >= 8)
        fl.remove(k); st['where'][n] = k
        d = D0 if n < n0 else D
        if pace and n >= d: a(f's_waitcnt vmcnt({d-1})')
        if n == 64: a('s_mov_b32 s8, s7')
        if n < 64: a(f'buffer_load_dwordx4 v[{slot(k)}:{slot(k)+3}], v1, {srd(SK)}, s8 offen offset:{(n & 3) * 1024} {knt}')
        else:      a(f'buffer_load_dwordx4 v[{slot(k)}:{slot(k)+3}], v2, {srd(SV)}, s8 offen offset:{(n & 3) * 1024} {vnt}')
        if n & 3 == 3 and n != 63 and n != 127: a('s_add_u32 s8, s8, 0x4000')
        st['I'] = n + 1
    def can_issue():
        n = st['I']
        return n < 128 and any(n < 64 or x >= 8 for x in st['free'])
    for n in range(nslots): issue()
    stamp('S', 'pref', SST)
    a('s_barrier')
    a('s_branch L_S')
    a('L_H:')
    if stamps: a(f'v_mov_b32 v{HST}, 0')
    a('s_cmp_lg_u32 s3, 0\ns_cbranch_scc1 L_Hwarm')
    a('s_setprio 2')
    a('v_lshlrev_b32 v2, 4, v0')
    a('v_lshrrev_b32 v1, 3, v0\nv_lshlrev_b32 v1, 13, v1\nv_and_b32 v3, 7, v0\nv_lshl_add_u32 v1, v3, 4, v1')
    a('s_and_b32 s17, s5, 7\ns_lshr_b32 s18, s5, 3')
    a('s_lshl_b32 s8, s18, 20\ns_lshl_b32 s7, s4, 10\ns_add_u32 s8, s8, s7\ns_lshl_b32 s7, s17, 7\ns_add_u32 s8, s8, s7\ns_mov_b32 m0, %d' % L_WQ)
    a('v_mov_b32 v8, -1\nv_mov_b32 v9, -1\nv_mov_b32 v10, -1\nv_mov_b32 v11, -1')
    a('v_lshrrev_b32 v15, 4, v0\nv_lshlrev_b32 v12, 13, v15\nv_and_b32 v13, 15, v0\nv_lshl_add_u32 v12, v13, 4, v12')
    a(f's_lshl_b32 s9, s4, 15\ns_lshl_b32 s10, s5, 8\ns_add_u32 s9, s9, s10\ns_add_u32 s9, s9, {M1}')
    a(f's_lshl_b32 s15, s17, 13\ns_lshl_b32 s10, s4, 10\ns_add_u32 s15, s15, s10\ns_lshl_b32 s10, s18, 8\ns_add_u32 s15, s15, s10\ns_add_u32 s15, s15, {M2}')
    a(f'v_lshlrev_b32 v14, 7, v0\ns_lshl_b32 s11, s4, 9\ns_lshl_b32 s10, s5, 2\ns_add_u32 s11, s11, s10\ns_add_u32 s11, s11, {LAM}')
    if m3t:
        a(f's_movk_i32 s10, 7168\nv_mul_u32_u24 v13, s10, v0\ns_lshl_b32 s16, s2, 5\ns_add_u32 s16, s16, {M3}')
    else:
        a(f's_lshl_b32 s16, s2, 11\ns_add_u32 s16, s16, {M3}')
    a(f'v_and_b32 v16, 15, v0\nv_lshlrev_b32 v16, 4, v16\nv_lshl_add_u32 v15, v15, 11, v16\ns_lshl_b32 s19, s5, 14\ns_lshl_b32 s10, s4, 8\ns_add_u32 s19, s19, s10\ns_add_u32 s19, s19, {MF}\ns_add_u32 s20, s19, 8192')
    a('s_waitcnt lgkmcnt(0)')
    if stamps: a(f'v_writelane_b32 v{HST}, s94, 0'); nst['H'] = ['start']
    a(f's_load_dword s33, s[{SWS}:{SWS+1}], {EPOCH}')
    a(f'buffer_load_dwordx4 v[4:7], v2, {srd(SX)}, 0 offen')
    for m in range(16):
        a(f'buffer_load_dwordx4 v1, {srd(SWQ)}, s8 offen {qnt} lds')
        if m < 15: a(f's_add_u32 m0, m0, 1024\ns_add_u32 s8, s8, 0x10000')
    a.cand()
    a(f'buffer_store_dwordx4 v[8:11], v12, {srd(SWS)}, s9 offen sc1')
    a('s_mov_b64 exec, 0xffff')
    a(f'buffer_store_dwordx4 v[8:11], v2, {srd(SWS)}, s15 offen sc1')
    a('s_mov_b64 exec, 15')
    a(f'buffer_store_dword v8, v14, {srd(SWS)}, s11 offen sc1')
    a('s_mov_b64 exec, -1')
    a('s_cmp_ge_u32 s2, 224\ns_cbranch_scc1 L_noclr3')
    if m3t:
        a(f'buffer_store_dwordx4 v[8:11], v13, {srd(SWS)}, s16 offen sc1\nbuffer_store_dwordx4 v[8:11], v13, {srd(SWS)}, s16 offen offset:16 sc1')
    else:
        a(f'buffer_store_dwordx4 v[8:11], v2, {srd(SWS)}, s16 offen sc1\nbuffer_store_dwordx4 v[8:11], v2, {srd(SWS)}, s16 offen offset:1024 sc1')
    a(f'buffer_store_dwordx4 v[8:11], v15, {srd(SWS)}, s19 offen sc1\nbuffer_store_dwordx4 v[8:11], v15, {srd(SWS)}, s20 offen sc1')
    a('L_noclr3:')
    a('s_mov_b32 s12, 0xffff0000')
    a('s_waitcnt vmcnt(16)')
    for d in range(4):
        a(f'v_lshlrev_b32 v{8+2*d}, 16, v{4+d}\nv_and_b32 v{9+2*d}, s12, v{4+d}')
    def allreduce(r, t, op='add'):
        for sh in (8, 4, 2, 1):
            a(f'v_{op}_f32_dpp v{r}, v{r}, v{r} row_ror:{sh} row_mask:0xf bank_mask:0xf')
        crossg(r, t, op)
    def crossg(r, t, op='add'):
        a(f'v_mov_b32 v{t}, v{r}\nv_permlane16_swap_b32 v{t}, v{r}\nv_{op}_f32 v{r}, v{r}, v{t}')
        a(f'v_mov_b32 v{t}, v{r}\nv_permlane32_swap_b32 v{t}, v{r}\nv_{op}_f32 v{r}, v{r}, v{t}')
    def rbf(r):
        a(f'v_cvt_pk_bf16_f32 v{r}, v{r}, v{r}\nv_lshlrev_b32 v{r}, 16, v{r}')
    a('v_add_f32 v16, v8, v9\nv_add_f32 v17, v10, v11\nv_add_f32 v18, v12, v13\nv_add_f32 v19, v14, v15\nv_add_f32 v16, v16, v17\nv_add_f32 v18, v18, v19\nv_add_f32 v16, v16, v18')
    allreduce(16, 17)
    a('v_mul_f32 v16, 0x3b000000, v16')
    a('v_sub_f32 v17, v8, v16\nv_mul_f32 v18, v17, v17')
    for e in range(1, 8): a(f'v_sub_f32 v17, v{8+e}, v16\nv_fmac_f32 v18, v17, v17')
    allreduce(18, 17)
    a('v_mul_f32 v18, 0x3b000000, v18'); rbf(18)
    a('v_add_f32 v18, 0x3727c5ac, v18'); rbf(18)
    a('v_sqrt_f32 v18, v18'); rbf(18)
    a('v_rcp_f32 v18, v18'); rbf(16)
    for e in range(8): a(f'v_sub_f32 v{8+e}, v{8+e}, v16')
    for d in range(4): a(f'v_cvt_pk_bf16_f32 v{4+d}, v{8+2*d}, v{9+2*d}')
    for d in range(4): a(f'v_lshlrev_b32 v{8+2*d}, 16, v{4+d}\nv_and_b32 v{9+2*d}, s12, v{4+d}')
    for e in range(8): a(f'v_mul_f32 v{8+e}, v{8+e}, v18')
    for d in range(4): a(f'v_cvt_pk_bf16_f32 v{4+d}, v{8+2*d}, v{9+2*d}')
    a(f'ds_write_b128 v2, v[4:7] offset:{L_XN}')
    a.cand()
    a('v_lshrrev_b32 v3, 4, v0\nv_lshlrev_b32 v16, 4, v3\ns_lshl_b32 s9, s18, 8\nv_add_u32 v16, s9, v16')
    a('v_lshlrev_b32 v17, 10, v3\nv_bfe_u32 v18, v0, 2, 2\nv_lshl_add_u32 v17, v18, 7, v17\nv_and_b32 v18, 3, v0\nv_lshl_add_u32 v17, v18, 3, v17')
    a('s_waitcnt lgkmcnt(0)')
    for s_ in range(4): a(f'ds_read_b128 v[{64+4*s_}:{67+4*s_}], v16 offset:{L_XN + s_*64}')
    a('s_mul_i32 s34, s33, 1664525\ns_add_u32 s34, s34, 1013904223\ns_lshr_b32 s35, s34, 8\ns_lshr_b32 s36, s34, 16\ns_lshr_b32 s37, s34, 24\ns_mov_b32 s38, 0xffffff00')
    a('v_and_b32 v19, 3, v0\nv_lshlrev_b32 v19, 3, v19\nv_lshrrev_b32_e64 v19, v19, s34\nv_and_b32 v19, 0xff, v19')
    a('s_waitcnt vmcnt(0) lgkmcnt(0)')
    stamp('H', 'wq', HST)
    a.cand()
    order = [(s_, cg) for s_ in range(4) for cg in range(4)]
    def qmfma(q):
        s_, cg = order[q]
        a(f'v_mfma_f32_16x16x32_bf16 v[{24+4*cg}:{27+4*cg}], v[{64+4*s_}:{67+4*s_}], v[{128+4*q}:{131+4*q}], {"0" if s_ == 0 else f"v[{24+4*cg}:{27+4*cg}]"}')
    for q, (s_, cg) in enumerate(order):
        for eh in range(2): a(f'ds_read_b64_tr_b16 v[{128+4*q+2*eh}:{129+4*q+2*eh}], v17 offset:{L_WQ + s_*4096 + eh*512 + cg*32}')
        if q >= 4:
            a(f's_waitcnt lgkmcnt(8)'); qmfma(q - 4)
    for q in range(12, 16):
        a(f's_waitcnt lgkmcnt({2*(15-q)})'); qmfma(q)
    a(f'v_lshlrev_b32 v3, 2, v0\ns_lshl_b32 s9, s4, 13\ns_lshl_b32 s10, s18, 11\ns_add_u32 s10, s10, s9\ns_lshl_b32 s13, s17, 8\ns_add_u32 s10, s10, s13\ns_add_u32 s10, s10, {QP}\ns_add_u32 s16, s9, {QP}\ns_add_u32 s15, s16, 4096')
    for cg in range(1, 4): a(f'v_mov_b32_dpp v24, v{24+4*cg} quad_perm:[0,1,2,3] row_mask:{1 << cg} bank_mask:0xf')
    a('v_and_or_b32 v24, v24, s38, v19')
    a(f'buffer_store_dword v24, v3, {srd(SWS)}, s10 offen sc1')
    a(f's_mov_b64 exec, 1\nv_mov_b32 v4, s34\nv_mov_b32 v5, 0\ns_lshl_b32 s9, s4, 7\ns_lshl_b32 s10, s5, 2\ns_add_u32 s9, s9, s10\ns_add_u32 s9, s9, {FL}')
    a(f'buffer_store_dword v4, v5, {srd(SWS)}, s9 offen sc1')
    a('s_mov_b64 exec, -1\ns_mov_b32 s14, 0')
    stamp('H', 'qpub', HST)
    a.cand()
    for k in range(qdelay): a('s_sleep 8')
    a('L_qpoll:')
    for k in range(8):
        a(f'buffer_load_dwordx4 v[{64+4*k}:{67+4*k}], v2, {srd(SWS)}, {"s16" if k < 4 else "s15"} offen offset:{(k & 3) * 1024} sc1')
    a(f's_add_u32 s14, s14, 1\ns_cmp_gt_u32 s14, {SPIN}\ns_cbranch_scc1 L_qdone')
    for k in range(8):
        a(f's_waitcnt vmcnt({7-k})')
        for e in range(4):
            if k == 0: a(f'v_xor_b32 v{8+e}, s{34+e}, v{64+e}')
            else: a(f'v_bitop3_b32 v{8+e}, v{8+e}, v{64+4*k+e}, s{34+e} bitop3:0xf6')
    a('v_or3_b32 v8, v8, v9, v10\nv_or_b32 v8, v8, v11\nv_and_b32 v8, 0xff, v8\nv_cmp_ne_u32 vcc, 0, v8')
    a('s_and_b64 exec, exec, vcc\ns_cbranch_execnz L_qpoll')
    a('L_qdone:')
    a('s_mov_b64 exec, -1\ns_waitcnt vmcnt(0)')
    stamp('H', 'qflag', HST)
    a('v_lshlrev_b32 v3, 3, v0')
    for e in range(8): a(f'v_add_f32 v{64+e}, v{64+e}, v{72+e}')
    for e in range(8): a(f'v_add_f32 v{80+e}, v{80+e}, v{88+e}')
    for e in range(8): a(f'v_add_f32 v{64+e}, v{64+e}, v{80+e}')
    for d in range(4): a(f'v_cvt_pk_bf16_f32 v{4+d}, v{64+2*d}, v{65+2*d}')
    a(f'ds_write2st64_b64 v3, v[4:5], v[6:7] offset0:{L_Q//512} offset1:{L_Q//512+1}')
    a('s_waitcnt lgkmcnt(0)')
    stamp('H', 'qgot', HST)
    a('s_setprio 0')
    a('s_branch L_Hb1')
    a('L_Hwarm:')
    a('s_waitcnt lgkmcnt(0)')
    if stamps:
        a(f'v_writelane_b32 v{HST}, s94, 0')
    if warm:
        a('s_mov_b64 exec, 0')
        a('s_cmp_eq_u32 s3, 1\ns_cbranch_scc1 @W0\ns_cmp_eq_u32 s3, 2\ns_cbranch_scc1 @W1\ns_branch @W2')
        a('L_warm_end:')
        a('s_mov_b64 exec, -1')
        if stamps:
            a(f's_memrealtime s[90:91]\ns_waitcnt lgkmcnt(0)\nv_writelane_b32 v{HST}, s90, 1')
    a('L_Hb1:')
    a('s_barrier')
    a('s_branch L_Hmid')

    a('L_S:')
    a.cand()
    Q, P, ACC = 20, 24, 56
    a(f'ds_read_b128 v[{Q}:{Q+3}], v1 offset:{L_Q}')
    a('s_mov_b32 s12, 0xffff0000\ns_mov_b32 s13, 0x3db504f3\nv_mov_b32 v3, 0xff800000')
    a(f'v_lshrrev_b32 v14, 4, v0\nv_lshlrev_b32 v13, 4, v14')
    a('s_waitcnt lgkmcnt(0)')
    stamp('S', 'q', SST)
    C = 0
    lead = nslots
    for u in range(16):
        a.cand()
        ks = [slot(st['where'][4*u+e]) for e in range(4)]
        T = [ACC + 4*e for e in range(4)]
        a(f's_waitcnt vmcnt({st["I"] - (4*u+4)})')
        for e in range(4): a(f'v_mfma_f32_4x4x4_16b_bf16 v[{T[e]}:{T[e]+3}], v[{ks[e]}:{ks[e]+1}], v[{Q}:{Q+1}], 0')
        for e in range(4): a(f'v_mfma_f32_4x4x4_16b_bf16 v[{T[e]}:{T[e]+3}], v[{ks[e]+2}:{ks[e]+3}], v[{Q+2}:{Q+3}], v[{T[e]}:{T[e]+3}]')
        for e in range(4): st['free'].append(st['where'][4*u+e])
        C = 4*u + 4
        lead = max(lead_ss, lead - 2)
        tgt = C + lead if u < 15 else C + lead_sm
        while st['I'] < tgt and can_issue(): issue(pace=(u < 15))
        for e in range(4): a(f'v_permlane32_swap_b32 v{T[e]}, v{T[e]+2}\nv_permlane32_swap_b32 v{T[e]+1}, v{T[e]+3}')
        for e in range(4): a(f'v_add_f32 v{T[e]}, v{T[e]}, v{T[e]+2}\nv_add_f32 v{T[e]+1}, v{T[e]+1}, v{T[e]+3}')
        for e in range(4): a(f'v_permlane16_swap_b32 v{T[e]}, v{T[e]+1}')
        for e in range(4): a(f'v_add_f32 v{T[e]}, v{T[e]}, v{T[e]+1}')
        for e in range(4): a(f'v_add_f32_dpp v{T[e]+1}, v{T[e]}, v{T[e]} row_ror:4 row_mask:0xf bank_mask:0xf')
        for e in range(4): a(f'v_add_f32_dpp v{T[e]}, v{T[e]+1}, v{T[e]+1} row_ror:8 row_mask:0xf bank_mask:0xf')
        a(f'v_cvt_pk_bf16_f32 v5, v{T[0]}, v{T[1]}\nv_cvt_pk_bf16_f32 v6, v{T[2]}, v{T[3]}')
        a('v_lshlrev_b32 v7, 16, v5\nv_and_b32 v8, s12, v5\nv_lshlrev_b32 v9, 16, v6\nv_and_b32 v10, s12, v6')
        a('v_mul_f32 v7, s13, v7\nv_mul_f32 v8, s13, v8\nv_mul_f32 v9, s13, v9\nv_mul_f32 v10, s13, v10')
        a(f'v_cvt_pk_bf16_f32 v{P+2*u}, v7, v8\nv_cvt_pk_bf16_f32 v{P+2*u+1}, v9, v10')
        a('v_max3_f32 v3, v3, v7, v8\nv_max3_f32 v3, v3, v9, v10')
    stamp('S', 'kdone', SST)
    a.cand()
    crossg(3, 5, 'max')
    a(f'v_and_b32 v5, 3, v0\nv_lshlrev_b32 v5, 4, v5\ns_lshl_b32 s9, s6, 2\nv_add_u32 v6, s9, v5')
    a(f's_mov_b64 exec, 15\nds_write_b32 v6, v3 offset:{L_MX}\ns_mov_b64 exec, -1\ns_waitcnt lgkmcnt(0)')
    a('s_barrier')
    a(f'ds_read_b128 v[8:11], v5 offset:{L_MX}')
    a(f's_mov_b32 s14, {LOG2E}\nv_mov_b32 v4, 0')
    a('s_waitcnt lgkmcnt(0)')
    a('v_max3_f32 v3, v8, v9, v10\nv_max_f32 v3, v3, v11'); rbf(3)
    a('v_mul_f32 v3, s14, v3')
    for r in range(0, 32, 2):
        if r % 8 == 0: a.cand()
        a(f'v_lshlrev_b32 v7, 16, v{P+r}\nv_and_b32 v8, s12, v{P+r}\nv_lshlrev_b32 v9, 16, v{P+r+1}\nv_and_b32 v10, s12, v{P+r+1}')
        for t in range(7, 11): a(f'v_fma_f32 v{t}, v{t}, s14, -v3')
        for t in range(7, 11): a(f'v_exp_f32 v{t}, v{t}')
        a(f'v_cvt_pk_bf16_f32 v{P+r}, v7, v8\nv_add_f32 v7, v7, v8\nv_cvt_pk_bf16_f32 v{P+r+1}, v9, v10\nv_add_f32 v9, v9, v10\nv_add_f32 v4, v4, v7\nv_add_f32 v4, v4, v9')
    crossg(4, 7, 'add')
    a(f's_mov_b64 exec, 15\nds_write_b32 v6, v4 offset:{L_LS}\ns_mov_b64 exec, -1\ns_waitcnt lgkmcnt(0)')
    a('s_barrier')
    stamp('S', 'smdone', SST)
    a(f's_lshl_b32 s9, s6, 4\nv_mov_b32 v13, s9\nds_read_b128 v[8:11], v13 offset:{L_LS}')
    a(f's_mul_i32 s9, s6, 2176\nv_lshlrev_b32 v15, 6, v14\nv_add_u32 v15, v15, v5\nv_add_u32 v15, s9, v15')
    a(f'v_and_b32 v17, 3, v0\nv_mul_u32_u24 v16, 544, v17\nv_lshl_add_u32 v16, v14, 6, v16\nv_bfe_u32 v17, v0, 2, 2\nv_lshl_add_u32 v16, v17, 2, v16\nv_add_u32 v16, v13, v16')
    a(f'v_lshlrev_b32 v17, 2, v0')
    a(f's_lshl_b32 s9, s4, 15\ns_lshl_b32 s10, s5, 8\ns_add_u32 s9, s9, s10\ns_lshl_b32 s10, s6, 13\ns_add_u32 s9, s9, s10\ns_add_u32 s15, s9, {M1}')
    a('s_mov_b32 s16, 0x05040100\ns_mov_b32 s17, 0x07060302')
    a('s_waitcnt lgkmcnt(0)')
    a('v_add_f32 v8, v8, v9\nv_add_f32 v10, v10, v11\nv_add_f32 v8, v8, v10\nv_rcp_f32 v18, v8')
    AT = RING
    b4_done = False
    for G in range(8):
        a.cand()
        for p in range(4):
            n = 64 + 8*G + 2*p
            k0, k1 = slot(st['where'][n]), slot(st['where'][n+1])
            a(f's_waitcnt vmcnt({st["I"] - (n+2)})')
            for d in range(4):
                a(f'v_perm_b32 v{AT+8*d+p}, v{k1+d}, v{k0+d}, s16\nv_perm_b32 v{AT+8*d+4+p}, v{k1+d}, v{k0+d}, s17')
            st['free'] += [st['where'][n], st['where'][n+1]]
            C = n + 2
            while st['I'] < C + lead_ss and can_issue(): issue(pace=False)
            if st['I'] == 128 and not b4_done and use_b4:
                a('s_barrier'); b4_done = True
                stamp('S', 'lastiss', SST)
        if G == 7: stamp('S', 'lastdata', SST)
        for dd in range(8):
            a(f'v_mfma_f32_16x16x32_bf16 v[{ACC+4*dd}:{ACC+4*dd+3}], v[{AT+4*dd}:{AT+4*dd+3}], v[{P+4*G}:{P+4*G+3}], {"0" if G == 0 else f"v[{ACC+4*dd}:{ACC+4*dd+3}]"}')
    a('s_mov_b32 exec_lo, 0x000f000f\ns_mov_b32 exec_hi, 0x000f000f')
    for dd in range(8): a(f'ds_write_b128 v15, v[{ACC+4*dd}:{ACC+4*dd+3}] offset:{L_EP + dd*272}')
    a('s_mov_b64 exec, -1\ns_waitcnt lgkmcnt(0)')
    a('s_barrier')
    for w in range(4): a(f'ds_read_b32 v{4+2*w}, v16 offset:{L_EP + w*2176}\nds_read_b32 v{5+2*w}, v16 offset:{L_EP + w*2176 + 272}')
    a('s_waitcnt lgkmcnt(4)\nv_add_f32 v4, v4, v6\nv_add_f32 v5, v5, v7\ns_waitcnt lgkmcnt(0)\nv_add_f32 v8, v8, v10\nv_add_f32 v9, v9, v11')
    a('v_add_f32 v4, v4, v8\nv_add_f32 v5, v5, v9\nv_mul_f32 v4, v4, v18\nv_mul_f32 v5, v5, v18\nv_cvt_pk_bf16_f32 v4, v4, v5\nv_min_u32 v4, -2, v4')
    a(f'buffer_store_dword v4, v17, {srd(SWS)}, s15 offen sc1')
    stamp('S', 'pub', SST)
    stamp_store(SST)
    a('s_endpgm')

    a('L_Hmid:')
    a.cand()
    W8, XF, WOB, GUB, WDR, WDF, A1, DW, Y = 28, 36, 44, 60, 76, 84, 100, 132, 164
    a('v_lshrrev_b32 v3, 4, v0\nv_and_b32 v4, 15, v0\nv_lshlrev_b32 v5, 4, v3')
    a('s_mov_b32 s12, 0xffff0000\ns_and_b32 s17, s5, 7\ns_lshr_b32 s18, s5, 3')
    a(f'v_and_b32 v6, 7, v0\nv_lshlrev_b32 v7, 3, v6\ns_lshl_b32 s9, s4, 7')
    a(f'buffer_load_dwordx2 v[8:9], v7, {srd(SX)}, s9 offen\nbuffer_load_dwordx2 v[10:11], v7, {srd(SX)}, s9 offen offset:64')
    a(f's_lshl_b32 s19, s6, 8\ns_add_u32 s19, s19, {L_HB}\nv_lshlrev_b32 v25, 2, v0\nv_add_u32 v12, s19, v25\nv_mov_b32 v13, 0x3f803f80\nds_write_b32 v12, v13')
    a('v_lshlrev_b32 v20, 8, v4\nv_add_u32 v20, v20, v5\nv_add_u32 v7, 0x1000, v20')
    a(f's_lshl_b32 s20, s4, 15\ns_lshl_b32 s9, s18, 13\ns_add_u32 s20, s20, s9\ns_lshl_b32 s9, s6, 6\ns_add_u32 s20, s20, s9\ns_add_u32 s20, s20, {M1}')
    a(f's_lshl_b32 s21, s17, 13\ns_lshl_b32 s9, s4, 10\ns_add_u32 s21, s21, s9\ns_lshl_b32 s9, s18, 8\ns_add_u32 s21, s21, s9\ns_add_u32 s21, s21, {M2}')
    a(f'v_lshrrev_b32 v22, 3, v0\nv_lshlrev_b32 v22, 10, v22\nv_lshl_add_u32 v22, v6, 4, v22\ns_lshl_b32 s22, s4, 13\ns_add_u32 s22, s22, {M2}')
    a('v_lshrrev_b32 v23, 5, v0\nv_lshlrev_b32 v23, 6, v23\nv_lshl_add_u32 v23, v6, 3, v23\nv_bfe_u32 v12, v0, 4, 1\nv_lshl_add_u32 v23, v12, 2, v23\nv_add_u32 v23, s19, v23')
    a("v_and_b32 v12, 3, v0\nv_cmp_eq_u32 vcc, 1, v12\nv_add_u32 v21, s19, v5\nv_add_u32 v12, 0x80, v21\nv_cndmask_b32 v24, v21, v12, vcc")
    a(f's_lshl_b32 s9, s6, 8\ns_add_u32 s9, s9, {L_YW}\nv_add_u32 v26, s9, v25')
    a(f'v_lshlrev_b32 v27, 4, v4\nv_lshl_add_u32 v27, v3, 11, v27\ns_lshl_b32 s23, s5, 14\ns_lshl_b32 s9, s4, 8\ns_add_u32 s23, s23, s9\ns_lshl_b32 s9, s6, 12\ns_add_u32 s23, s23, s9\ns_add_u32 s23, s23, {MF}')
    a(f'v_lshlrev_b32 v19, 4, v0\ns_lshl_b32 s24, s5, 14\ns_lshl_b32 s9, s4, 11\ns_add_u32 s24, s24, s9\ns_add_u32 s24, s24, {MF}')
    if m3t:
        a(f'v_lshrrev_b32 v18, 2, v0\ns_lshl_b32 s9, s6, 4\nv_add_u32 v18, s9, v18\ns_movk_i32 s10, 7168\nv_mul_u32_u24 v18, s10, v18\nv_and_b32 v15, 3, v0\nv_lshl_add_u32 v18, v15, 3, v18\ns_lshl_b32 s25, s2, 5\ns_add_u32 s25, s25, {M3}')
    else:
        a(f'v_lshlrev_b32 v18, 3, v0\ns_lshl_b32 s25, s2, 11\ns_lshl_b32 s10, s6, 9\ns_add_u32 s25, s25, s10\ns_add_u32 s25, s25, {M3}')
    a('v_mov_b32 v17, -2')
    a('s_waitcnt vmcnt(0)')
    for d in range(4): a(f'v_lshlrev_b32 v{XF+2*d}, 16, v{8+d}\nv_and_b32 v{XF+2*d+1}, s12, v{8+d}')
    a('s_mov_b32 exec_lo, 0xffffff00')
    for e in range(8): a(f'v_mov_b32 v{XF+e}, 0')
    a('s_mov_b64 exec, -1')
    def wo_issue():
        a('v_lshrrev_b32 v12, 3, v0\nv_lshlrev_b32 v12, 10, v12\nv_lshl_add_u32 v12, v6, 4, v12')
        a(f's_lshl_b32 s9, s4, 19\ns_lshl_b32 s10, s18, 17\ns_add_u32 s9, s9, s10\ns_lshl_b32 s10, s6, 15\ns_add_u32 s9, s9, s10\ns_lshl_b32 s10, s17, 7\ns_add_u32 s9, s9, s10\ns_lshl_b32 s10, s6, 12\ns_add_u32 m0, s10, {L_WQ}')
        for m in range(4):
            a(f'buffer_load_dwordx4 v12, {srd(SWO)}, s9 offen {wnt} lds')
            if m < 3: a('s_add_u32 m0, m0, 1024\ns_add_u32 s9, s9, 0x2000')
    nf = [0]
    def wf_issue():
        nf[0] += 1
        a(f's_cmp_ge_u32 s2, 224\ns_cbranch_scc1 L_now{nf[0]}')
        a(f'v_lshrrev_b32 v12, 3, v0\nv_mul_u32_u24 v12, 0xe00, v12\nv_lshl_add_u32 v12, v6, 4, v12')
        a(f's_mul_i32 s9, s4, {64*3584}\ns_mul_i32 s10, s6, {16*3584}\ns_add_u32 s9, s9, s10\ns_lshl_b32 s10, s5, 7\ns_add_u32 s9, s9, s10\ns_add_u32 s10, s9, {8*3584}')
        a(f's_lshl_b32 s13, s6, 11\ns_add_u32 m0, s13, {L_G}')
        a(f'buffer_load_dwordx4 v12, {srd(SG)}, s9 offen {wnt} lds\ns_add_u32 m0, m0, 1024')
        a(f'buffer_load_dwordx4 v12, {srd(SG)}, s10 offen {wnt} lds\ns_add_u32 m0, s13, {L_U}')
        a(f'buffer_load_dwordx4 v12, {srd(SU)}, s9 offen {wnt} lds\ns_add_u32 m0, m0, 1024')
        a(f'buffer_load_dwordx4 v12, {srd(SU)}, s10 offen {wnt} lds')
        a(f's_lshl_b32 s9, s5, 16\ns_lshl_b32 s10, s4, 13\ns_add_u32 s9, s9, s10\ns_lshl_b32 s10, s6, 8\ns_add_u32 s9, s9, s10\ns_add_u32 s10, s9, 4096')
        for k in range(8): a(f'buffer_load_dword v{WDR+k}, v25, {srd(SD)}, {"s9" if k < 4 else "s10"} offen offset:{(k & 3) * 1024} {wnt}')
        a(f'L_now{nf[0]}:')
    def wo_read():
        a('v_lshlrev_b32 v12, 10, v3\nv_bfe_u32 v13, v0, 2, 2\nv_lshl_add_u32 v12, v13, 7, v12\nv_and_b32 v14, 3, v0\nv_lshl_add_u32 v12, v14, 3, v12\ns_lshl_b32 s9, s6, 12\nv_add_u32 v12, s9, v12')
        for cg in range(4):
            for eh in range(2): a(f'ds_read_b64_tr_b16 v[{WOB+4*cg+2*eh}:{WOB+4*cg+2*eh+1}], v12 offset:{L_WQ + eh*512 + cg*32}')
    def wf_read():
        a(f'v_lshlrev_b32 v12, 10, v3\nv_bfe_u32 v13, v0, 2, 2\nv_lshl_add_u32 v12, v13, 7, v12\nv_and_b32 v14, 1, v0\nv_lshl_add_u32 v12, v14, 3, v12\nv_bfe_u32 v14, v0, 1, 1\nv_mul_u32_u24 v14, {L_U - L_G}, v14\nv_add_u32 v12, v12, v14\ns_lshl_b32 s9, s6, 5\nv_add_u32 v12, s9, v12')
        for sb in range(2):
            for s_ in range(2):
                for eh in range(2): a(f'ds_read_b64_tr_b16 v[{GUB+8*sb+4*s_+2*eh}:{GUB+8*sb+4*s_+2*eh+1}], v12 offset:{L_G + s_*4096 + eh*512 + sb*16}')
        for k in range(8): a(f'v_lshlrev_b32 v{WDF+2*k}, 16, v{WDR+k}\nv_and_b32 v{WDF+2*k+1}, s12, v{WDR+k}')
    if weights == 'first': wo_issue()
    if wf == 'first': wf_issue()
    a('s_barrier')
    a('s_barrier')
    a.cand()
    if weights == 'mid': wo_issue()
    if wf == 'mid': wf_issue()
    a('s_cmp_lg_u32 s3, 0\ns_cbranch_scc1 L_nolam')
    a(f'v_and_b32 v12, 3, v0\nv_lshlrev_b32 v12, 4, v12\nds_read_b128 v[8:11], v12 offset:{L_MX}\nds_read_b128 v[{Y}:{Y+3}], v12 offset:{L_LS}\ns_mov_b32 s14, {LOG2E}\ns_waitcnt lgkmcnt(0)')
    a('v_max3_f32 v8, v8, v9, v10\nv_max_f32 v8, v8, v11'); rbf(8)
    a(f'v_add_f32 v9, v{Y}, v{Y+1}\nv_add_f32 v10, v{Y+2}, v{Y+3}\nv_add_f32 v9, v9, v10\nv_log_f32 v9, v9\nv_mul_f32 v8, s14, v8\nv_add_f32 v8, v8, v9\nv_min_u32 v8, -2, v8')
    a(f'v_lshlrev_b32 v12, 7, v0\ns_mov_b64 exec, 15\nbuffer_store_dword v8, v12, {srd(SWS)}, s11 offen sc1\ns_mov_b64 exec, -1')
    a(f's_mov_b32 s14, 0\ns_mov_b32 s28, {FL}')
    a('L_cpoll:')
    a(f'buffer_load_dwordx4 v[8:11], v19, {srd(SWS)}, s28 offen sc1')
    a(f's_add_u32 s14, s14, 1\ns_cmp_gt_u32 s14, {SPIN}\ns_cbranch_scc1 L_nolam')
    a('s_waitcnt vmcnt(0)\nv_xor_b32 v8, s34, v8\nv_bitop3_b32 v8, v8, v9, s34 bitop3:0xf6\nv_bitop3_b32 v8, v8, v10, s34 bitop3:0xf6\nv_bitop3_b32 v8, v8, v11, s34 bitop3:0xf6\nv_cmp_ne_u32 vcc, 0, v8\ns_cbranch_vccnz L_cpoll')
    a('L_nolam:')
    a(f's_lshl_b32 s27, s4, 9\ns_lshl_b32 s10, s18, 7\ns_add_u32 s27, s27, s10\ns_add_u32 s27, s27, {LAM}')
    def lam_loads():
        a(f'buffer_load_dwordx4 v[{W8}:{W8+3}], v5, {srd(SWS)}, s27 offen sc1\nbuffer_load_dwordx4 v[{W8+4}:{W8+7}], v5, {srd(SWS)}, s27 offen offset:64 sc1')
    a.cand()
    a('s_barrier')
    lam_loads()
    if weights == 'last': wo_issue()
    if wf == 'b4': wf_issue()
    nw_after = (4 if weights == 'last' else 0)
    a.cand()
    a('s_barrier')
    stamp('H', 'b5', HST)
    if wf == 'b4':
        a(f's_cmp_ge_u32 s2, 224\ns_cbranch_scc1 L_w0\ns_waitcnt vmcnt({12 + nw_after})\ns_branch L_w1\nL_w0:\ns_waitcnt vmcnt({nw_after})\nL_w1:')
    else: a(f's_waitcnt vmcnt({nw_after})')
    a('s_mov_b32 s14, 0')
    a('L_lpoll:')
    a(f'v_max3_u32 v8, v{W8}, v{W8+1}, v{W8+2}\nv_max3_u32 v9, v{W8+3}, v{W8+4}, v{W8+5}\nv_max3_u32 v8, v8, v{W8+6}, v{W8+7}\nv_max_u32 v8, v8, v9\nv_cmp_eq_u32 vcc, -1, v8')
    a('s_cbranch_vccz L_ldone')
    lam_loads()
    a(f's_add_u32 s14, s14, 1\ns_cmp_gt_u32 s14, {SPIN}\ns_waitcnt vmcnt(0)\ns_cbranch_scc0 L_lpoll')
    a('L_ldone:')
    a(f'v_max3_f32 v8, v{W8}, v{W8+1}, v{W8+2}\nv_max3_f32 v9, v{W8+3}, v{W8+4}, v{W8+5}\nv_max3_f32 v8, v8, v{W8+6}, v{W8+7}\nv_max_f32 v8, v8, v9')
    crossg(8, 9, 'max')
    for r in range(8): a(f'v_sub_f32 v{W8+r}, v{W8+r}, v8')
    for r in range(8): a(f'v_exp_f32 v{W8+r}, v{W8+r}')
    a(f'v_add_f32 v8, v{W8}, v{W8+1}')
    for r in range(2, 8): a(f'v_add_f32 v8, v8, v{W8+r}')
    crossg(8, 9, 'add')
    a('v_rcp_f32 v8, v8')
    for r in range(8): a(f'v_mul_f32 v{W8+r}, v{W8+r}, v8')
    stamp('H', 'lam', HST)
    a.cand()
    if weights == 'last':
        if wf == 'b4':
            a('s_cmp_ge_u32 s2, 224\ns_cbranch_scc1 L_w2\ns_waitcnt vmcnt(12)\ns_branch L_w3\nL_w2:\ns_waitcnt vmcnt(0)\nL_w3:')
        else: a('s_waitcnt vmcnt(0)')
    wo_read()
    stamp('H', 'wts', HST)
    if wf == 'b5': wf_issue()
    a.cand()
    def poll(name, loads, nreg, base, tmp=8):
        a('s_mov_b32 s14, 0')
        dl = pd[('p1', 'p2', 'p25', 'p3').index(name)]
        if dl: a(f's_sleep {dl}')
        a(f'L_{name}:')
        for l in loads: a(l)
        a(f's_add_u32 s14, s14, 1\ns_cmp_gt_u32 s14, {SPIN}\ns_cbranch_scc1 L_{name}_x')
        rr = list(range(base, base + nreg))
        n = len(loads); per = nreg // n
        a(f's_waitcnt vmcnt({n-1})')
        a(f'v_max3_u32 v{tmp}, v{rr[0]}, v{rr[1]}, v{rr[2]}')
        k = 3; done = 1
        while k < nreg:
            if k + 1 >= done * per and done < n:
                done += 1; a(f's_waitcnt vmcnt({n-done})')
            if k + 1 < nreg: a(f'v_max3_u32 v{tmp}, v{tmp}, v{rr[k]}, v{rr[k+1]}'); k += 2
            else: a(f'v_max_u32 v{tmp}, v{tmp}, v{rr[k]}'); k += 1
        a(f'v_cmp_eq_u32 vcc, -1, v{tmp}')
        if mask_poll: a(f's_and_b64 exec, exec, vcc\ns_cbranch_execnz L_{name}')
        else: a(f's_cbranch_vccnz L_{name}')
        a(f'L_{name}_x:')
        a('s_mov_b64 exec, -1')
        if stamps: a(f'v_writelane_b32 v{HST}, s14, {40 + ("p1", "p2", "p25", "p3").index(name)}')
    poll('p1', [f'buffer_load_dwordx4 v[{A1+4*t}:{A1+4*t+3}], {("v20", "v7")[t]}, {srd(SWS)}, s20 offen sc1' for t in range(2)], 8, A1)
    a('s_waitcnt vmcnt(0) lgkmcnt(0)')
    stamp('H', 'hop1', HST)
    for cg in range(4):
        for t in range(2):
            a(f'v_mfma_f32_16x16x32_bf16 v[{DW+8*cg+4*t}:{DW+8*cg+4*t+3}], v[{A1+4*t}:{A1+4*t+3}], v[{WOB+4*cg}:{WOB+4*cg+3}], 0')
    if wf == 'hop1': wf_issue()
    for cg in range(4):
        a(f'v_mul_f32 v{8+cg}, v{W8}, v{DW+8*cg}')
        for r in range(1, 8): a(f'v_fmac_f32 v{8+cg}, v{W8+r}, v{DW+8*cg+r}')
    a('v_permlane32_swap_b32 v8, v10\nv_permlane32_swap_b32 v9, v11\nv_add_f32 v8, v8, v10\nv_add_f32 v9, v9, v11\nv_permlane16_swap_b32 v8, v9\nv_add_f32 v8, v8, v9')
    a('ds_write_b32 v26, v8\ns_waitcnt lgkmcnt(0)' + ('' if wf == 'hop1' else ' vmcnt(0)'))
    a('s_barrier')
    a('s_cmp_lg_u32 s3, 0\ns_cbranch_scc1 L_nowpub')
    a(f'ds_read2st64_b32 v[8:9], v25 offset0:{L_YW//256} offset1:{L_YW//256+1}\nds_read2st64_b32 v[10:11], v25 offset0:{L_YW//256+2} offset1:{L_YW//256+3}')
    a('s_waitcnt lgkmcnt(0)\nv_add_f32 v8, v8, v9\nv_add_f32 v10, v10, v11\nv_add_f32 v8, v8, v10\nv_min_u32 v8, -2, v8')
    a(f'buffer_store_dword v8, v25, {srd(SWS)}, s21 offen sc1')
    a('L_nowpub:')
    stamp('H', 'wpub', HST)
    a('s_cmp_ge_u32 s2, 224\ns_cbranch_scc1 L_Hend')
    if wf == 'hop1': a('s_waitcnt vmcnt(0)\ns_barrier')
    wf_read()
    a.cand()
    poll('p2', [f'buffer_load_dwordx4 v[{Y+4*j}:{Y+4*j+3}], v22, {srd(SWS)}, s22 offen offset:{(j >> 1)*256 + (j & 1)*128} sc1' for j in range(8)], 32, Y)
    a('s_waitcnt vmcnt(0)')
    stamp('H', 'hop2', HST)
    for e in range(8): a(f'v_add_f32 v{Y+e}, v{Y+e}, v{Y+8+e}\nv_add_f32 v{Y+16+e}, v{Y+16+e}, v{Y+24+e}')
    for e in range(8): a(f'v_add_f32 v{Y+e}, v{Y+e}, v{XF+e}')
    for e in range(8): a(f'v_add_f32 v{Y+e}, v{Y+e}, v{Y+16+e}')
    for e in range(4): a(f'v_permlane32_swap_b32 v{Y+e}, v{Y+4+e}')
    for e in range(4): a(f'v_add_f32 v{Y+e}, v{Y+e}, v{Y+4+e}')
    a(f'v_permlane16_swap_b32 v{Y}, v{Y+2}\nv_permlane16_swap_b32 v{Y+1}, v{Y+3}\nv_add_f32 v{Y}, v{Y}, v{Y+2}\nv_add_f32 v{Y+1}, v{Y+1}, v{Y+3}')
    a(f'v_add_f32_dpp v8, v{Y}, v{Y} row_ror:8 row_mask:0xf bank_mask:0xf\nv_add_f32_dpp v9, v{Y+1}, v{Y+1} row_ror:8 row_mask:0xf bank_mask:0xf\nv_cvt_pk_bf16_f32 v8, v8, v9')
    a('ds_write_b32 v23, v8\ns_waitcnt lgkmcnt(0)')
    a(f'ds_read_b128 v[{A1}:{A1+3}], v24\nds_read_b128 v[{A1+4}:{A1+7}], v24 offset:64\nds_read_b128 v[{A1+8}:{A1+11}], v21\nds_read_b128 v[{A1+12}:{A1+15}], v21 offset:64')
    for s_ in range(2):
        a(f's_waitcnt lgkmcnt({3-s_})')
        for sb in range(2):
            a(f'v_mfma_f32_16x16x32_bf16 v[{DW+4*sb}:{DW+4*sb+3}], v[{A1+4*s_}:{A1+4*s_+3}], v[{GUB+8*sb+4*s_}:{GUB+8*sb+4*s_+3}], {"0" if s_ == 0 else f"v[{DW+4*sb}:{DW+4*sb+3}]"}')
    for s_ in range(2):
        a(f's_waitcnt lgkmcnt({1-s_})')
        a(f'v_mfma_f32_16x16x32_bf16 v[{DW+8}:{DW+11}], v[{A1+4*s_}:{A1+4*s_+3}], v[{A1+8+4*s_}:{A1+8+4*s_+3}], {"0" if s_ == 0 else f"v[{DW+8}:{DW+11}]"}')
    a('s_mov_b32 exec_hi, 0')
    a(f'v_min_u32 v8, -2, v{DW}\nv_min_u32 v9, -2, v{DW+1}')
    a(f'v_min_u32_dpp v8, v{DW+4}, v17 quad_perm:[0,1,2,3] row_mask:2 bank_mask:0xf\nv_min_u32_dpp v9, v{DW+5}, v17 quad_perm:[0,1,2,3] row_mask:2 bank_mask:0xf')
    a(f'v_min_u32 v10, -2, v{DW+8}\nv_min_u32 v11, -2, v{DW+9}')
    a(f'buffer_store_dwordx4 v[8:11], v27, {srd(SWS)}, s23 offen sc1')
    a('s_mov_b64 exec, -1')
    stamp('H', 'f1pub', HST)
    a.cand()
    a('s_mov_b32 s13, 0x3b000000\ns_mov_b32 s16, 0xc0135761\ns_mov_b32 s26, 0xbdd2d3e8')
    poll('p25', [f'buffer_load_dwordx4 v[{Y+4*j}:{Y+4*j+3}], v19, {srd(SWS)}, s24 offen offset:{j*1024} sc1' for j in range(2)], 8, Y, tmp=12)
    a('s_waitcnt vmcnt(0)')
    stamp('H', 'hop25', HST)
    for e in range(4): a(f'v_add_f32 v{Y+e}, v{Y+e}, v{Y+4+e}')
    for e in range(4): a(f'v_mov_b32 v{Y+4+e}, v{Y+e}')
    for e in range(4): a(f'v_permlane16_swap_b32 v{Y+e}, v{Y+4+e}')
    for e in range(4): a(f'v_add_f32 v{Y+e}, v{Y+e}, v{Y+4+e}')
    for e in range(4): a(f'v_mov_b32 v{Y+4+e}, v{Y+e}')
    for e in range(4): a(f'v_permlane32_swap_b32 v{Y+e}, v{Y+4+e}')
    for e in (3, 2, 0, 1): a(f'v_add_f32 v{Y+e}, v{Y+e}, v{Y+4+e}')
    a(f'v_mul_f32 v13, s13, v{Y+3}\nv_mul_f32 v14, v13, v13\nv_fma_f32 v12, v{Y+2}, s13, -v14\nv_max_f32 v12, 0, v12\nv_add_f32 v12, 0x3727c5ac, v12\nv_rsq_f32 v12, v12')
    a(f'v_fma_f32 v14, -v13, v{Y+1}, v{Y}\nv_mul_f32 v14, v14, v12')
    a('v_mul_f32 v15, v14, v14\nv_mov_b32 v16, s16\nv_fmac_f32 v16, s26, v15\nv_mul_f32 v16, v16, v14\nv_exp_f32 v16, v16')
    a('v_mov_b32_dpp v15, v14 row_ror:8 row_mask:0xf bank_mask:0xf')
    a('v_add_f32 v16, 1.0, v16\nv_rcp_f32 v16, v16\nv_mul_f32 v14, v14, v15\nv_mul_f32 v14, v14, v16')
    for k in range(2):
        a(f'v_mul_f32_dpp v{Y+2*k}, v14, v{WDF+2*k} row_newbcast:{k} row_mask:0xf bank_mask:0xf\nv_mul_f32_dpp v{Y+2*k+1}, v14, v{WDF+2*k+1} row_newbcast:{k} row_mask:0xf bank_mask:0xf')
    for k in range(2, 8):
        o = Y + 2 * (k & 1)
        a(f'v_fmac_f32_dpp v{o}, v14, v{WDF+2*k} row_newbcast:{k} row_mask:0xf bank_mask:0xf\nv_fmac_f32_dpp v{o+1}, v14, v{WDF+2*k+1} row_newbcast:{k} row_mask:0xf bank_mask:0xf')
    a(f'v_add_f32 v{Y}, v{Y}, v{Y+2}\nv_add_f32 v{Y+1}, v{Y+1}, v{Y+3}\nv_min_u32 v{Y}, -2, v{Y}\nv_min_u32 v{Y+1}, -2, v{Y+1}')
    a(f'buffer_store_dwordx2 v[{Y}:{Y+1}], v18, {srd(SWS)}, s25 offen sc1')
    stamp('H', 'fpub', HST)
    a('s_cmp_ge_u32 s2, 64\ns_cbranch_scc1 L_Hend\ns_cmp_lg_u32 s3, 0\ns_cbranch_scc1 L_Hend')
    a.cand()
    a(f's_lshl_b32 s15, s4, 3\ns_add_u32 s15, s15, s5')
    a(f'v_and_b32 v12, 1, v0\nv_lshl_add_u32 v13, v12, 2, v3\nv_lshlrev_b32 v13, 1, v13')
    a(f's_lshl_b32 s9, s5, 4\ns_add_u32 s9, s9, {L_HB}\nv_add_u32 v15, s9, v13\nds_read_u16 v16, v15')
    R = Y + 4
    if m3t:
        a(f's_mul_i32 s9, s15, 7168\ns_add_u32 s9, s9, {M3}\ns_add_u32 s10, s9, 4096')
        loads = [f'buffer_load_dwordx4 v[{R+4*m}:{R+4*m+3}], v19, {srd(SWS)}, {"s9" if m < 4 else "s10"} offen offset:{(m & 3)*1024} sc1' for m in range(7)]
    else:
        a(f'v_lshrrev_b32 v14, 1, v0\nv_lshlrev_b32 v14, 11, v14\nv_lshl_add_u32 v14, v12, 4, v14\ns_lshl_b32 s9, s15, 5')
        for m in range(7): a(f's_add_u32 s{26+m}, s9, {M3 + m*65536}')
        loads = [f'buffer_load_dwordx4 v[{R+4*m}:{R+4*m+3}], v14, {srd(SWS)}, s{26+m} offen sc1' for m in range(7)]
    a('s_lshl_b32 s15, s15, 4')
    poll('p3', loads, 28, R)
    a('s_waitcnt vmcnt(0) lgkmcnt(0)')
    stamp('H', 'hop3', HST)
    for e in range(4): a(f'v_add_f32 v{R+e}, v{R+e}, v{R+4+e}\nv_add_f32 v{R+8+e}, v{R+8+e}, v{R+12+e}\nv_add_f32 v{R+16+e}, v{R+16+e}, v{R+20+e}')
    for e in range(4): a(f'v_add_f32 v{R+e}, v{R+e}, v{R+8+e}\nv_add_f32 v{R+16+e}, v{R+16+e}, v{R+24+e}')
    for e in range(4): a(f'v_add_f32 v{R+e}, v{R+e}, v{R+16+e}')
    a(f'v_permlane32_swap_b32 v{R}, v{R+2}\nv_permlane32_swap_b32 v{R+1}, v{R+3}\nv_add_f32 v{R}, v{R}, v{R+2}\nv_add_f32 v{R+1}, v{R+1}, v{R+3}')
    a(f'v_permlane16_swap_b32 v{R}, v{R+1}\nv_add_f32 v8, v{R}, v{R+1}')
    a('v_add_f32_dpp v8, v8, v8 row_ror:8 row_mask:0xf bank_mask:0xf\nv_add_f32_dpp v8, v8, v8 row_ror:4 row_mask:0xf bank_mask:0xf\nv_add_f32_dpp v8, v8, v8 quad_perm:[2,3,0,1] row_mask:0xf bank_mask:0xf')
    a('v_lshlrev_b32 v16, 16, v16'); rbf(8)
    a('v_add_f32 v8, v8, v16\nv_cvt_pk_bf16_f32 v8, v8, v8')
    a('s_mov_b32 exec_lo, 0x00030003\ns_mov_b32 exec_hi, 0x00030003')
    a(f'buffer_store_short v8, v13, {srd(SO)}, s15 offen')
    a(f's_cmp_lg_u32 s2, 0\ns_cbranch_scc1 L_noep\ns_mov_b64 exec, 1\nv_mov_b32 v9, s34\nv_mov_b32 v10, {EPOCH}\nbuffer_store_dword v9, v10, {srd(SWS)}, 0 offen sc1\nL_noep:')
    stamp('H', 'out', HST)
    a('L_Hend:')
    stamp_store(HST)
    a('L_end:')
    a('s_endpgm')

    head = HEADER + f'; Generated by gen/gen.py (hand-written generator); one persistent launch, 256 workgroups x 8 waves.\n; @launch grid=(256,1,1) block=(512,1,1) lds={LDS_BYTES}\n'
    pre = f'.amdgcn_target "amdgcn-amd-amdhsa--gfx950"\n.text\n.globl {KN}\n.p2align 8\n.type {KN},@function\n'
    post = f'''.section .rodata,"a"
.p2align 6
.amdhsa_kernel {KN}
  .amdhsa_next_free_vgpr 256
  .amdhsa_next_free_sgpr 96
  .amdhsa_accum_offset 256
  .amdhsa_group_segment_fixed_size 0
  .amdhsa_kernarg_size 96
  .amdhsa_user_sgpr_count 2
  .amdhsa_user_sgpr_kernarg_segment_ptr 1
  .amdhsa_system_sgpr_workgroup_id_x 1
  .amdhsa_float_denorm_mode_32 3
.end_amdhsa_kernel
'''
    if not warm:
        body = a.render(chosen=[])
        return head + pre + '\n'.join(body) + '\n' + post, nst
    saveL = list(a.L)
    a.L = [l.replace('@W0', 'L_warm_end').replace('@W1', 'L_warm_end').replace('@W2', 'L_warm_end') for l in saveL]
    syms = assemble_syms(pre + '\n'.join(a.render(None)) + '\n')
    pos = [syms[f'L_cand{n}'] for n in range(a.ncand)]
    end = syms['L_end']
    chosen = []; last = None
    for n in range(a.ncand):
        nxt = pos[n+1] if n + 1 < a.ncand else end
        if last is None or nxt - last > 860:
            chosen.append(n); last = pos[n]
    k = len(chosen)
    ent = [0, (k + 2) // 3, (2 * k + 2) // 3]
    a.L = [l.replace('@W0', f'L_pad{ent[0]}').replace('@W1', f'L_pad{ent[1]}').replace('@W2', f'L_pad{ent[2]}') for l in saveL]
    body = a.render(chosen)
    gaps = [pos[chosen[i+1]] - pos[chosen[i]] for i in range(k-1)] + [end - pos[chosen[-1]]]
    print('pads', k, 'first', pos[chosen[0]], 'gaps', gaps, 'code bytes', end, file=sys.stderr)
    return head + pre + '\n'.join(body) + '\n' + post, nst

if __name__ == '__main__':
    kw = eval('dict(' + (sys.argv[2] if len(sys.argv) > 2 else '') + ')')
    s, nst = gen(**kw)
    open(sys.argv[1], 'w').write(s)
    if nst: print(nst)
```

```python
import sys
from asmlib import Asm, assemble_syms
NAME = 'sequential_preLN__gqa_block_cached__glu_gated_geglu__decode'
KN = NAME + '_kernel'

QP   = 0x00000
LAM  = 0x10000
XC   = 0x18000
EPOCH = 0x19000
PF   = 0x1a000
M2   = 0x20000
M1   = 0x40000
M3   = 0x80000
MF   = 0x100000
STAMP = 0x8000000
L_WQ = 0
L_G  = 16384
L_U  = 24576 + 64
L_XN = 33792
L_Q  = 34816
L_MX = 35840
L_LS = 35904
L_FAST = 35968
L_EP = 36864
L_YW = 45568
L_HA = 46592
LDS_BYTES = 47104
SX, SK, SV, SWQ, SWO, SG, SU, SD, SO, SDBG, SWS = 40, 44, 48, 52, 56, 60, 64, 68, 72, 76, 80
def srd(b): return f's[{b}:{b+3}]'
LOG2E = 0x3fb8aa3b
SPIN = 1 << 16
TAGM = 0x3ff
FULL = 'row_mask:0xf bank_mask:0xf'

HEADER = open('cdna_kernels/' + NAME + '.s.ref').read().split('; Override launch')[0]

def gen(D=7, lead_ss=8, lead_sm=16, wf='b4', qdelay=7, pd=(0, 0, 0, 8), pdslow=8, local=True, pretouch=False, clrdelay=0, touch=True, lamdelay=64, early='12f', tlbwarm=False,
        stamps=False, warm=True, nslots=40, dbgwg=0, dbg_now=False, dbg_notail=False):
    a = Asm()
    nst = {}
    SST, HST = 88, 200
    def stamp(role, name, vreg):
        if not stamps: return
        if stamps == 'lite' and name not in ('pub', 'out'): return
        idx = nst.setdefault(role, []); idx.append(name)
        a(f's_memrealtime s[90:91]\ns_waitcnt lgkmcnt(0)\nv_writelane_b32 v{vreg}, s90, {len(idx)-1}')
    def stamp_store(vreg):
        if not stamps: return
        if stamps == 'dbg':
            if vreg == SST: return
            a(f's_cmp_lg_u32 s2, {dbgwg}\ns_cbranch_scc1 L_nodbg\ns_cmp_lg_u32 s3, 0\ns_cbranch_scc1 L_nodbg')
            a(f's_mov_b64 exec, -1\nv_subrev_u32 v{vreg}, s94, v{vreg}\nv_lshlrev_b32 v{vreg+1}, 2, v0\nbuffer_store_dword v{vreg}, v{vreg+1}, {srd(SDBG)}, 0 offen\nL_nodbg:')
            return
        a(f's_lshl_b32 s92, s2, 3\ns_add_u32 s92, s92, s3\ns_lshl_b32 s92, s92, 8\ns_add_u32 s92, s92, {STAMP}')
        a(f's_mov_b64 exec, -1\nv_lshlrev_b32 v{vreg+1}, 2, v0\nbuffer_store_dword v{vreg}, v{vreg+1}, {srd(SWS)}, s92 offen')
    def crossg(r, t, op='add'):
        a(f'v_mov_b32 v{t}, v{r}\nv_permlane16_swap_b32 v{t}, v{r}\nv_{op}_f32 v{r}, v{r}, v{t}')
        a(f'v_mov_b32 v{t}, v{r}\nv_permlane32_swap_b32 v{t}, v{r}\nv_{op}_f32 v{r}, v{r}, v{t}')
    def allreduce(r, t, op='add'):
        for sh in (8, 4, 2, 1): a(f'v_{op}_f32_dpp v{r}, v{r}, v{r} row_ror:{sh} {FULL}')
        crossg(r, t, op)
    def rbf(r):
        a(f'v_cvt_pk_bf16_f32 v{r}, v{r}, v{r}\nv_lshlrev_b32 v{r}, 16, v{r}')
    def saddr(dst, terms, const=0, tmp='s10'):
        first = True
        for reg, sh in terms:
            t = dst if first else tmp
            a(f's_lshl_b32 {t}, {reg}, {sh}' if sh else f's_mov_b32 {t}, {reg}')
            if not first: a(f's_add_u32 {dst}, {dst}, {tmp}')
            first = False
        if const: a(f's_add_u32 {dst}, {dst}, {const}')
    def tags():
        a('s_mul_i32 s34, s33, 1664525\ns_add_u32 s34, s34, 1013904223\ns_lshr_b32 s35, s34, 10\ns_lshr_b32 s36, s34, 20\ns_lshr_b32 s37, s34, 22')
    def lanetag(dst, idx):
        a(f'v_mul_u32_u24 v{dst}, 10, v{idx}\nv_min_u32 v{dst}, 22, v{dst}\nv_lshrrev_b32_e64 v{dst}, v{dst}, s34')
    def dual_store(ins, name):
        if not local:
            a(ins + ' sc1'); return
        a(f's_cmp_lg_u32 s39, 0\ns_cbranch_scc1 L_{name}_f\n{ins} sc1\ns_branch L_{name}_e\nL_{name}_f:\n{ins}\nL_{name}_e:')

    a(f'{KN}:')
    a('s_cmp_ge_u32 s2, 256\ns_cbranch_scc1 L_end')
    if stamps: a('s_memrealtime s[94:95]')
    for b, off in ((SK, 8), (SX, 0), (SWQ, 24), (SWS, 88), (SV, 16), (SDBG, 80), (SWO, 32), (SG, 48), (SU, 56), (SD, 64), (SO, 72)):
        a(f's_load_dwordx2 s[{b}:{b+1}], s[0:1], {off}')
    a('v_lshrrev_b32 v1, 6, v0\nv_and_b32 v0, 63, v0')
    a('v_readfirstlane_b32 s3, v1')
    for b, n in ((SX, 1024), (SK, 64 << 20), (SV, 64 << 20), (SWQ, 4 << 20), (SWO, 4 << 20), (SG, 512 * 3584), (SU, 512 * 3584), (SD, 1792 * 1024), (SO, 1024), (SDBG, 256), (SWS, 268435456)):
        a(f's_mov_b32 s{b+2}, {n}\ns_mov_b32 s{b+3}, 0x20000')
    a('s_and_b32 s4, s2, 7\ns_lshr_b32 s5, s2, 3')
    a('s_and_b32 s6, s3, 3')
    a('s_cmp_lt_u32 s3, 4\ns_cbranch_scc1 L_H')
    RING = 96
    def slot(k): return RING + 4 * k
    a('v_and_b32 v1, 3, v0\nv_lshlrev_b32 v1, 8, v1\nv_lshrrev_b32 v2, 2, v0\nv_lshl_add_u32 v1, v2, 4, v1')
    a('v_lshlrev_b32 v2, 4, v0')
    saddr('s7', (('s4', 23), ('s5', 18), ('s6', 12)), tmp='s8')
    a('s_mov_b32 s8, s7')
    if stamps: a(f'v_mov_b32 v{SST}, 0')
    a('s_waitcnt lgkmcnt(0)')
    if stamps: a(f'v_writelane_b32 v{SST}, s94, 0'); nst['S'] = ['start']
    st = dict(I=0, free=list(range(nslots)), where={})
    def issue(pace=True):
        n = st['I']
        fl = st['free']
        k = next(x for x in fl if n < 64 or x >= 8)
        fl.remove(k); st['where'][n] = k
        if pace and n >= D: a(f's_waitcnt vmcnt({D-1})')
        if n == 64: a('s_mov_b32 s8, s7')
        a(f'buffer_load_dwordx4 v[{slot(k)}:{slot(k)+3}], {"v1" if n < 64 else "v2"}, {srd(SK if n < 64 else SV)}, s8 offen offset:{(n & 3) * 1024} nt')
        if n & 3 == 3 and n != 63 and n != 127: a('s_add_u32 s8, s8, 0x4000')
        st['I'] = n + 1
    def can_issue():
        n = st['I']
        return n < 128 and any(n < 64 or x >= 8 for x in st['free'])
    for n in range(nslots): issue()
    stamp('S', 'pref', SST)
    a('s_barrier')
    a('s_branch L_S')

    a('L_H:')
    if stamps: a(f'v_mov_b32 v{HST}, 0')
    a('s_and_b32 s17, s5, 7\ns_lshr_b32 s18, s5, 3')
    a('s_cmp_lg_u32 s3, 0\ns_cbranch_scc1 L_Hwarm')
    a('s_setprio 2')
    a('v_lshlrev_b32 v2, 4, v0')
    a('v_lshrrev_b32 v1, 3, v0\nv_lshlrev_b32 v1, 13, v1\nv_and_b32 v3, 7, v0\nv_lshl_add_u32 v1, v3, 4, v1')
    saddr('s8', (('s18', 20), ('s4', 10), ('s17', 7)))
    a(f's_mov_b32 m0, {L_WQ}')
    a('s_waitcnt lgkmcnt(0)')
    if stamps: a(f'v_writelane_b32 v{HST}, s94, 0'); nst['H'] = ['start']
    a(f's_load_dword s33, s[{SWS}:{SWS+1}], {EPOCH}')
    a(f'buffer_load_dwordx4 v[4:7], v2, {srd(SX)}, 0 offen')
    for m in range(16):
        a(f'buffer_load_dwordx4 v1, {srd(SWQ)}, s8 offen nt lds')
        if m < 15: a(f's_add_u32 m0, m0, 1024\ns_add_u32 s8, s8, 0x10000')
    a.cand()
    a('s_mov_b32 s12, 0xffff0000')
    a('s_waitcnt vmcnt(16)')
    for d in range(4): a(f'v_lshlrev_b32 v{8+2*d}, 16, v{4+d}\nv_and_b32 v{9+2*d}, s12, v{4+d}')
    a('v_add_f32 v16, v8, v9\nv_add_f32 v17, v10, v11\nv_add_f32 v18, v12, v13\nv_add_f32 v19, v14, v15\nv_add_f32 v16, v16, v17\nv_add_f32 v18, v18, v19\nv_add_f32 v16, v16, v18')
    allreduce(16, 17)
    a('v_mul_f32 v16, 0x3b000000, v16')
    a('v_sub_f32 v17, v8, v16\nv_mul_f32 v18, v17, v17')
    for e in range(1, 8): a(f'v_sub_f32 v17, v{8+e}, v16\nv_fmac_f32 v18, v17, v17')
    allreduce(18, 17)
    a('v_mul_f32 v18, 0x3b000000, v18'); rbf(18)
    a('v_add_f32 v18, 0x3727c5ac, v18'); rbf(18)
    a('v_sqrt_f32 v18, v18'); rbf(18)
    a('v_rcp_f32 v18, v18'); rbf(16)
    for e in range(8): a(f'v_sub_f32 v{8+e}, v{8+e}, v16')
    for d in range(4): a(f'v_cvt_pk_bf16_f32 v{4+d}, v{8+2*d}, v{9+2*d}')
    for d in range(4): a(f'v_lshlrev_b32 v{8+2*d}, 16, v{4+d}\nv_and_b32 v{9+2*d}, s12, v{4+d}')
    for e in range(8): a(f'v_mul_f32 v{8+e}, v{8+e}, v18')
    for d in range(4): a(f'v_cvt_pk_bf16_f32 v{4+d}, v{8+2*d}, v{9+2*d}')
    a(f'ds_write_b128 v2, v[4:7] offset:{L_XN}')
    a.cand()
    a('v_lshrrev_b32 v3, 4, v0\nv_lshlrev_b32 v16, 4, v3\ns_lshl_b32 s9, s18, 8\nv_add_u32 v16, s9, v16')
    a('v_lshlrev_b32 v17, 10, v3\nv_bfe_u32 v18, v0, 2, 2\nv_lshl_add_u32 v17, v18, 7, v17\nv_and_b32 v18, 3, v0\nv_lshl_add_u32 v17, v18, 3, v17')
    a('s_waitcnt lgkmcnt(0)')
    for s_ in range(4): a(f'ds_read_b128 v[{64+4*s_}:{67+4*s_}], v16 offset:{L_XN + s_*64}')
    tags()
    lanetag(19, 18)
    a(f'v_mov_b32 v20, {TAGM}')
    a('s_waitcnt vmcnt(0) lgkmcnt(0)')
    stamp('H', 'wq', HST)
    a.cand()
    order = [(s_, cg) for s_ in range(4) for cg in range(4)]
    def qmfma(q):
        s_, cg = order[q]
        a(f'v_mfma_f32_16x16x32_bf16 v[{24+4*cg}:{27+4*cg}], v[{64+4*s_}:{67+4*s_}], v[{128+4*q}:{131+4*q}], {"0" if s_ == 0 else f"v[{24+4*cg}:{27+4*cg}]"}')
    for q, (s_, cg) in enumerate(order):
        for eh in range(2): a(f'ds_read_b64_tr_b16 v[{128+4*q+2*eh}:{129+4*q+2*eh}], v17 offset:{L_WQ + s_*4096 + eh*512 + cg*32}')
        if q >= 4:
            a(f's_waitcnt lgkmcnt(8)'); qmfma(q - 4)
    for q in range(12, 16):
        a(f's_waitcnt lgkmcnt({2*(15-q)})'); qmfma(q)
    a('v_lshlrev_b32 v3, 2, v0')
    saddr('s9', (('s4', 13), ('s18', 11), ('s17', 8)), QP)
    saddr('s16', (('s4', 13),), QP); a('s_add_u32 s15, s16, 4096')
    for cg in range(1, 4): a(f'v_mov_b32_dpp v24, v{24+4*cg} quad_perm:[0,1,2,3] row_mask:{1 << cg} bank_mask:0xf')
    a('v_bfi_b32 v24, v20, v19, v24')
    a(f'buffer_store_dword v24, v3, {srd(SWS)}, s9 offen sc1')
    a('s_mov_b32 s14, 0')
    stamp('H', 'qpub', HST)
    a.cand()
    def tagcheck(base, n, tmp):
        for k in range(n):
            a(f's_waitcnt vmcnt({n-1-k})')
            for e in range(4):
                if k == 0: a(f'v_xor_b32 v{tmp+e}, s{34+e}, v{base+e}')
                else: a(f'v_bitop3_b32 v{tmp+e}, v{tmp+e}, v{base+4*k+e}, s{34+e} bitop3:0xf6')
        a(f'v_or3_b32 v{tmp}, v{tmp}, v{tmp+1}, v{tmp+2}\nv_bitop3_b32 v{tmp}, v{tmp}, v{tmp+3}, v{VM} bitop3:0xa8\nv_cmp_ne_u32 vcc, 0, v{tmp}')
    VM = 20
    a('L_qpoll:')
    if qdelay: a(f's_sleep {min(127, 8 * qdelay)}')
    for k in range(8):
        a(f'buffer_load_dwordx4 v[{64+4*k}:{67+4*k}], v2, {srd(SWS)}, {"s16" if k < 4 else "s15"} offen offset:{(k & 3) * 1024} sc1')
    a(f's_add_u32 s14, s14, 1\ns_cmp_gt_u32 s14, {SPIN}\ns_cbranch_scc1 L_qdone')
    tagcheck(64, 8, 8)
    a('s_and_b64 exec, exec, vcc\ns_cbranch_execnz L_qpoll')
    a('L_qdone:')
    a('s_mov_b64 exec, -1\ns_waitcnt vmcnt(0)')
    a('v_lshlrev_b32 v3, 3, v0')
    for e in range(8): a(f'v_add_f32 v{64+e}, v{64+e}, v{72+e}')
    for e in range(8): a(f'v_add_f32 v{80+e}, v{80+e}, v{88+e}')
    for e in range(8): a(f'v_add_f32 v{64+e}, v{64+e}, v{80+e}')
    for d in range(4): a(f'v_cvt_pk_bf16_f32 v{4+d}, v{64+2*d}, v{65+2*d}')
    a(f'ds_write2st64_b64 v3, v[4:5], v[6:7] offset0:{L_Q//512} offset1:{L_Q//512+1}')
    a('s_waitcnt lgkmcnt(0)')
    stamp('H', 'qgot', HST)
    a('s_setprio 0')
    a('s_branch L_Hb1')
    a('L_Hwarm:')
    a('v_mov_b32 v8, -1\nv_mov_b32 v9, -1\nv_mov_b32 v10, -1\nv_mov_b32 v11, -1\nv_lshlrev_b32 v2, 4, v0\nv_lshrrev_b32 v3, 4, v0\nv_and_b32 v4, 15, v0\nv_lshlrev_b32 v4, 4, v4')
    a('s_lshl_b32 s29, s4, 2\ns_add_u32 s29, s29, s18')
    a('s_waitcnt lgkmcnt(0)')
    if stamps: a(f'v_writelane_b32 v{HST}, s94, 0')
    for k in range(clrdelay): a('s_sleep 64')
    a(f's_load_dword s33, s[{SWS}:{SWS+1}], {EPOCH}')
    a('s_cmp_lg_u32 s3, 1\ns_cbranch_scc1 L_clre')
    a('v_lshl_add_u32 v12, v3, 13, v4\nv_lshlrev_b32 v14, 7, v0')
    saddr('s9', (('s4', 15), ('s5', 8)), M1)
    a(f'buffer_store_dwordx4 v[8:11], v12, {srd(SWS)}, s9 offen sc1')
    saddr('s9', (('s4', 9), ('s5', 2)), LAM)
    a(f's_mov_b64 exec, 15\nbuffer_store_dword v8, v14, {srd(SWS)}, s9 offen sc1\ns_mov_b64 exec, -1')
    a('L_clre:')
    if tlbwarm:
        a('s_cmp_lg_u32 s3, 2\ns_cbranch_scc1 L_tw\ns_mov_b64 exec, 1\nv_mov_b32 v12, 0')
        saddr('s9', (('s4', 23), ('s5', 18)))
        a(f'buffer_load_dword v13, v12, {srd(SV)}, s9 offen nt')
        saddr('s9', (('s29', 17), ('s17', 7)))
        a(f'buffer_load_dword v13, v12, {srd(SWO)}, s9 offen nt')
        a(f's_mul_i32 s9, s17, {64*3584}\ns_lshl_b32 s10, s29, 7\ns_add_u32 s9, s9, s10')
        a(f'buffer_load_dword v13, v12, {srd(SG)}, s9 offen nt\nbuffer_load_dword v13, v12, {srd(SU)}, s9 offen nt')
        saddr('s9', (('s29', 16), ('s17', 13)))
        a(f'buffer_load_dword v13, v12, {srd(SD)}, s9 offen nt\nbuffer_load_dword v13, v12, {srd(SO)}, 0 offen nt')
        a('s_mov_b64 exec, -1\nL_tw:')
    if warm:
        a('s_mov_b64 exec, 0')
        a('s_cmp_eq_u32 s3, 1\ns_cbranch_scc1 @W0\ns_cmp_eq_u32 s3, 2\ns_cbranch_scc1 @W1\ns_branch @W2')
        a('L_warm_end:')
        a('s_mov_b64 exec, -1')
        if stamps is True: a(f's_memrealtime s[90:91]\ns_waitcnt lgkmcnt(0)\nv_writelane_b32 v{HST}, s90, 1')
    a('s_waitcnt vmcnt(0) lgkmcnt(0)')
    tags()
    a('L_Hb1:')
    a('s_barrier')
    a('s_branch L_Hmid')

    a('L_S:')
    a.cand()
    Q, P, ACC = 20, 24, 56
    a(f'ds_read_b128 v[{Q}:{Q+3}], v1 offset:{L_Q}')
    a('s_mov_b32 s12, 0xffff0000\ns_mov_b32 s13, 0x3db504f3\nv_mov_b32 v3, 0xff800000')
    a(f'v_lshrrev_b32 v14, 4, v0')
    a('s_waitcnt lgkmcnt(0)')
    stamp('S', 'q', SST)
    lead = nslots
    for u in range(16):
        a.cand()
        ks = [slot(st['where'][4*u+e]) for e in range(4)]
        T = [ACC + 4*e for e in range(4)]
        a(f's_waitcnt vmcnt({st["I"] - (4*u+4)})')
        for e in range(4): a(f'v_mfma_f32_4x4x4_16b_bf16 v[{T[e]}:{T[e]+3}], v[{ks[e]}:{ks[e]+1}], v[{Q}:{Q+1}], 0')
        for e in range(4): a(f'v_mfma_f32_4x4x4_16b_bf16 v[{T[e]}:{T[e]+3}], v[{ks[e]+2}:{ks[e]+3}], v[{Q+2}:{Q+3}], v[{T[e]}:{T[e]+3}]')
        for e in range(4): st['free'].append(st['where'][4*u+e])
        C = 4*u + 4
        lead = max(lead_ss, lead - 2)
        tgt = C + lead if u < 15 else C + lead_sm
        while st['I'] < tgt and can_issue(): issue(pace=(u < 15))
        for e in range(4): a(f'v_permlane32_swap_b32 v{T[e]}, v{T[e]+2}\nv_permlane32_swap_b32 v{T[e]+1}, v{T[e]+3}')
        for e in range(4): a(f'v_add_f32 v{T[e]}, v{T[e]}, v{T[e]+2}\nv_add_f32 v{T[e]+1}, v{T[e]+1}, v{T[e]+3}')
        for e in range(4): a(f'v_permlane16_swap_b32 v{T[e]}, v{T[e]+1}')
        for e in range(4): a(f'v_add_f32 v{T[e]}, v{T[e]}, v{T[e]+1}')
        for e in range(4): a(f'v_add_f32_dpp v{T[e]+1}, v{T[e]}, v{T[e]} row_ror:4 {FULL}')
        for e in range(4): a(f'v_add_f32_dpp v{T[e]}, v{T[e]+1}, v{T[e]+1} row_ror:8 {FULL}')
        a(f'v_cvt_pk_bf16_f32 v5, v{T[0]}, v{T[1]}\nv_cvt_pk_bf16_f32 v6, v{T[2]}, v{T[3]}')
        a('v_lshlrev_b32 v7, 16, v5\nv_and_b32 v8, s12, v5\nv_lshlrev_b32 v9, 16, v6\nv_and_b32 v10, s12, v6')
        a('v_mul_f32 v7, s13, v7\nv_mul_f32 v8, s13, v8\nv_mul_f32 v9, s13, v9\nv_mul_f32 v10, s13, v10')
        a(f'v_cvt_pk_bf16_f32 v{P+2*u}, v7, v8\nv_cvt_pk_bf16_f32 v{P+2*u+1}, v9, v10')
        a('v_max3_f32 v3, v3, v7, v8\nv_max3_f32 v3, v3, v9, v10')
    stamp('S', 'kdone', SST)
    a.cand()
    crossg(3, 5, 'max')
    a(f'v_and_b32 v5, 3, v0\nv_lshlrev_b32 v5, 4, v5\ns_lshl_b32 s9, s6, 2\nv_add_u32 v6, s9, v5')
    a(f's_mov_b64 exec, 15\nds_write_b32 v6, v3 offset:{L_MX}\ns_mov_b64 exec, -1\ns_waitcnt lgkmcnt(0)')
    a('s_barrier')
    a(f'ds_read_b128 v[8:11], v5 offset:{L_MX}')
    a(f's_mov_b32 s14, {LOG2E}\nv_mov_b32 v4, 0')
    a('s_waitcnt lgkmcnt(0)')
    a('v_max3_f32 v3, v8, v9, v10\nv_max_f32 v3, v3, v11'); rbf(3)
    a('v_mul_f32 v3, s14, v3')
    for r in range(0, 32, 2):
        if r % 8 == 0: a.cand()
        a(f'v_lshlrev_b32 v7, 16, v{P+r}\nv_and_b32 v8, s12, v{P+r}\nv_lshlrev_b32 v9, 16, v{P+r+1}\nv_and_b32 v10, s12, v{P+r+1}')
        for t in range(7, 11): a(f'v_fma_f32 v{t}, v{t}, s14, -v3')
        for t in range(7, 11): a(f'v_exp_f32 v{t}, v{t}')
        a(f'v_cvt_pk_bf16_f32 v{P+r}, v7, v8\nv_add_f32 v7, v7, v8\nv_cvt_pk_bf16_f32 v{P+r+1}, v9, v10\nv_add_f32 v9, v9, v10\nv_add_f32 v4, v4, v7\nv_add_f32 v4, v4, v9')
    crossg(4, 7, 'add')
    a(f's_mov_b64 exec, 15\nds_write_b32 v6, v4 offset:{L_LS}\ns_mov_b64 exec, -1\ns_waitcnt lgkmcnt(0)')
    a('s_barrier')
    stamp('S', 'smdone', SST)
    a(f's_lshl_b32 s9, s6, 4\nv_mov_b32 v13, s9\nds_read_b128 v[8:11], v13 offset:{L_LS}')
    a(f's_mul_i32 s9, s6, 2176\nv_lshlrev_b32 v15, 6, v14\nv_add_u32 v15, v15, v5\nv_add_u32 v15, s9, v15')
    a(f'v_and_b32 v17, 3, v0\nv_mul_u32_u24 v16, 544, v17\nv_lshl_add_u32 v16, v14, 6, v16\nv_bfe_u32 v17, v0, 2, 2\nv_lshl_add_u32 v16, v17, 2, v16\nv_add_u32 v16, v13, v16')
    a(f'v_lshlrev_b32 v17, 2, v0')
    saddr('s15', (('s4', 15), ('s5', 8), ('s6', 13)), M1)
    a('s_mov_b32 s16, 0x05040100\ns_mov_b32 s17, 0x07060302')
    a('s_waitcnt lgkmcnt(0)')
    a('v_add_f32 v8, v8, v9\nv_add_f32 v10, v10, v11\nv_add_f32 v8, v8, v10\nv_rcp_f32 v18, v8')
    AT = RING
    b4_done = False
    for G in range(8):
        a.cand()
        for p in range(4):
            n = 64 + 8*G + 2*p
            k0, k1 = slot(st['where'][n]), slot(st['where'][n+1])
            a(f's_waitcnt vmcnt({st["I"] - (n+2)})')
            for d in range(4):
                a(f'v_perm_b32 v{AT+8*d+p}, v{k1+d}, v{k0+d}, s16\nv_perm_b32 v{AT+8*d+4+p}, v{k1+d}, v{k0+d}, s17')
            st['free'] += [st['where'][n], st['where'][n+1]]
            C = n + 2
            while st['I'] < C + lead_ss and can_issue(): issue(pace=False)
            if st['I'] == 128 and not b4_done:
                a('s_barrier'); b4_done = True
                a(f'v_mov_b32 v12, 0\nds_read_b32 v12, v12 offset:{L_FAST}\ns_waitcnt lgkmcnt(0)\nv_readfirstlane_b32 s39, v12')
                stamp('S', 'lastiss', SST)
        if G == 7: stamp('S', 'lastdata', SST)
        for dd in range(8):
            a(f'v_mfma_f32_16x16x32_bf16 v[{ACC+4*dd}:{ACC+4*dd+3}], v[{AT+4*dd}:{AT+4*dd+3}], v[{P+4*G}:{P+4*G+3}], {"0" if G == 0 else f"v[{ACC+4*dd}:{ACC+4*dd+3}]"}')
    a('s_mov_b32 exec_lo, 0x000f000f\ns_mov_b32 exec_hi, 0x000f000f')
    for dd in range(8): a(f'ds_write_b128 v15, v[{ACC+4*dd}:{ACC+4*dd+3}] offset:{L_EP + dd*272}')
    a('s_mov_b64 exec, -1\ns_waitcnt lgkmcnt(0)')
    a('s_barrier')
    for w in range(4): a(f'ds_read_b32 v{4+2*w}, v16 offset:{L_EP + w*2176}\nds_read_b32 v{5+2*w}, v16 offset:{L_EP + w*2176 + 272}')
    a('s_waitcnt lgkmcnt(4)\nv_add_f32 v4, v4, v6\nv_add_f32 v5, v5, v7\ns_waitcnt lgkmcnt(0)\nv_add_f32 v8, v8, v10\nv_add_f32 v9, v9, v11')
    a('v_add_f32 v4, v4, v8\nv_add_f32 v5, v5, v9\nv_mul_f32 v4, v4, v18\nv_mul_f32 v5, v5, v18\nv_cvt_pk_bf16_f32 v4, v4, v5\nv_min_u32 v4, -2, v4')
    dual_store(f'buffer_store_dword v4, v17, {srd(SWS)}, s15 offen', 'm1')
    stamp('S', 'pub', SST)
    stamp_store(SST)
    a('s_endpgm')

    a('L_Hmid:')
    a.cand()
    W8, WOB, GUB, WDR, WDF, A1, DW, Y = 28, 44, 60, 76, 84, 100, 132, 164
    VM = 17
    a('v_lshrrev_b32 v3, 4, v0\nv_and_b32 v4, 15, v0\nv_lshlrev_b32 v5, 4, v3\nv_and_b32 v6, 7, v0')
    a('s_mov_b32 s12, 0xffff0000\ns_lshl_b32 s29, s4, 2\ns_add_u32 s29, s29, s18')
    a(f'v_lshlrev_b32 v7, 1, v0\ns_lshl_b32 s9, s17, 7\nbuffer_load_ushort v8, v7, {srd(SX)}, s9 offen')
    a('v_lshlrev_b32 v25, 2, v0\nv_lshlrev_b32 v18, 3, v0\nv_lshlrev_b32 v19, 4, v0')
    a('v_lshlrev_b32 v20, 8, v4\nv_add_u32 v20, v20, v5\nv_add_u32 v7, 0x1000, v20')
    saddr('s20', (('s29', 13), ('s6', 6)), M1)
    saddr('s21', (('s17', 13), ('s29', 8)), M2)
    saddr('s22', (('s17', 13), ('s6', 11)), M2)
    a(f'v_lshlrev_b32 v23, 4, v4\nv_lshl_add_u32 v23, v3, 2, v23')
    a('v_and_b32 v12, 3, v0\nv_cmp_eq_u32 vcc, 1, v12\nv_lshlrev_b32 v21, 5, v3\nv_add_u32 v13, 0x100, v21\nv_cndmask_b32 v24, v21, v13, vcc')
    lanetag(16, 12)
    a(f'v_and_b32 v12, 1, v0\nv_lshlrev_b32 v12, 1, v12'); lanetag(1, 12); a('v_add_u32 v12, 1, v12'); lanetag(2, 12)
    a(f'v_mov_b32 v{VM}, {TAGM}')
    a(f's_lshl_b32 s9, s6, 8\ns_add_u32 s9, s9, {L_YW}\nv_add_u32 v26, s9, v25')
    a(f'v_lshlrev_b32 v27, 4, v4\nv_lshl_add_u32 v27, v3, 11, v27')
    saddr('s23', (('s29', 14), ('s17', 8), ('s6', 12)), MF)
    saddr('s24', (('s29', 14), ('s17', 11)), MF)
    saddr('s25', (('s4', 16), ('s5', 11), ('s6', 9)), M3)
    saddr('s27', (('s29', 7),), LAM)
    a('s_lshl_b32 s9, s17, 1\ns_sub_u32 s28, s4, s9\ns_add_u32 s28, s28, 14\ns_mul_i32 s9, s28, 37\ns_lshr_b32 s9, s9, 8\ns_mul_i32 s9, s9, 7\ns_sub_u32 s28, s28, s9\ns_lshl_b32 s28, s28, 2\ns_add_u32 s28, s28, s18')
    a(f's_lshl_b32 s15, s17, 3\ns_add_u32 s15, s15, s28')
    a(f'v_and_b32 v12, 1, v0\nv_lshrrev_b32 v36, 1, v0\nv_lshlrev_b32 v36, 11, v36\nv_lshl_add_u32 v36, v12, 4, v36')
    saddr('s84', (('s15', 5), ('s6', 17)), M3)
    a('s_add_u32 s85, s84, 0x10000')
    a(f'v_lshl_add_u32 v37, v12, 2, v3\ns_lshl_b32 s9, s28, 5\nv_lshl_add_u32 v38, v37, 2, s9\nv_lshlrev_b32 v37, 1, v37\ns_lshl_b32 s15, s15, 4')
    a('s_getreg_b32 s38, hwreg(HW_REG_XCC_ID)\ns_and_b32 s38, s38, 15\ns_add_u32 s38, s38, s34')
    a.cand()
    a('s_cmp_lg_u32 s3, 0\ns_cbranch_scc1 L_xdone')
    saddr('s9', (('s4', 7), ('s5', 2)), XC)
    saddr('s11', (('s4', 9), ('s5', 2)), LAM)
    a(f's_mov_b64 exec, 1\nv_mov_b32 v10, s38\nv_mov_b32 v9, 0\nbuffer_store_dword v10, v9, {srd(SWS)}, s9 offen sc1\ns_mov_b64 exec, -1')
    a(f's_waitcnt vmcnt(0)\nv_lshlrev_b32 v8, 16, v8\nv_mov_b32 v9, 1.0\nds_write2st64_b32 v25, v8, v9 offset0:{L_HA//256} offset1:{L_HA//256+1}\ns_waitcnt lgkmcnt(0)')
    a('L_xdone:')
    def wo_issue():
        if dbg_now: return
        a('v_lshrrev_b32 v12, 3, v0\nv_lshlrev_b32 v12, 10, v12\nv_lshl_add_u32 v12, v6, 4, v12')
        saddr('s9', (('s29', 17), ('s6', 15), ('s17', 7)))
        a(f's_lshl_b32 s10, s6, 12\ns_add_u32 m0, s10, {L_WQ}')
        for m in range(4):
            a(f'buffer_load_dwordx4 v12, {srd(SWO)}, s9 offen nt lds')
            if m < 3: a('s_add_u32 m0, m0, 1024\ns_add_u32 s9, s9, 0x2000')
    def gu_addr():
        a(f'v_lshrrev_b32 v14, 3, v0\nv_mul_u32_u24 v14, 0xe00, v14\nv_lshl_add_u32 v14, v6, 4, v14')
        a(f's_mul_i32 s30, s17, {64*3584}\ns_mul_i32 s10, s6, {16*3584}\ns_add_u32 s30, s30, s10\ns_lshl_b32 s10, s29, 7\ns_add_u32 s30, s30, s10')
        a(f's_cmp_eq_u32 s4, 7\ns_cselect_b32 s30, 0x1000000, s30\ns_add_u32 s31, s30, {8*3584}')
        saddr('s32', (('s29', 16), ('s17', 13), ('s6', 8)))
        a('s_add_u32 s19, s32, 4096')
    def gu_issue():
        if dbg_now: return
        a(f's_lshl_b32 s13, s6, 11\ns_add_u32 m0, s13, {L_G}')
        a(f'buffer_load_dwordx4 v14, {srd(SG)}, s30 offen nt lds\ns_add_u32 m0, m0, 1024')
        a(f'buffer_load_dwordx4 v14, {srd(SG)}, s31 offen nt lds\ns_add_u32 m0, s13, {L_U}')
        a(f'buffer_load_dwordx4 v14, {srd(SU)}, s30 offen nt lds\ns_add_u32 m0, m0, 1024')
        a(f'buffer_load_dwordx4 v14, {srd(SU)}, s31 offen nt lds')
    def dn_issue():
        if dbg_now: return
        for k in range(8): a(f'buffer_load_dword v{WDR+k}, v25, {srd(SD)}, {"s32" if k < 4 else "s19"} offen offset:{(k & 3) * 1024} nt')
    def wo_read():
        for cg in range(4):
            for eh in range(2): a(f'ds_read_b64_tr_b16 v[{WOB+4*cg+2*eh}:{WOB+4*cg+2*eh+1}], v22 offset:{L_WQ + eh*512 + cg*32}')
    def gu_read():
        for s_ in range(2):
            for sb in range(2):
                for eh in range(2): a(f'ds_read_b64_tr_b16 v[{GUB+8*sb+4*s_+2*eh}:{GUB+8*sb+4*s_+2*eh+1}], v15 offset:{L_G + s_*4096 + eh*512 + sb*16}')
    def dn_unpack():
        for k in range(8): a(f'v_lshlrev_b32 v{WDF+2*k}, 16, v{WDR+k}\nv_and_b32 v{WDF+2*k+1}, s12, v{WDR+k}')
    gu_addr()
    a('v_lshlrev_b32 v15, 10, v3\nv_bfe_u32 v13, v0, 2, 2\nv_lshl_add_u32 v15, v13, 7, v15\nv_and_b32 v12, 3, v0\nv_lshl_add_u32 v22, v12, 3, v15\ns_lshl_b32 s9, s6, 12\nv_add_u32 v22, s9, v22')
    a(f'v_and_b32 v12, 1, v0\nv_lshl_add_u32 v15, v12, 3, v15\nv_bfe_u32 v12, v0, 1, 1\nv_mul_u32_u24 v12, {L_U - L_G}, v12\nv_add_u32 v15, v15, v12\ns_lshl_b32 s9, s6, 5\nv_add_u32 v15, s9, v15')
    a('s_barrier')
    a('s_barrier')
    a.cand()
    if touch:
        a(f'buffer_load_dwordx2 v[{Y}:{Y+1}], v18, {srd(SWS)}, s25 offen sc1')
        a(f's_cmp_lg_u32 s3, 1\ns_cbranch_scc1 L_not2\nbuffer_load_dword v{Y+4}, v25, {srd(SWS)}, s21 offen sc1\nL_not2:')
    if wf == 'mid': gu_issue(); dn_issue()
    saddr('s9', (('s4', 7),), XC)
    a('s_mov_b32 s14, 0\ns_mov_b32 exec_hi, 0')
    a('L_xpoll:')
    a(f'buffer_load_dword v8, v25, {srd(SWS)}, s9 offen sc1')
    a(f's_add_u32 s14, s14, 1\ns_cmp_gt_u32 s14, {SPIN}\ns_waitcnt vmcnt(0)\ns_cbranch_scc1 L_xout')
    a('v_subrev_u32 v9, s34, v8\nv_cmp_lt_u32 vcc, 15, v9\ns_cbranch_vccz L_xout\ns_sleep 16\ns_branch L_xpoll')
    a('L_xout:')
    a(f'v_cmp_ne_u32 vcc, s38, v8\ns_cmp_eq_u64 vcc, 0\ns_cselect_b32 s39, 1, 0\ns_mov_b64 exec, -1')
    a('s_cmp_lg_u32 s3, 0\ns_cbranch_scc1 L_nolam')
    a(f'v_and_b32 v12, 3, v0\nv_lshlrev_b32 v12, 4, v12\nds_read_b128 v[8:11], v12 offset:{L_MX}\nds_read_b128 v[{Y}:{Y+3}], v12 offset:{L_LS}\ns_mov_b32 s14, {LOG2E}\ns_waitcnt lgkmcnt(0)')
    a('v_max3_f32 v8, v8, v9, v10\nv_max_f32 v8, v8, v11'); rbf(8)
    a(f'v_add_f32 v9, v{Y}, v{Y+1}\nv_add_f32 v10, v{Y+2}, v{Y+3}\nv_add_f32 v9, v9, v10\nv_log_f32 v9, v9\nv_mul_f32 v8, s14, v8\nv_add_f32 v8, v8, v9\nv_min_u32 v8, -2, v8')
    a(f'v_lshlrev_b32 v12, 7, v0\nv_mov_b32 v9, s39\nv_mov_b32 v10, 0\ns_mov_b64 exec, 15\nds_write_b32 v10, v9 offset:{L_FAST}')
    dual_store(f'buffer_store_dword v8, v12, {srd(SWS)}, s11 offen', 'lam')
    a('s_mov_b64 exec, -1')
    a('L_nolam:')
    a.cand()
    a('s_mov_b32 s14, 0')
    a('L_lpoll:')
    a(f's_sleep {lamdelay}')
    a(f'buffer_load_dwordx4 v[{W8}:{W8+3}], v5, {srd(SWS)}, s27 offen sc1\nbuffer_load_dwordx4 v[{W8+4}:{W8+7}], v5, {srd(SWS)}, s27 offen offset:64 sc1')
    a(f's_add_u32 s14, s14, 1\ns_cmp_gt_u32 s14, {SPIN}\ns_waitcnt vmcnt(0) lgkmcnt(0)\ns_cbranch_scc1 L_ldone')
    a(f'v_max3_u32 v8, v{W8}, v{W8+1}, v{W8+2}\nv_max3_u32 v9, v{W8+3}, v{W8+4}, v{W8+5}\nv_max3_u32 v8, v8, v{W8+6}, v{W8+7}\nv_max_u32 v8, v8, v9\nv_cmp_eq_u32 vcc, -1, v8')
    a('s_cbranch_vccnz L_lpoll')
    a('L_ldone:')
    a(f'v_max3_f32 v8, v{W8}, v{W8+1}, v{W8+2}\nv_max3_f32 v9, v{W8+3}, v{W8+4}, v{W8+5}\nv_max3_f32 v8, v8, v{W8+6}, v{W8+7}\nv_max_f32 v8, v8, v9')
    crossg(8, 9, 'max')
    for r in range(8): a(f'v_sub_f32 v{W8+r}, v{W8+r}, v8')
    for r in range(8): a(f'v_exp_f32 v{W8+r}, v{W8+r}')
    a(f'v_add_f32 v8, v{W8}, v{W8+1}')
    for r in range(2, 8): a(f'v_add_f32 v8, v8, v{W8+r}')
    crossg(8, 9, 'add')
    a('v_rcp_f32 v8, v8')
    for r in range(8): a(f'v_mul_f32 v{W8+r}, v{W8+r}, v8')
    stamp('H', 'lam', HST)
    R = Y + 4
    m1_loads = [f'buffer_load_dwordx4 v[{A1+4*t}:{A1+4*t+3}], {("v20", "v7")[t]}, {srd(SWS)}, s20 offen sc1' for t in range(2)]
    m2_loads = [f'buffer_load_dwordx4 v[{Y+4*j}:{Y+4*j+3}], v19, {srd(SWS)}, s22 offen offset:{j*1024} sc1' for j in range(2)]
    mf_loads = [f'buffer_load_dwordx4 v[{A1+4*j}:{A1+4*j+3}], v19, {srd(SWS)}, s24 offen offset:{j*1024} sc1' for j in range(2)]
    m3_loads = [f'buffer_load_dwordx4 v[{R+4*m}:{R+4*m+3}], v36, {srd(SWS)}, s{84+m} offen sc1' for m in range(2)]
    if '1' in early:
        for l in m1_loads: a(l)
    a('s_cmp_eq_u32 s4, 7\ns_cbranch_scc1 L_noearly')
    if '2' in early:
        for l in m2_loads: a(l)
    if 'f' in early:
        a('s_cmp_lg_u32 s3, 1\ns_cbranch_scc1 L_noearly2')
        for l in mf_loads: a(l)
        a('L_noearly2:')
    if '3' in early:
        a('s_cmp_gt_u32 s28, 7\ns_cbranch_scc1 L_noearly')
        for l in m3_loads: a(l)
    a('L_noearly:')
    a('s_waitcnt vmcnt(0)')
    a.cand()
    a('s_barrier')
    wo_issue()
    if wf == 'b4': gu_issue(); dn_issue()
    nwf = 12 if (wf == 'b4' and not dbg_now) else 0
    a('s_barrier')
    stamp('H', 'b5', HST)
    if dbg_notail:
        stamp('H', 'out', HST); a('s_branch L_Hend')
    a.cand()
    names = ('p1', 'p2', 'p25', 'p3')
    def poll(name, loads, base, tmp=8, tagged=True, after_first=None):
        n = len(loads); nreg = 4 * n
        a('s_mov_b32 s14, 0')
        dl = pd[names.index(name)]
        if name == 'p25' and local and pdslow: a(f's_cmp_lg_u32 s39, 0\ns_cbranch_scc1 L_{name}\ns_sleep {pdslow}')
        elif dl: a(f's_sleep {dl}')
        if after_first:
            for l in loads: a(l)
            after_first()
            a(f's_branch L_{name}_c')
        a(f'L_{name}:')
        for l in loads: a(l)
        a(f's_add_u32 s14, s14, 1\ns_cmp_gt_u32 s14, {SPIN}\ns_cbranch_scc1 L_{name}_x')
        if tagged:
            a(f's_waitcnt vmcnt(0)\nL_{name}_c:')
            for k in range(n):
                for e in range(4):
                    if k == 0: a(f'v_xor_b32 v{tmp+e}, s{34+e}, v{base+e}')
                    else: a(f'v_bitop3_b32 v{tmp+e}, v{tmp+e}, v{base+4*k+e}, s{34+e} bitop3:0xf6')
            a(f'v_or3_b32 v{tmp}, v{tmp}, v{tmp+1}, v{tmp+2}\nv_bitop3_b32 v{tmp}, v{tmp}, v{tmp+3}, v{VM} bitop3:0xa8\nv_cmp_ne_u32 vcc, 0, v{tmp}')
        else:
            a(f's_waitcnt vmcnt(0)\nL_{name}_c:')
            a(f'v_max3_u32 v{tmp}, v{base}, v{base+1}, v{base+2}\nv_max3_u32 v{tmp+1}, v{base+3}, v{base+4}, v{base+5}\nv_max3_u32 v{tmp}, v{tmp}, v{base+6}, v{base+7}\nv_max_u32 v{tmp}, v{tmp}, v{tmp+1}')
            a(f'v_cmp_eq_u32 vcc, -1, v{tmp}')
        a(f's_and_b64 exec, exec, vcc\ns_cbranch_execnz L_{name}')
        a(f'L_{name}_x:')
        a('s_mov_b64 exec, -1')
        if stamps is True: a(f's_add_u32 s14, s14, 1\nv_writelane_b32 v{HST}, s14, {40 + names.index(name)}')
    def p1_first():
        a(f's_waitcnt vmcnt({nwf + 2})'); wo_read(); a('s_waitcnt vmcnt(0)')
    poll('p1', m1_loads, A1, tagged=False, after_first=p1_first)
    a('s_waitcnt vmcnt(0) lgkmcnt(0)')
    stamp('H', 'hop1', HST)
    for cg in range(4):
        for t in range(2):
            a(f'v_mfma_f32_16x16x32_bf16 v[{DW+8*cg+4*t}:{DW+8*cg+4*t+3}], v[{A1+4*t}:{A1+4*t+3}], v[{WOB+4*cg}:{WOB+4*cg+3}], 0')
    if wf == 'hop1': gu_issue()
    for cg in (0, 2, 1, 3):
        a(f'v_mul_f32 v{8+cg}, v{W8}, v{DW+8*cg}')
        for r in range(1, 8): a(f'v_fmac_f32 v{8+cg}, v{W8+r}, v{DW+8*cg+r}')
    a('v_permlane32_swap_b32 v8, v10\nv_add_f32 v8, v8, v10\nv_permlane32_swap_b32 v9, v11\nv_add_f32 v9, v9, v11\nv_permlane16_swap_b32 v8, v9\nv_add_f32 v8, v8, v9')
    a('ds_write_b32 v26, v8\ns_waitcnt lgkmcnt(0)')
    a('s_barrier')
    a('s_cmp_lg_u32 s3, 0\ns_cbranch_scc1 L_nowpub')
    a(f'ds_read2st64_b32 v[8:9], v25 offset0:{L_YW//256} offset1:{L_YW//256+1}\nds_read2st64_b32 v[10:11], v25 offset0:{L_YW//256+2} offset1:{L_YW//256+3}')
    a(f's_waitcnt lgkmcnt(0)\nv_add_f32 v8, v8, v9\nv_add_f32 v10, v10, v11\nv_add_f32 v8, v8, v10\nv_bfi_b32 v8, v{VM}, v16, v8')
    a(f'buffer_store_dword v8, v25, {srd(SWS)}, s21 offen sc1')
    a('L_nowpub:')
    stamp('H', 'wpub', HST)
    a('s_cmp_lg_u32 s4, 7\ns_cbranch_scc1 L_F')
    a(f'v_and_b32 v8, v{VM}, v1\nv_and_b32 v9, v{VM}, v2\nbuffer_store_dwordx2 v[8:9], v18, {srd(SWS)}, s25 offen sc1\ns_branch L_Hend')
    a('L_F:')
    if wf != 'hop1': gu_read(); dn_unpack()
    a.cand()
    def p2_first():
        npt = 0
        if local and pretouch:
            for l in mf_loads: a(l)
            npt = 2
        if wf == 'hop1' and not dbg_now:
            dn_issue(); npt += 8
        a(f's_waitcnt vmcnt({npt})')
    poll('p2', m2_loads, Y, after_first=p2_first)
    stamp('H', 'hop2', HST)
    for e in range(4): a(f'v_add_f32 v{Y+e}, v{Y+e}, v{Y+4+e}')
    a(f'v_permlane32_swap_b32 v{Y}, v{Y+2}\nv_permlane32_swap_b32 v{Y+1}, v{Y+3}\nv_add_f32 v{Y}, v{Y}, v{Y+2}\nv_add_f32 v{Y+1}, v{Y+1}, v{Y+3}')
    a(f'v_permlane16_swap_b32 v{Y}, v{Y+1}\nv_add_f32 v8, v{Y}, v{Y+1}')
    a(f'ds_add_f32 v23, v8 offset:{L_HA}\ns_waitcnt lgkmcnt(0)')
    a('s_barrier')
    for k in range(4): a(f'ds_read_b128 v[{Y+4*k}:{Y+4*k+3}], v24 offset:{L_HA + (k >> 1)*128 + (k & 1)*16}')
    if wf == 'hop1': gu_read()
    nx = 8 if wf == 'hop1' else 0
    AH = DW + 16
    for s_ in range(2):
        a(f's_waitcnt lgkmcnt({2 - 2*s_ + nx})')
        for d in range(4): a(f'v_cvt_pk_bf16_f32 v{AH+4*s_+d}, v{Y+8*s_+2*d}, v{Y+8*s_+2*d+1}')
    for s_ in range(2):
        a(f'v_mfma_f32_16x16x32_bf16 v[{DW+8}:{DW+11}], v[{AH+4*s_}:{AH+4*s_+3}], v[{AH+4*s_}:{AH+4*s_+3}], {"0" if s_ == 0 else f"v[{DW+8}:{DW+11}]"}')
        if nx: a(f's_waitcnt lgkmcnt({4 - 4*s_})')
        for sb in range(2):
            a(f'v_mfma_f32_16x16x32_bf16 v[{DW+4*sb}:{DW+4*sb+3}], v[{AH+4*s_}:{AH+4*s_+3}], v[{GUB+8*sb+4*s_}:{GUB+8*sb+4*s_+3}], {"0" if s_ == 0 else f"v[{DW+4*sb}:{DW+4*sb+3}]"}')
    a('s_mov_b32 exec_hi, 0')
    a(f'v_mov_b32_dpp v10, v{DW+8} quad_perm:[0,0,2,3] {FULL}\nv_mov_b32_dpp v11, v{DW+9} quad_perm:[0,0,2,3] {FULL}')
    a(f'v_bfi_b32 v10, v{VM}, s36, v10\nv_bfi_b32 v11, v{VM}, s37, v11')
    a(f'v_mov_b32_dpp v{DW}, v{DW+4} quad_perm:[0,1,2,3] row_mask:2 bank_mask:0xf\nv_mov_b32_dpp v{DW+1}, v{DW+5} quad_perm:[0,1,2,3] row_mask:2 bank_mask:0xf')
    a(f'v_bfi_b32 v8, v{VM}, s34, v{DW}\nv_bfi_b32 v9, v{VM}, s35, v{DW+1}')
    a('s_waitcnt vmcnt(0)')
    dual_store(f'buffer_store_dwordx4 v[8:11], v27, {srd(SWS)}, s23 offen', 'mf')
    a('s_mov_b64 exec, -1')
    stamp('H', 'f1pub', HST)
    a.cand()
    a('s_mov_b32 s13, 0x3b000000\ns_mov_b32 s16, 0xc0135761\ns_mov_b32 s26, 0xbdd2d3e8')
    if wf == 'hop1': dn_unpack()
    poll('p25', mf_loads, A1, tmp=12)
    a('s_waitcnt vmcnt(0)')
    stamp('H', 'hop25', HST)
    Z = A1
    for e in range(4): a(f'v_add_f32 v{Z+e}, v{Z+e}, v{Z+4+e}')
    for e in range(4): a(f'v_mov_b32 v{Z+4+e}, v{Z+e}')
    for e in range(4): a(f'v_permlane16_swap_b32 v{Z+e}, v{Z+4+e}')
    for e in range(4): a(f'v_add_f32 v{Z+e}, v{Z+e}, v{Z+4+e}')
    for e in range(4): a(f'v_mov_b32 v{Z+4+e}, v{Z+e}')
    for e in (3, 2, 0, 1): a(f'v_permlane32_swap_b32 v{Z+e}, v{Z+4+e}')
    for e in (3, 2, 0, 1): a(f'v_add_f32 v{Z+e}, v{Z+e}, v{Z+4+e}')
    a(f'v_mul_f32 v13, s13, v{Z+3}\nv_mul_f32 v14, v13, v13\nv_fma_f32 v12, v{Z+2}, s13, -v14\nv_max_f32 v12, 0, v12\nv_add_f32 v12, 0x3727c5ac, v12\nv_rsq_f32 v12, v12')
    a(f'v_fma_f32 v14, -v13, v{Z+1}, v{Z}\nv_mul_f32 v14, v14, v12')
    a('v_mul_f32 v15, v14, v14\nv_mov_b32 v12, s16\nv_fmac_f32 v12, s26, v15\nv_mul_f32 v12, v12, v14\nv_exp_f32 v12, v12')
    a(f'v_mov_b32_dpp v15, v14 row_ror:8 {FULL}')
    a('v_add_f32 v12, 1.0, v12\nv_rcp_f32 v12, v12\nv_mul_f32 v14, v14, v15\nv_mul_f32 v14, v14, v12')
    for k in range(2):
        a(f'v_mul_f32_dpp v{Y+2*k}, v14, v{WDF+2*k} row_newbcast:{k} {FULL}\nv_mul_f32_dpp v{Y+2*k+1}, v14, v{WDF+2*k+1} row_newbcast:{k} {FULL}')
    for k in range(2, 8):
        o = Y + 2 * (k & 1)
        a(f'v_fmac_f32_dpp v{o}, v14, v{WDF+2*k} row_newbcast:{k} {FULL}\nv_fmac_f32_dpp v{o+1}, v14, v{WDF+2*k+1} row_newbcast:{k} {FULL}')
    a(f'v_add_f32 v{Y}, v{Y}, v{Y+2}\nv_add_f32 v{Y+1}, v{Y+1}, v{Y+3}\nv_bfi_b32 v{Y}, v{VM}, v1, v{Y}\nv_bfi_b32 v{Y+1}, v{VM}, v2, v{Y+1}')
    a(f'buffer_store_dwordx2 v[{Y}:{Y+1}], v18, {srd(SWS)}, s25 offen sc1')
    stamp('H', 'fpub', HST)
    a('s_cmp_gt_u32 s28, 7\ns_cbranch_scc1 L_Hend')
    a.cand()
    poll('p3', m3_loads, R)
    stamp('H', 'hop3', HST)
    for e in range(4): a(f'v_add_f32 v{R+e}, v{R+e}, v{R+4+e}')
    a(f'v_permlane32_swap_b32 v{R}, v{R+2}\nv_permlane32_swap_b32 v{R+1}, v{R+3}\nv_add_f32 v{R}, v{R}, v{R+2}\nv_add_f32 v{R+1}, v{R+1}, v{R+3}')
    a(f'v_permlane16_swap_b32 v{R}, v{R+1}\nv_add_f32 v8, v{R}, v{R+1}')
    a(f'v_add_f32_dpp v8, v8, v8 row_ror:8 {FULL}\nv_add_f32_dpp v8, v8, v8 row_ror:4 {FULL}\nv_add_f32_dpp v8, v8, v8 quad_perm:[2,3,0,1] {FULL}')
    a('s_mov_b32 exec_lo, 0x00030003\ns_mov_b32 exec_hi, 0x00030003')
    a(f'ds_add_f32 v38, v8 offset:{L_HA}\ns_waitcnt lgkmcnt(0)')
    a('s_barrier')
    a('s_cmp_lg_u32 s3, 0\ns_cbranch_scc1 L_Hend')
    a(f'ds_read_b32 v8, v38 offset:{L_HA}\ns_waitcnt lgkmcnt(0)\nv_cvt_pk_bf16_f32 v8, v8, v8')
    a(f'buffer_store_short v8, v37, {srd(SO)}, s15 offen')
    a(f's_cmp_lg_u32 s2, 0\ns_cbranch_scc1 L_noep\ns_mov_b64 exec, 1\nv_mov_b32 v9, s34\nv_mov_b32 v10, {EPOCH}\nbuffer_store_dword v9, v10, {srd(SWS)}, 0 offen sc1\nL_noep:')
    stamp('H', 'out', HST)
    a('L_Hend:')
    stamp_store(HST)
    a('L_end:')
    a('s_endpgm')

    head = HEADER + f'; Written by gen/gen.py (own generator): one persistent launch, 256 workgroups x 8 waves.\n; @launch grid=(256,1,1) block=(512,1,1) lds={LDS_BYTES}\n'
    pre = f'.amdgcn_target "amdgcn-amd-amdhsa--gfx950"\n.text\n.globl {KN}\n.p2align 8\n.type {KN},@function\n'
    post = f'''.section .rodata,"a"
.p2align 6
.amdhsa_kernel {KN}
  .amdhsa_next_free_vgpr 256
  .amdhsa_next_free_sgpr 96
  .amdhsa_accum_offset 256
  .amdhsa_group_segment_fixed_size 0
  .amdhsa_kernarg_size 96
  .amdhsa_user_sgpr_count 2
  .amdhsa_user_sgpr_kernarg_segment_ptr 1
  .amdhsa_system_sgpr_workgroup_id_x 1
  .amdhsa_float_denorm_mode_32 3
.end_amdhsa_kernel
'''
    if not warm:
        return head + pre + '\n'.join(a.render(chosen=[])) + '\n' + post, nst
    saveL = list(a.L)
    a.L = [l.replace('@W0', 'L_warm_end').replace('@W1', 'L_warm_end').replace('@W2', 'L_warm_end') for l in saveL]
    syms = assemble_syms(pre + '\n'.join(a.render(None)) + '\n')
    pos = [syms[f'L_cand{n}'] for n in range(a.ncand)]
    end = syms['L_end']
    chosen = []; last = None
    for n in range(a.ncand):
        nxt = pos[n+1] if n + 1 < a.ncand else end
        if last is None or nxt - last > 900:
            chosen.append(n); last = pos[n]
    k = len(chosen)
    ent = [0, (k + 2) // 3, (2 * k + 2) // 3]
    a.L = [l.replace('@W0', f'L_pad{ent[0]}').replace('@W1', f'L_pad{ent[1]}').replace('@W2', f'L_pad{ent[2]}') for l in saveL]
    body = a.render(chosen)
    gaps = [pos[chosen[i+1]] - pos[chosen[i]] for i in range(k-1)] + [end - pos[chosen[-1]]]
    print('pads', k, 'first', pos[chosen[0]], 'gaps', gaps, 'code bytes', end, file=sys.stderr)
    return head + pre + '\n'.join(body) + '\n' + post, nst

if __name__ == '__main__':
    kw = eval('dict(' + (sys.argv[2] if len(sys.argv) > 2 else '') + ')')
    s, nst = gen(**kw)
    open(sys.argv[1], 'w').write(s)
    if nst: print(nst)
```

```python
import sys
from asmlib import Asm, assemble_syms
NAME = 'sequential_preLN__gqa_block_cached__glu_gated_geglu__decode'
KN = NAME + '_kernel'

QP   = 0x00000
LAM  = 0x10000
XC   = 0x18000
EPOCH = 0x19000
PF   = 0x1a000
M2   = 0x20000
M1   = 0x40000
M3   = 0x80000
MF   = 0x100000
STAMP = 0x8000000
L_WQ = 0
L_G  = 16384
L_U  = 24576 + 64
L_XN = 33792
L_Q  = 34816
L_MX = 35840
L_LS = 35904
L_FAST = 35968
L_EP = 36864
L_YW = 45568
L_HA = 46592
LDS_BYTES = 47104
SX, SK, SV, SWQ, SWO, SG, SU, SD, SO, SDBG, SWS = 40, 44, 48, 52, 56, 60, 64, 68, 72, 76, 80
def srd(b): return f's[{b}:{b+3}]'
LOG2E = 0x3fb8aa3b
SPIN = 1 << 16
TAGM = 0x3ff
FULL = 'row_mask:0xf bank_mask:0xf'

HEADER = open('cdna_kernels/' + NAME + '.s.ref').read().split('; Override launch')[0]

def gen(D=7, lead_ss=8, lead_sm=16, wf='b4', qdelay=7, pd=(0, 0, 0, 8), pdslow=8, local=True, pretouch=False, clrdelay=0, touch=True, lamdelay=64, early='12f', tlbwarm=False,
        stamps=False, warm=True, nslots=40, dbgwg=0, dbg_now=False, dbg_notail=False, dbg_sleep=0, dbg_extra=0, dbg_rtt=0):
    a = Asm()
    nst = {}
    SST, HST = 88, 200
    def stamp(role, name, vreg):
        if not stamps: return
        if stamps == 'lite' and name not in ('pub', 'out'): return
        idx = nst.setdefault(role, []); idx.append(name)
        a(f's_memrealtime s[90:91]\ns_waitcnt lgkmcnt(0)\nv_writelane_b32 v{vreg}, s90, {len(idx)-1}')
    def stamp_store(vreg):
        if not stamps: return
        if stamps == 'dbg':
            if vreg == SST: return
            a(f's_cmp_lg_u32 s2, {dbgwg}\ns_cbranch_scc1 L_nodbg\ns_cmp_lg_u32 s3, 0\ns_cbranch_scc1 L_nodbg')
            a(f's_mov_b64 exec, -1\nv_subrev_u32 v{vreg}, s94, v{vreg}\nv_lshlrev_b32 v{vreg+1}, 2, v0\nbuffer_store_dword v{vreg}, v{vreg+1}, {srd(SDBG)}, 0 offen\nL_nodbg:')
            return
        a(f's_lshl_b32 s92, s2, 3\ns_add_u32 s92, s92, s3\ns_lshl_b32 s92, s92, 8\ns_add_u32 s92, s92, {STAMP}')
        a(f's_mov_b64 exec, -1\nv_lshlrev_b32 v{vreg+1}, 2, v0\nbuffer_store_dword v{vreg}, v{vreg+1}, {srd(SWS)}, s92 offen')
    def crossg(r, t, op='add'):
        a(f'v_mov_b32 v{t}, v{r}\nv_permlane16_swap_b32 v{t}, v{r}\nv_{op}_f32 v{r}, v{r}, v{t}')
        a(f'v_mov_b32 v{t}, v{r}\nv_permlane32_swap_b32 v{t}, v{r}\nv_{op}_f32 v{r}, v{r}, v{t}')
    def allreduce(r, t, op='add'):
        for sh in (8, 4, 2, 1): a(f'v_{op}_f32_dpp v{r}, v{r}, v{r} row_ror:{sh} {FULL}')
        crossg(r, t, op)
    def rbf(r):
        a(f'v_cvt_pk_bf16_f32 v{r}, v{r}, v{r}\nv_lshlrev_b32 v{r}, 16, v{r}')
    def saddr(dst, terms, const=0, tmp='s10'):
        first = True
        for reg, sh in terms:
            t = dst if first else tmp
            a(f's_lshl_b32 {t}, {reg}, {sh}' if sh else f's_mov_b32 {t}, {reg}')
            if not first: a(f's_add_u32 {dst}, {dst}, {tmp}')
            first = False
        if const: a(f's_add_u32 {dst}, {dst}, {const}')
    def tags():
        a('s_mul_i32 s34, s33, 1664525\ns_add_u32 s34, s34, 1013904223\ns_lshr_b32 s35, s34, 10\ns_lshr_b32 s36, s34, 20\ns_lshr_b32 s37, s34, 22')
    def lanetag(dst, idx):
        a(f'v_mul_u32_u24 v{dst}, 10, v{idx}\nv_min_u32 v{dst}, 22, v{dst}\nv_lshrrev_b32_e64 v{dst}, v{dst}, s34')
    def dual_store(ins, name):
        if not local:
            a(ins + ' sc1'); return
        a(f's_cmp_lg_u32 s39, 0\ns_cbranch_scc1 L_{name}_f\n{ins} sc1\ns_branch L_{name}_e\nL_{name}_f:\n{ins}\nL_{name}_e:')

    a(f'{KN}:')
    a('s_cmp_ge_u32 s2, 256\ns_cbranch_scc1 L_end')
    if stamps: a('s_memrealtime s[94:95]')
    for b, off in ((SK, 8), (SX, 0), (SWQ, 24), (SWS, 88), (SV, 16), (SDBG, 80), (SWO, 32), (SG, 48), (SU, 56), (SD, 64), (SO, 72)):
        a(f's_load_dwordx2 s[{b}:{b+1}], s[0:1], {off}')
    a('v_lshrrev_b32 v1, 6, v0\nv_and_b32 v0, 63, v0')
    a('v_readfirstlane_b32 s3, v1')
    for b, n in ((SX, 1024), (SK, 64 << 20), (SV, 64 << 20), (SWQ, 4 << 20), (SWO, 4 << 20), (SG, 512 * 3584), (SU, 512 * 3584), (SD, 1792 * 1024), (SO, 1024), (SDBG, 256), (SWS, 268435456)):
        a(f's_mov_b32 s{b+2}, {n}\ns_mov_b32 s{b+3}, 0x20000')
    a('s_and_b32 s4, s2, 7\ns_lshr_b32 s5, s2, 3')
    a('s_and_b32 s6, s3, 3')
    a('s_cmp_lt_u32 s3, 4\ns_cbranch_scc1 L_H')
    RING = 96
    def slot(k): return RING + 4 * k
    a('v_and_b32 v1, 3, v0\nv_lshlrev_b32 v1, 8, v1\nv_lshrrev_b32 v2, 2, v0\nv_lshl_add_u32 v1, v2, 4, v1')
    a('v_lshlrev_b32 v2, 4, v0')
    saddr('s7', (('s4', 23), ('s5', 18), ('s6', 12)), tmp='s8')
    a('s_mov_b32 s8, s7')
    if stamps: a(f'v_mov_b32 v{SST}, 0')
    a('s_waitcnt lgkmcnt(0)')
    if stamps: a(f'v_writelane_b32 v{SST}, s94, 0'); nst['S'] = ['start']
    st = dict(I=0, free=list(range(nslots)), where={})
    def issue(pace=True):
        n = st['I']
        fl = st['free']
        k = next(x for x in fl if n < 64 or x >= 8)
        fl.remove(k); st['where'][n] = k
        if pace and n >= D: a(f's_waitcnt vmcnt({D-1})')
        if n == 64: a('s_mov_b32 s8, s7')
        a(f'buffer_load_dwordx4 v[{slot(k)}:{slot(k)+3}], {"v1" if n < 64 else "v2"}, {srd(SK if n < 64 else SV)}, s8 offen offset:{(n & 3) * 1024} nt')
        if n & 3 == 3 and n != 63 and n != 127: a('s_add_u32 s8, s8, 0x4000')
        st['I'] = n + 1
    def can_issue():
        n = st['I']
        return n < 128 and any(n < 64 or x >= 8 for x in st['free'])
    if dbg_extra:
        a('s_add_u32 s9, s7, 0x20000')
        for n in range(dbg_extra):
            if n >= D: a(f's_waitcnt vmcnt({D-1})')
            a(f'buffer_load_dwordx4 v[{slot(n % D)}:{slot(n % D)+3}], v2, {srd(SV)}, s9 offen offset:{(n & 3) * 1024} nt')
            if n & 3 == 3: a('s_add_u32 s9, s9, 0x4000')
        a('s_waitcnt vmcnt(0)')
    for n in range(nslots): issue()
    stamp('S', 'pref', SST)
    a('s_barrier')
    a('s_branch L_S')

    a('L_H:')
    if stamps: a(f'v_mov_b32 v{HST}, 0')
    a('s_and_b32 s17, s5, 7\ns_lshr_b32 s18, s5, 3')
    a('s_cmp_lg_u32 s3, 0\ns_cbranch_scc1 L_Hwarm')
    a('s_setprio 2')
    a('v_lshlrev_b32 v2, 4, v0')
    a('v_lshrrev_b32 v1, 3, v0\nv_lshlrev_b32 v1, 13, v1\nv_and_b32 v3, 7, v0\nv_lshl_add_u32 v1, v3, 4, v1')
    saddr('s8', (('s18', 20), ('s4', 10), ('s17', 7)))
    a(f's_mov_b32 m0, {L_WQ}')
    a('s_waitcnt lgkmcnt(0)')
    if stamps: a(f'v_writelane_b32 v{HST}, s94, 0'); nst['H'] = ['start']
    a(f's_load_dword s33, s[{SWS}:{SWS+1}], {EPOCH}')
    a(f'buffer_load_dwordx4 v[4:7], v2, {srd(SX)}, 0 offen')
    for m in range(16):
        a(f'buffer_load_dwordx4 v1, {srd(SWQ)}, s8 offen nt lds')
        if m < 15: a(f's_add_u32 m0, m0, 1024\ns_add_u32 s8, s8, 0x10000')
    a.cand()
    a('s_mov_b32 s12, 0xffff0000')
    a('s_waitcnt vmcnt(16)')
    for d in range(4): a(f'v_lshlrev_b32 v{8+2*d}, 16, v{4+d}\nv_and_b32 v{9+2*d}, s12, v{4+d}')
    a('v_add_f32 v16, v8, v9\nv_add_f32 v17, v10, v11\nv_add_f32 v18, v12, v13\nv_add_f32 v19, v14, v15\nv_add_f32 v16, v16, v17\nv_add_f32 v18, v18, v19\nv_add_f32 v16, v16, v18')
    allreduce(16, 17)
    a('v_mul_f32 v16, 0x3b000000, v16')
    a('v_sub_f32 v17, v8, v16\nv_mul_f32 v18, v17, v17')
    for e in range(1, 8): a(f'v_sub_f32 v17, v{8+e}, v16\nv_fmac_f32 v18, v17, v17')
    allreduce(18, 17)
    a('v_mul_f32 v18, 0x3b000000, v18'); rbf(18)
    a('v_add_f32 v18, 0x3727c5ac, v18'); rbf(18)
    a('v_sqrt_f32 v18, v18'); rbf(18)
    a('v_rcp_f32 v18, v18'); rbf(16)
    for e in range(8): a(f'v_sub_f32 v{8+e}, v{8+e}, v16')
    for d in range(4): a(f'v_cvt_pk_bf16_f32 v{4+d}, v{8+2*d}, v{9+2*d}')
    for d in range(4): a(f'v_lshlrev_b32 v{8+2*d}, 16, v{4+d}\nv_and_b32 v{9+2*d}, s12, v{4+d}')
    for e in range(8): a(f'v_mul_f32 v{8+e}, v{8+e}, v18')
    for d in range(4): a(f'v_cvt_pk_bf16_f32 v{4+d}, v{8+2*d}, v{9+2*d}')
    a(f'ds_write_b128 v2, v[4:7] offset:{L_XN}')
    a.cand()
    a('v_lshrrev_b32 v3, 4, v0\nv_lshlrev_b32 v16, 4, v3\ns_lshl_b32 s9, s18, 8\nv_add_u32 v16, s9, v16')
    a('v_lshlrev_b32 v17, 10, v3\nv_bfe_u32 v18, v0, 2, 2\nv_lshl_add_u32 v17, v18, 7, v17\nv_and_b32 v18, 3, v0\nv_lshl_add_u32 v17, v18, 3, v17')
    a('s_waitcnt lgkmcnt(0)')
    for s_ in range(4): a(f'ds_read_b128 v[{64+4*s_}:{67+4*s_}], v16 offset:{L_XN + s_*64}')
    tags()
    lanetag(19, 18)
    a(f'v_mov_b32 v20, {TAGM}')
    a('s_waitcnt vmcnt(0) lgkmcnt(0)')
    stamp('H', 'wq', HST)
    a.cand()
    order = [(s_, cg) for s_ in range(4) for cg in range(4)]
    def qmfma(q):
        s_, cg = order[q]
        a(f'v_mfma_f32_16x16x32_bf16 v[{24+4*cg}:{27+4*cg}], v[{64+4*s_}:{67+4*s_}], v[{128+4*q}:{131+4*q}], {"0" if s_ == 0 else f"v[{24+4*cg}:{27+4*cg}]"}')
    for q, (s_, cg) in enumerate(order):
        for eh in range(2): a(f'ds_read_b64_tr_b16 v[{128+4*q+2*eh}:{129+4*q+2*eh}], v17 offset:{L_WQ + s_*4096 + eh*512 + cg*32}')
        if q >= 4:
            a(f's_waitcnt lgkmcnt(8)'); qmfma(q - 4)
    for q in range(12, 16):
        a(f's_waitcnt lgkmcnt({2*(15-q)})'); qmfma(q)
    a('v_lshlrev_b32 v3, 2, v0')
    saddr('s9', (('s4', 13), ('s18', 11), ('s17', 8)), QP)
    saddr('s16', (('s4', 13),), QP); a('s_add_u32 s15, s16, 4096')
    for cg in range(1, 4): a(f'v_mov_b32_dpp v24, v{24+4*cg} quad_perm:[0,1,2,3] row_mask:{1 << cg} bank_mask:0xf')
    a('v_bfi_b32 v24, v20, v19, v24')
    a(f'buffer_store_dword v24, v3, {srd(SWS)}, s9 offen sc1')
    a('s_mov_b32 s14, 0')
    stamp('H', 'qpub', HST)
    a.cand()
    def tagcheck(base, n, tmp):
        for k in range(n):
            a(f's_waitcnt vmcnt({n-1-k})')
            for e in range(4):
                if k == 0: a(f'v_xor_b32 v{tmp+e}, s{34+e}, v{base+e}')
                else: a(f'v_bitop3_b32 v{tmp+e}, v{tmp+e}, v{base+4*k+e}, s{34+e} bitop3:0xf6')
        a(f'v_or3_b32 v{tmp}, v{tmp}, v{tmp+1}, v{tmp+2}\nv_bitop3_b32 v{tmp}, v{tmp}, v{tmp+3}, v{VM} bitop3:0xa8\nv_cmp_ne_u32 vcc, 0, v{tmp}')
    VM = 20
    a('L_qpoll:')
    if qdelay: a(f's_sleep {min(127, 8 * qdelay)}')
    for k in range(8):
        a(f'buffer_load_dwordx4 v[{64+4*k}:{67+4*k}], v2, {srd(SWS)}, {"s16" if k < 4 else "s15"} offen offset:{(k & 3) * 1024} sc1')
    a(f's_add_u32 s14, s14, 1\ns_cmp_gt_u32 s14, {SPIN}\ns_cbranch_scc1 L_qdone')
    tagcheck(64, 8, 8)
    a('s_and_b64 exec, exec, vcc\ns_cbranch_execnz L_qpoll')
    a('L_qdone:')
    a('s_mov_b64 exec, -1\ns_waitcnt vmcnt(0)')
    a('v_lshlrev_b32 v3, 3, v0')
    for e in range(8): a(f'v_add_f32 v{64+e}, v{64+e}, v{72+e}')
    for e in range(8): a(f'v_add_f32 v{80+e}, v{80+e}, v{88+e}')
    for e in range(8): a(f'v_add_f32 v{64+e}, v{64+e}, v{80+e}')
    for d in range(4): a(f'v_cvt_pk_bf16_f32 v{4+d}, v{64+2*d}, v{65+2*d}')
    a(f'ds_write2st64_b64 v3, v[4:5], v[6:7] offset0:{L_Q//512} offset1:{L_Q//512+1}')
    a('s_waitcnt lgkmcnt(0)')
    stamp('H', 'qgot', HST)
    a('s_setprio 0')
    a('s_branch L_Hb1')
    a('L_Hwarm:')
    a('v_mov_b32 v8, -1\nv_mov_b32 v9, -1\nv_mov_b32 v10, -1\nv_mov_b32 v11, -1\nv_lshlrev_b32 v2, 4, v0\nv_lshrrev_b32 v3, 4, v0\nv_and_b32 v4, 15, v0\nv_lshlrev_b32 v4, 4, v4')
    a('s_lshl_b32 s29, s4, 2\ns_add_u32 s29, s29, s18')
    a('s_waitcnt lgkmcnt(0)')
    if stamps: a(f'v_writelane_b32 v{HST}, s94, 0')
    for k in range(clrdelay): a('s_sleep 64')
    a(f's_load_dword s33, s[{SWS}:{SWS+1}], {EPOCH}')
    a('s_cmp_lg_u32 s3, 1\ns_cbranch_scc1 L_clre')
    a('v_lshl_add_u32 v12, v3, 13, v4\nv_lshlrev_b32 v14, 7, v0')
    saddr('s9', (('s4', 15), ('s5', 8)), M1)
    a(f'buffer_store_dwordx4 v[8:11], v12, {srd(SWS)}, s9 offen sc1')
    saddr('s9', (('s4', 9), ('s5', 2)), LAM)
    a(f's_mov_b64 exec, 15\nbuffer_store_dword v8, v14, {srd(SWS)}, s9 offen sc1\ns_mov_b64 exec, -1')
    a('L_clre:')
    if tlbwarm:
        a('s_cmp_lg_u32 s3, 2\ns_cbranch_scc1 L_tw\ns_mov_b64 exec, 1\nv_mov_b32 v12, 0')
        saddr('s9', (('s4', 23), ('s5', 18)))
        a(f'buffer_load_dword v13, v12, {srd(SV)}, s9 offen nt')
        saddr('s9', (('s29', 17), ('s17', 7)))
        a(f'buffer_load_dword v13, v12, {srd(SWO)}, s9 offen nt')
        a(f's_mul_i32 s9, s17, {64*3584}\ns_lshl_b32 s10, s29, 7\ns_add_u32 s9, s9, s10')
        a(f'buffer_load_dword v13, v12, {srd(SG)}, s9 offen nt\nbuffer_load_dword v13, v12, {srd(SU)}, s9 offen nt')
        saddr('s9', (('s29', 16), ('s17', 13)))
        a(f'buffer_load_dword v13, v12, {srd(SD)}, s9 offen nt\nbuffer_load_dword v13, v12, {srd(SO)}, 0 offen nt')
        a('s_mov_b64 exec, -1\nL_tw:')
    if warm:
        a('s_mov_b64 exec, 0')
        a('s_cmp_eq_u32 s3, 1\ns_cbranch_scc1 @W0\ns_cmp_eq_u32 s3, 2\ns_cbranch_scc1 @W1\ns_branch @W2')
        a('L_warm_end:')
        a('s_mov_b64 exec, -1')
        if stamps is True: a(f's_memrealtime s[90:91]\ns_waitcnt lgkmcnt(0)\nv_writelane_b32 v{HST}, s90, 1')
    a('s_waitcnt vmcnt(0) lgkmcnt(0)')
    tags()
    a('L_Hb1:')
    a('s_barrier')
    a('s_branch L_Hmid')

    a('L_S:')
    a.cand()
    Q, P, ACC = 20, 24, 56
    a(f'ds_read_b128 v[{Q}:{Q+3}], v1 offset:{L_Q}')
    a('s_mov_b32 s12, 0xffff0000\ns_mov_b32 s13, 0x3db504f3\nv_mov_b32 v3, 0xff800000')
    a(f'v_lshrrev_b32 v14, 4, v0')
    a('s_waitcnt lgkmcnt(0)')
    stamp('S', 'q', SST)
    lead = nslots
    for u in range(16):
        a.cand()
        ks = [slot(st['where'][4*u+e]) for e in range(4)]
        T = [ACC + 4*e for e in range(4)]
        a(f's_waitcnt vmcnt({st["I"] - (4*u+4)})')
        for e in range(4): a(f'v_mfma_f32_4x4x4_16b_bf16 v[{T[e]}:{T[e]+3}], v[{ks[e]}:{ks[e]+1}], v[{Q}:{Q+1}], 0')
        for e in range(4): a(f'v_mfma_f32_4x4x4_16b_bf16 v[{T[e]}:{T[e]+3}], v[{ks[e]+2}:{ks[e]+3}], v[{Q+2}:{Q+3}], v[{T[e]}:{T[e]+3}]')
        for e in range(4): st['free'].append(st['where'][4*u+e])
        C = 4*u + 4
        lead = max(lead_ss, lead - 2)
        tgt = C + lead if u < 15 else C + lead_sm
        while st['I'] < tgt and can_issue(): issue(pace=(u < 15))
        for e in range(4): a(f'v_permlane32_swap_b32 v{T[e]}, v{T[e]+2}\nv_permlane32_swap_b32 v{T[e]+1}, v{T[e]+3}')
        for e in range(4): a(f'v_add_f32 v{T[e]}, v{T[e]}, v{T[e]+2}\nv_add_f32 v{T[e]+1}, v{T[e]+1}, v{T[e]+3}')
        for e in range(4): a(f'v_permlane16_swap_b32 v{T[e]}, v{T[e]+1}')
        for e in range(4): a(f'v_add_f32 v{T[e]}, v{T[e]}, v{T[e]+1}')
        for e in range(4): a(f'v_add_f32_dpp v{T[e]+1}, v{T[e]}, v{T[e]} row_ror:4 {FULL}')
        for e in range(4): a(f'v_add_f32_dpp v{T[e]}, v{T[e]+1}, v{T[e]+1} row_ror:8 {FULL}')
        a(f'v_cvt_pk_bf16_f32 v5, v{T[0]}, v{T[1]}\nv_cvt_pk_bf16_f32 v6, v{T[2]}, v{T[3]}')
        a('v_lshlrev_b32 v7, 16, v5\nv_and_b32 v8, s12, v5\nv_lshlrev_b32 v9, 16, v6\nv_and_b32 v10, s12, v6')
        a('v_mul_f32 v7, s13, v7\nv_mul_f32 v8, s13, v8\nv_mul_f32 v9, s13, v9\nv_mul_f32 v10, s13, v10')
        a(f'v_cvt_pk_bf16_f32 v{P+2*u}, v7, v8\nv_cvt_pk_bf16_f32 v{P+2*u+1}, v9, v10')
        a('v_max3_f32 v3, v3, v7, v8\nv_max3_f32 v3, v3, v9, v10')
    stamp('S', 'kdone', SST)
    a.cand()
    crossg(3, 5, 'max')
    a(f'v_and_b32 v5, 3, v0\nv_lshlrev_b32 v5, 4, v5\ns_lshl_b32 s9, s6, 2\nv_add_u32 v6, s9, v5')
    a(f's_mov_b64 exec, 15\nds_write_b32 v6, v3 offset:{L_MX}\ns_mov_b64 exec, -1\ns_waitcnt lgkmcnt(0)')
    a('s_barrier')
    a(f'ds_read_b128 v[8:11], v5 offset:{L_MX}')
    a(f's_mov_b32 s14, {LOG2E}\nv_mov_b32 v4, 0')
    a('s_waitcnt lgkmcnt(0)')
    a('v_max3_f32 v3, v8, v9, v10\nv_max_f32 v3, v3, v11'); rbf(3)
    a('v_mul_f32 v3, s14, v3')
    for r in range(0, 32, 2):
        if r % 8 == 0: a.cand()
        a(f'v_lshlrev_b32 v7, 16, v{P+r}\nv_and_b32 v8, s12, v{P+r}\nv_lshlrev_b32 v9, 16, v{P+r+1}\nv_and_b32 v10, s12, v{P+r+1}')
        for t in range(7, 11): a(f'v_fma_f32 v{t}, v{t}, s14, -v3')
        for t in range(7, 11): a(f'v_exp_f32 v{t}, v{t}')
        a(f'v_cvt_pk_bf16_f32 v{P+r}, v7, v8\nv_add_f32 v7, v7, v8\nv_cvt_pk_bf16_f32 v{P+r+1}, v9, v10\nv_add_f32 v9, v9, v10\nv_add_f32 v4, v4, v7\nv_add_f32 v4, v4, v9')
    crossg(4, 7, 'add')
    a(f's_mov_b64 exec, 15\nds_write_b32 v6, v4 offset:{L_LS}\ns_mov_b64 exec, -1\ns_waitcnt lgkmcnt(0)')
    a('s_barrier')
    stamp('S', 'smdone', SST)
    a(f's_lshl_b32 s9, s6, 4\nv_mov_b32 v13, s9\nds_read_b128 v[8:11], v13 offset:{L_LS}')
    a(f's_mul_i32 s9, s6, 2176\nv_lshlrev_b32 v15, 6, v14\nv_add_u32 v15, v15, v5\nv_add_u32 v15, s9, v15')
    a(f'v_and_b32 v17, 3, v0\nv_mul_u32_u24 v16, 544, v17\nv_lshl_add_u32 v16, v14, 6, v16\nv_bfe_u32 v17, v0, 2, 2\nv_lshl_add_u32 v16, v17, 2, v16\nv_add_u32 v16, v13, v16')
    a(f'v_lshlrev_b32 v17, 2, v0')
    saddr('s15', (('s4', 15), ('s5', 8), ('s6', 13)), M1)
    a('s_mov_b32 s16, 0x05040100\ns_mov_b32 s17, 0x07060302')
    a('s_waitcnt lgkmcnt(0)')
    a('v_add_f32 v8, v8, v9\nv_add_f32 v10, v10, v11\nv_add_f32 v8, v8, v10\nv_rcp_f32 v18, v8')
    AT = RING
    b4_done = False
    for G in range(8):
        a.cand()
        for p in range(4):
            n = 64 + 8*G + 2*p
            k0, k1 = slot(st['where'][n]), slot(st['where'][n+1])
            a(f's_waitcnt vmcnt({st["I"] - (n+2)})')
            for d in range(4):
                a(f'v_perm_b32 v{AT+8*d+p}, v{k1+d}, v{k0+d}, s16\nv_perm_b32 v{AT+8*d+4+p}, v{k1+d}, v{k0+d}, s17')
            st['free'] += [st['where'][n], st['where'][n+1]]
            C = n + 2
            while st['I'] < C + lead_ss and can_issue(): issue(pace=False)
            if st['I'] == 128 and not b4_done:
                a('s_barrier'); b4_done = True
                a(f'v_mov_b32 v12, 0\nds_read_b32 v12, v12 offset:{L_FAST}\ns_waitcnt lgkmcnt(0)\nv_readfirstlane_b32 s39, v12')
                stamp('S', 'lastiss', SST)
        if G == 7: stamp('S', 'lastdata', SST)
        for dd in range(8):
            a(f'v_mfma_f32_16x16x32_bf16 v[{ACC+4*dd}:{ACC+4*dd+3}], v[{AT+4*dd}:{AT+4*dd+3}], v[{P+4*G}:{P+4*G+3}], {"0" if G == 0 else f"v[{ACC+4*dd}:{ACC+4*dd+3}]"}')
    a('s_mov_b32 exec_lo, 0x000f000f\ns_mov_b32 exec_hi, 0x000f000f')
    for dd in range(8): a(f'ds_write_b128 v15, v[{ACC+4*dd}:{ACC+4*dd+3}] offset:{L_EP + dd*272}')
    a('s_mov_b64 exec, -1\ns_waitcnt lgkmcnt(0)')
    a('s_barrier')
    for w in range(4): a(f'ds_read_b32 v{4+2*w}, v16 offset:{L_EP + w*2176}\nds_read_b32 v{5+2*w}, v16 offset:{L_EP + w*2176 + 272}')
    a('s_waitcnt lgkmcnt(4)\nv_add_f32 v4, v4, v6\nv_add_f32 v5, v5, v7\ns_waitcnt lgkmcnt(0)\nv_add_f32 v8, v8, v10\nv_add_f32 v9, v9, v11')
    a('v_add_f32 v4, v4, v8\nv_add_f32 v5, v5, v9\nv_mul_f32 v4, v4, v18\nv_mul_f32 v5, v5, v18\nv_cvt_pk_bf16_f32 v4, v4, v5\nv_min_u32 v4, -2, v4')
    dual_store(f'buffer_store_dword v4, v17, {srd(SWS)}, s15 offen', 'm1')
    stamp('S', 'pub', SST)
    stamp_store(SST)
    a('s_endpgm')

    a('L_Hmid:')
    a.cand()
    W8, WOB, GUB, WDR, WDF, A1, DW, Y = 28, 44, 60, 76, 84, 100, 132, 164
    VM = 17
    a('v_lshrrev_b32 v3, 4, v0\nv_and_b32 v4, 15, v0\nv_lshlrev_b32 v5, 4, v3\nv_and_b32 v6, 7, v0')
    a('s_mov_b32 s12, 0xffff0000\ns_lshl_b32 s29, s4, 2\ns_add_u32 s29, s29, s18')
    a(f'v_lshlrev_b32 v7, 1, v0\ns_lshl_b32 s9, s17, 7\nbuffer_load_ushort v8, v7, {srd(SX)}, s9 offen')
    a('v_lshlrev_b32 v25, 2, v0\nv_lshlrev_b32 v18, 3, v0\nv_lshlrev_b32 v19, 4, v0')
    a('v_lshlrev_b32 v20, 8, v4\nv_add_u32 v20, v20, v5\nv_add_u32 v7, 0x1000, v20')
    saddr('s20', (('s29', 13), ('s6', 6)), M1)
    saddr('s21', (('s17', 13), ('s29', 8)), M2)
    saddr('s22', (('s17', 13), ('s6', 11)), M2)
    a(f'v_lshlrev_b32 v23, 4, v4\nv_lshl_add_u32 v23, v3, 2, v23')
    a('v_and_b32 v12, 3, v0\nv_cmp_eq_u32 vcc, 1, v12\nv_lshlrev_b32 v21, 5, v3\nv_add_u32 v13, 0x100, v21\nv_cndmask_b32 v24, v21, v13, vcc')
    lanetag(16, 12)
    a(f'v_and_b32 v12, 1, v0\nv_lshlrev_b32 v12, 1, v12'); lanetag(1, 12); a('v_add_u32 v12, 1, v12'); lanetag(2, 12)
    a(f'v_mov_b32 v{VM}, {TAGM}')
    a(f's_lshl_b32 s9, s6, 8\ns_add_u32 s9, s9, {L_YW}\nv_add_u32 v26, s9, v25')
    a(f'v_lshlrev_b32 v27, 4, v4\nv_lshl_add_u32 v27, v3, 11, v27')
    saddr('s23', (('s29', 14), ('s17', 8), ('s6', 12)), MF)
    saddr('s24', (('s29', 14), ('s17', 11)), MF)
    saddr('s25', (('s4', 16), ('s5', 11), ('s6', 9)), M3)
    saddr('s27', (('s29', 7),), LAM)
    a('s_lshl_b32 s9, s17, 1\ns_sub_u32 s28, s4, s9\ns_add_u32 s28, s28, 14\ns_mul_i32 s9, s28, 37\ns_lshr_b32 s9, s9, 8\ns_mul_i32 s9, s9, 7\ns_sub_u32 s28, s28, s9\ns_lshl_b32 s28, s28, 2\ns_add_u32 s28, s28, s18')
    a(f's_lshl_b32 s15, s17, 3\ns_add_u32 s15, s15, s28')
    a(f'v_and_b32 v12, 1, v0\nv_lshrrev_b32 v36, 1, v0\nv_lshlrev_b32 v36, 11, v36\nv_lshl_add_u32 v36, v12, 4, v36')
    saddr('s84', (('s15', 5), ('s6', 17)), M3)
    a('s_add_u32 s85, s84, 0x10000')
    a(f'v_lshl_add_u32 v37, v12, 2, v3\ns_lshl_b32 s9, s28, 5\nv_lshl_add_u32 v38, v37, 2, s9\nv_lshlrev_b32 v37, 1, v37\ns_lshl_b32 s15, s15, 4')
    a('s_getreg_b32 s38, hwreg(HW_REG_XCC_ID)\ns_and_b32 s38, s38, 15\ns_add_u32 s38, s38, s34')
    a.cand()
    a('s_cmp_lg_u32 s3, 0\ns_cbranch_scc1 L_xdone')
    saddr('s9', (('s4', 7), ('s5', 2)), XC)
    saddr('s11', (('s4', 9), ('s5', 2)), LAM)
    a(f's_mov_b64 exec, 1\nv_mov_b32 v10, s38\nv_mov_b32 v9, 0\nbuffer_store_dword v10, v9, {srd(SWS)}, s9 offen sc1\ns_mov_b64 exec, -1')
    a(f's_waitcnt vmcnt(0)\nv_lshlrev_b32 v8, 16, v8\nv_mov_b32 v9, 1.0\nds_write2st64_b32 v25, v8, v9 offset0:{L_HA//256} offset1:{L_HA//256+1}\ns_waitcnt lgkmcnt(0)')
    a('L_xdone:')
    def wo_issue():
        if dbg_now: return
        a('v_lshrrev_b32 v12, 3, v0\nv_lshlrev_b32 v12, 10, v12\nv_lshl_add_u32 v12, v6, 4, v12')
        saddr('s9', (('s29', 17), ('s6', 15), ('s17', 7)))
        a(f's_lshl_b32 s10, s6, 12\ns_add_u32 m0, s10, {L_WQ}')
        for m in range(4):
            a(f'buffer_load_dwordx4 v12, {srd(SWO)}, s9 offen nt lds')
            if m < 3: a('s_add_u32 m0, m0, 1024\ns_add_u32 s9, s9, 0x2000')
    def gu_addr():
        a(f'v_lshrrev_b32 v14, 3, v0\nv_mul_u32_u24 v14, 0xe00, v14\nv_lshl_add_u32 v14, v6, 4, v14')
        a(f's_mul_i32 s30, s17, {64*3584}\ns_mul_i32 s10, s6, {16*3584}\ns_add_u32 s30, s30, s10\ns_lshl_b32 s10, s29, 7\ns_add_u32 s30, s30, s10')
        a(f's_cmp_eq_u32 s4, 7\ns_cselect_b32 s30, 0x1000000, s30\ns_add_u32 s31, s30, {8*3584}')
        saddr('s32', (('s29', 16), ('s17', 13), ('s6', 8)))
        a('s_add_u32 s19, s32, 4096')
    def gu_issue():
        if dbg_now: return
        a(f's_lshl_b32 s13, s6, 11\ns_add_u32 m0, s13, {L_G}')
        a(f'buffer_load_dwordx4 v14, {srd(SG)}, s30 offen nt lds\ns_add_u32 m0, m0, 1024')
        a(f'buffer_load_dwordx4 v14, {srd(SG)}, s31 offen nt lds\ns_add_u32 m0, s13, {L_U}')
        a(f'buffer_load_dwordx4 v14, {srd(SU)}, s30 offen nt lds\ns_add_u32 m0, m0, 1024')
        a(f'buffer_load_dwordx4 v14, {srd(SU)}, s31 offen nt lds')
    def dn_issue():
        if dbg_now: return
        for k in range(8): a(f'buffer_load_dword v{WDR+k}, v25, {srd(SD)}, {"s32" if k < 4 else "s19"} offen offset:{(k & 3) * 1024} nt')
    def wo_read():
        for cg in range(4):
            for eh in range(2): a(f'ds_read_b64_tr_b16 v[{WOB+4*cg+2*eh}:{WOB+4*cg+2*eh+1}], v22 offset:{L_WQ + eh*512 + cg*32}')
    def gu_read():
        for s_ in range(2):
            for sb in range(2):
                for eh in range(2): a(f'ds_read_b64_tr_b16 v[{GUB+8*sb+4*s_+2*eh}:{GUB+8*sb+4*s_+2*eh+1}], v15 offset:{L_G + s_*4096 + eh*512 + sb*16}')
    def dn_unpack():
        for k in range(8): a(f'v_lshlrev_b32 v{WDF+2*k}, 16, v{WDR+k}\nv_and_b32 v{WDF+2*k+1}, s12, v{WDR+k}')
    gu_addr()
    a('v_lshlrev_b32 v15, 10, v3\nv_bfe_u32 v13, v0, 2, 2\nv_lshl_add_u32 v15, v13, 7, v15\nv_and_b32 v12, 3, v0\nv_lshl_add_u32 v22, v12, 3, v15\ns_lshl_b32 s9, s6, 12\nv_add_u32 v22, s9, v22')
    a(f'v_and_b32 v12, 1, v0\nv_lshl_add_u32 v15, v12, 3, v15\nv_bfe_u32 v12, v0, 1, 1\nv_mul_u32_u24 v12, {L_U - L_G}, v12\nv_add_u32 v15, v15, v12\ns_lshl_b32 s9, s6, 5\nv_add_u32 v15, s9, v15')
    a('s_barrier')
    a('s_barrier')
    a.cand()
    if touch:
        a(f'buffer_load_dwordx2 v[{Y}:{Y+1}], v18, {srd(SWS)}, s25 offen sc1')
        a(f's_cmp_lg_u32 s3, 1\ns_cbranch_scc1 L_not2\nbuffer_load_dword v{Y+4}, v25, {srd(SWS)}, s21 offen sc1\nL_not2:')
    if wf == 'mid': gu_issue(); dn_issue()
    saddr('s9', (('s4', 7),), XC)
    a('s_mov_b32 s14, 0\ns_mov_b32 exec_hi, 0')
    a('L_xpoll:')
    a(f'buffer_load_dword v8, v25, {srd(SWS)}, s9 offen sc1')
    a(f's_add_u32 s14, s14, 1\ns_cmp_gt_u32 s14, {SPIN}\ns_waitcnt vmcnt(0)\ns_cbranch_scc1 L_xout')
    a('v_subrev_u32 v9, s34, v8\nv_cmp_lt_u32 vcc, 15, v9\ns_cbranch_vccz L_xout\ns_sleep 16\ns_branch L_xpoll')
    a('L_xout:')
    a(f'v_cmp_ne_u32 vcc, s38, v8\ns_cmp_eq_u64 vcc, 0\ns_cselect_b32 s39, 1, 0\ns_mov_b64 exec, -1')
    a('s_cmp_lg_u32 s3, 0\ns_cbranch_scc1 L_nolam')
    a(f'v_and_b32 v12, 3, v0\nv_lshlrev_b32 v12, 4, v12\nds_read_b128 v[8:11], v12 offset:{L_MX}\nds_read_b128 v[{Y}:{Y+3}], v12 offset:{L_LS}\ns_mov_b32 s14, {LOG2E}\ns_waitcnt lgkmcnt(0)')
    a('v_max3_f32 v8, v8, v9, v10\nv_max_f32 v8, v8, v11'); rbf(8)
    a(f'v_add_f32 v9, v{Y}, v{Y+1}\nv_add_f32 v10, v{Y+2}, v{Y+3}\nv_add_f32 v9, v9, v10\nv_log_f32 v9, v9\nv_mul_f32 v8, s14, v8\nv_add_f32 v8, v8, v9\nv_min_u32 v8, -2, v8')
    a(f'v_lshlrev_b32 v12, 7, v0\nv_mov_b32 v9, s39\nv_mov_b32 v10, 0\ns_mov_b64 exec, 15\nds_write_b32 v10, v9 offset:{L_FAST}')
    dual_store(f'buffer_store_dword v8, v12, {srd(SWS)}, s11 offen', 'lam')
    a('s_mov_b64 exec, -1')
    a('L_nolam:')
    a.cand()
    a('s_mov_b32 s14, 0')
    a('L_lpoll:')
    a(f's_sleep {lamdelay}')
    a(f'buffer_load_dwordx4 v[{W8}:{W8+3}], v5, {srd(SWS)}, s27 offen sc1\nbuffer_load_dwordx4 v[{W8+4}:{W8+7}], v5, {srd(SWS)}, s27 offen offset:64 sc1')
    a(f's_add_u32 s14, s14, 1\ns_cmp_gt_u32 s14, {SPIN}\ns_waitcnt vmcnt(0) lgkmcnt(0)\ns_cbranch_scc1 L_ldone')
    a(f'v_max3_u32 v8, v{W8}, v{W8+1}, v{W8+2}\nv_max3_u32 v9, v{W8+3}, v{W8+4}, v{W8+5}\nv_max3_u32 v8, v8, v{W8+6}, v{W8+7}\nv_max_u32 v8, v8, v9\nv_cmp_eq_u32 vcc, -1, v8')
    a('s_cbranch_vccnz L_lpoll')
    a('L_ldone:')
    a(f'v_max3_f32 v8, v{W8}, v{W8+1}, v{W8+2}\nv_max3_f32 v9, v{W8+3}, v{W8+4}, v{W8+5}\nv_max3_f32 v8, v8, v{W8+6}, v{W8+7}\nv_max_f32 v8, v8, v9')
    crossg(8, 9, 'max')
    for r in range(8): a(f'v_sub_f32 v{W8+r}, v{W8+r}, v8')
    for r in range(8): a(f'v_exp_f32 v{W8+r}, v{W8+r}')
    a(f'v_add_f32 v8, v{W8}, v{W8+1}')
    for r in range(2, 8): a(f'v_add_f32 v8, v8, v{W8+r}')
    crossg(8, 9, 'add')
    a('v_rcp_f32 v8, v8')
    for r in range(8): a(f'v_mul_f32 v{W8+r}, v{W8+r}, v8')
    stamp('H', 'lam', HST)
    R = Y + 4
    m1_loads = [f'buffer_load_dwordx4 v[{A1+4*t}:{A1+4*t+3}], {("v20", "v7")[t]}, {srd(SWS)}, s20 offen sc1' for t in range(2)]
    m2_loads = [f'buffer_load_dwordx4 v[{Y+4*j}:{Y+4*j+3}], v19, {srd(SWS)}, s22 offen offset:{j*1024} sc1' for j in range(2)]
    mf_loads = [f'buffer_load_dwordx4 v[{A1+4*j}:{A1+4*j+3}], v19, {srd(SWS)}, s24 offen offset:{j*1024} sc1' for j in range(2)]
    m3_loads = [f'buffer_load_dwordx4 v[{R+4*m}:{R+4*m+3}], v36, {srd(SWS)}, s{84+m} offen sc1' for m in range(2)]
    if '1' in early:
        for l in m1_loads: a(l)
    a('s_cmp_eq_u32 s4, 7\ns_cbranch_scc1 L_noearly')
    if '2' in early:
        for l in m2_loads: a(l)
    if 'f' in early:
        a('s_cmp_lg_u32 s3, 1\ns_cbranch_scc1 L_noearly2')
        for l in mf_loads: a(l)
        a('L_noearly2:')
    if '3' in early:
        a('s_cmp_gt_u32 s28, 7\ns_cbranch_scc1 L_noearly')
        for l in m3_loads: a(l)
    a('L_noearly:')
    a('s_waitcnt vmcnt(0)')
    a.cand()
    a('s_barrier')
    wo_issue()
    if wf == 'b4': gu_issue(); dn_issue()
    nwf = 12 if (wf == 'b4' and not dbg_now) else 0
    a('s_barrier')
    stamp('H', 'b5', HST)
    if dbg_notail:
        stamp('H', 'out', HST); a('s_branch L_Hend')
    a.cand()
    names = ('p1', 'p2', 'p25', 'p3')
    def poll(name, loads, base, tmp=8, tagged=True, after_first=None):
        n = len(loads); nreg = 4 * n
        a('s_mov_b32 s14, 0')
        dl = pd[names.index(name)]
        if name == 'p25' and local and pdslow: a(f's_cmp_lg_u32 s39, 0\ns_cbranch_scc1 L_{name}\ns_sleep {pdslow}')
        elif dl: a(f's_sleep {dl}')
        if after_first:
            for l in loads: a(l)
            after_first()
            a(f's_branch L_{name}_c')
        a(f'L_{name}:')
        for l in loads: a(l)
        a(f's_add_u32 s14, s14, 1\ns_cmp_gt_u32 s14, {SPIN}\ns_cbranch_scc1 L_{name}_x')
        if tagged:
            a(f's_waitcnt vmcnt(0)\nL_{name}_c:')
            for k in range(n):
                for e in range(4):
                    if k == 0: a(f'v_xor_b32 v{tmp+e}, s{34+e}, v{base+e}')
                    else: a(f'v_bitop3_b32 v{tmp+e}, v{tmp+e}, v{base+4*k+e}, s{34+e} bitop3:0xf6')
            a(f'v_or3_b32 v{tmp}, v{tmp}, v{tmp+1}, v{tmp+2}\nv_bitop3_b32 v{tmp}, v{tmp}, v{tmp+3}, v{VM} bitop3:0xa8\nv_cmp_ne_u32 vcc, 0, v{tmp}')
        else:
            a(f's_waitcnt vmcnt(0)\nL_{name}_c:')
            a(f'v_max3_u32 v{tmp}, v{base}, v{base+1}, v{base+2}\nv_max3_u32 v{tmp+1}, v{base+3}, v{base+4}, v{base+5}\nv_max3_u32 v{tmp}, v{tmp}, v{base+6}, v{base+7}\nv_max_u32 v{tmp}, v{tmp}, v{tmp+1}')
            a(f'v_cmp_eq_u32 vcc, -1, v{tmp}')
        a(f's_and_b64 exec, exec, vcc\ns_cbranch_execnz L_{name}')
        a(f'L_{name}_x:')
        a('s_mov_b64 exec, -1')
        if stamps is True: a(f's_add_u32 s14, s14, 1\nv_writelane_b32 v{HST}, s14, {40 + names.index(name)}')
    def p1_first():
        a(f's_waitcnt vmcnt({nwf + 2})'); wo_read(); a('s_waitcnt vmcnt(0)')
    poll('p1', m1_loads, A1, tagged=False, after_first=p1_first)
    a('s_waitcnt vmcnt(0) lgkmcnt(0)')
    stamp('H', 'hop1', HST)
    for cg in range(4):
        for t in range(2):
            a(f'v_mfma_f32_16x16x32_bf16 v[{DW+8*cg+4*t}:{DW+8*cg+4*t+3}], v[{A1+4*t}:{A1+4*t+3}], v[{WOB+4*cg}:{WOB+4*cg+3}], 0')
    if wf == 'hop1': gu_issue()
    for cg in (0, 2, 1, 3):
        a(f'v_mul_f32 v{8+cg}, v{W8}, v{DW+8*cg}')
        for r in range(1, 8): a(f'v_fmac_f32 v{8+cg}, v{W8+r}, v{DW+8*cg+r}')
    a('v_permlane32_swap_b32 v8, v10\nv_add_f32 v8, v8, v10\nv_permlane32_swap_b32 v9, v11\nv_add_f32 v9, v9, v11\nv_permlane16_swap_b32 v8, v9\nv_add_f32 v8, v8, v9')
    a('ds_write_b32 v26, v8\ns_waitcnt lgkmcnt(0)')
    a('s_barrier')
    a('s_cmp_lg_u32 s3, 0\ns_cbranch_scc1 L_nowpub')
    a(f'ds_read2st64_b32 v[8:9], v25 offset0:{L_YW//256} offset1:{L_YW//256+1}\nds_read2st64_b32 v[10:11], v25 offset0:{L_YW//256+2} offset1:{L_YW//256+3}')
    a(f's_waitcnt lgkmcnt(0)\nv_add_f32 v8, v8, v9\nv_add_f32 v10, v10, v11\nv_add_f32 v8, v8, v10\nv_bfi_b32 v8, v{VM}, v16, v8')
    a(f'buffer_store_dword v8, v25, {srd(SWS)}, s21 offen sc1')
    a('L_nowpub:')
    stamp('H', 'wpub', HST)
    a('s_cmp_lg_u32 s4, 7\ns_cbranch_scc1 L_F')
    a(f'v_and_b32 v8, v{VM}, v1\nv_and_b32 v9, v{VM}, v2\nbuffer_store_dwordx2 v[8:9], v18, {srd(SWS)}, s25 offen sc1\ns_branch L_Hend')
    a('L_F:')
    if wf != 'hop1': gu_read(); dn_unpack()
    a.cand()
    def p2_first():
        npt = 0
        if local and pretouch:
            for l in mf_loads: a(l)
            npt = 2
        if wf == 'hop1' and not dbg_now:
            dn_issue(); npt += 8
        a(f's_waitcnt vmcnt({npt})')
    poll('p2', m2_loads, Y, after_first=p2_first)
    stamp('H', 'hop2', HST)
    for e in range(4): a(f'v_add_f32 v{Y+e}, v{Y+e}, v{Y+4+e}')
    a(f'v_permlane32_swap_b32 v{Y}, v{Y+2}\nv_permlane32_swap_b32 v{Y+1}, v{Y+3}\nv_add_f32 v{Y}, v{Y}, v{Y+2}\nv_add_f32 v{Y+1}, v{Y+1}, v{Y+3}')
    a(f'v_permlane16_swap_b32 v{Y}, v{Y+1}\nv_add_f32 v8, v{Y}, v{Y+1}')
    a(f'ds_add_f32 v23, v8 offset:{L_HA}\ns_waitcnt lgkmcnt(0)')
    a('s_barrier')
    for k in range(4): a(f'ds_read_b128 v[{Y+4*k}:{Y+4*k+3}], v24 offset:{L_HA + (k >> 1)*128 + (k & 1)*16}')
    if wf == 'hop1': gu_read()
    nx = 8 if wf == 'hop1' else 0
    AH = DW + 16
    for s_ in range(2):
        a(f's_waitcnt lgkmcnt({2 - 2*s_ + nx})')
        for d in range(4): a(f'v_cvt_pk_bf16_f32 v{AH+4*s_+d}, v{Y+8*s_+2*d}, v{Y+8*s_+2*d+1}')
    for s_ in range(2):
        a(f'v_mfma_f32_16x16x32_bf16 v[{DW+8}:{DW+11}], v[{AH+4*s_}:{AH+4*s_+3}], v[{AH+4*s_}:{AH+4*s_+3}], {"0" if s_ == 0 else f"v[{DW+8}:{DW+11}]"}')
        if nx: a(f's_waitcnt lgkmcnt({4 - 4*s_})')
        for sb in range(2):
            a(f'v_mfma_f32_16x16x32_bf16 v[{DW+4*sb}:{DW+4*sb+3}], v[{AH+4*s_}:{AH+4*s_+3}], v[{GUB+8*sb+4*s_}:{GUB+8*sb+4*s_+3}], {"0" if s_ == 0 else f"v[{DW+4*sb}:{DW+4*sb+3}]"}')
    a('s_mov_b32 exec_hi, 0')
    a(f'v_mov_b32_dpp v10, v{DW+8} quad_perm:[0,0,2,3] {FULL}\nv_mov_b32_dpp v11, v{DW+9} quad_perm:[0,0,2,3] {FULL}')
    a(f'v_bfi_b32 v10, v{VM}, s36, v10\nv_bfi_b32 v11, v{VM}, s37, v11')
    a(f'v_mov_b32_dpp v{DW}, v{DW+4} quad_perm:[0,1,2,3] row_mask:2 bank_mask:0xf\nv_mov_b32_dpp v{DW+1}, v{DW+5} quad_perm:[0,1,2,3] row_mask:2 bank_mask:0xf')
    a(f'v_bfi_b32 v8, v{VM}, s34, v{DW}\nv_bfi_b32 v9, v{VM}, s35, v{DW+1}')
    a('s_waitcnt vmcnt(0)')
    dual_store(f'buffer_store_dwordx4 v[8:11], v27, {srd(SWS)}, s23 offen', 'mf')
    a('s_mov_b64 exec, -1')
    stamp('H', 'f1pub', HST)
    a.cand()
    a('s_mov_b32 s13, 0x3b000000\ns_mov_b32 s16, 0xc0135761\ns_mov_b32 s26, 0xbdd2d3e8')
    if wf == 'hop1': dn_unpack()
    poll('p25', mf_loads, A1, tmp=12)
    a('s_waitcnt vmcnt(0)')
    stamp('H', 'hop25', HST)
    Z = A1
    for e in range(4): a(f'v_add_f32 v{Z+e}, v{Z+e}, v{Z+4+e}')
    for e in range(4): a(f'v_mov_b32 v{Z+4+e}, v{Z+e}')
    for e in range(4): a(f'v_permlane16_swap_b32 v{Z+e}, v{Z+4+e}')
    for e in range(4): a(f'v_add_f32 v{Z+e}, v{Z+e}, v{Z+4+e}')
    for e in range(4): a(f'v_mov_b32 v{Z+4+e}, v{Z+e}')
    for e in (3, 2, 0, 1): a(f'v_permlane32_swap_b32 v{Z+e}, v{Z+4+e}')
    for e in (3, 2, 0, 1): a(f'v_add_f32 v{Z+e}, v{Z+e}, v{Z+4+e}')
    a(f'v_mul_f32 v13, s13, v{Z+3}\nv_mul_f32 v14, v13, v13\nv_fma_f32 v12, v{Z+2}, s13, -v14\nv_max_f32 v12, 0, v12\nv_add_f32 v12, 0x3727c5ac, v12\nv_rsq_f32 v12, v12')
    a(f'v_fma_f32 v14, -v13, v{Z+1}, v{Z}\nv_mul_f32 v14, v14, v12')
    a('v_mul_f32 v15, v14, v14\nv_mov_b32 v12, s16\nv_fmac_f32 v12, s26, v15\nv_mul_f32 v12, v12, v14\nv_exp_f32 v12, v12')
    a(f'v_mov_b32_dpp v15, v14 row_ror:8 {FULL}')
    a('v_add_f32 v12, 1.0, v12\nv_rcp_f32 v12, v12\nv_mul_f32 v14, v14, v15\nv_mul_f32 v14, v14, v12')
    for k in range(2):
        a(f'v_mul_f32_dpp v{Y+2*k}, v14, v{WDF+2*k} row_newbcast:{k} {FULL}\nv_mul_f32_dpp v{Y+2*k+1}, v14, v{WDF+2*k+1} row_newbcast:{k} {FULL}')
    for k in range(2, 8):
        o = Y + 2 * (k & 1)
        a(f'v_fmac_f32_dpp v{o}, v14, v{WDF+2*k} row_newbcast:{k} {FULL}\nv_fmac_f32_dpp v{o+1}, v14, v{WDF+2*k+1} row_newbcast:{k} {FULL}')
    a(f'v_add_f32 v{Y}, v{Y}, v{Y+2}\nv_add_f32 v{Y+1}, v{Y+1}, v{Y+3}\nv_bfi_b32 v{Y}, v{VM}, v1, v{Y}\nv_bfi_b32 v{Y+1}, v{VM}, v2, v{Y+1}')
    a(f'buffer_store_dwordx2 v[{Y}:{Y+1}], v18, {srd(SWS)}, s25 offen sc1')
    stamp('H', 'fpub', HST)
    a('s_cmp_gt_u32 s28, 7\ns_cbranch_scc1 L_Hend')
    a.cand()
    poll('p3', m3_loads, R)
    stamp('H', 'hop3', HST)
    for e in range(4): a(f'v_add_f32 v{R+e}, v{R+e}, v{R+4+e}')
    a(f'v_permlane32_swap_b32 v{R}, v{R+2}\nv_permlane32_swap_b32 v{R+1}, v{R+3}\nv_add_f32 v{R}, v{R}, v{R+2}\nv_add_f32 v{R+1}, v{R+1}, v{R+3}')
    a(f'v_permlane16_swap_b32 v{R}, v{R+1}\nv_add_f32 v8, v{R}, v{R+1}')
    a(f'v_add_f32_dpp v8, v8, v8 row_ror:8 {FULL}\nv_add_f32_dpp v8, v8, v8 row_ror:4 {FULL}\nv_add_f32_dpp v8, v8, v8 quad_perm:[2,3,0,1] {FULL}')
    a('s_mov_b32 exec_lo, 0x00030003\ns_mov_b32 exec_hi, 0x00030003')
    a(f'ds_add_f32 v38, v8 offset:{L_HA}\ns_waitcnt lgkmcnt(0)')
    a('s_barrier')
    a('s_cmp_lg_u32 s3, 0\ns_cbranch_scc1 L_Hend')
    for k in range(dbg_sleep): a('s_sleep 125')
    for k in range(dbg_rtt):
        a(f's_lshl_b32 s9, s2, 16\ns_add_u32 s9, s9, {0x1000000 + k * 4096}\nbuffer_load_dword v9, v37, {srd(SWS)}, s9 offen sc1\ns_waitcnt vmcnt(0)')
    a(f'ds_read_b32 v8, v38 offset:{L_HA}\ns_waitcnt lgkmcnt(0)\nv_cvt_pk_bf16_f32 v8, v8, v8')
    a(f'buffer_store_short v8, v37, {srd(SO)}, s15 offen')
    a(f's_cmp_lg_u32 s2, 0\ns_cbranch_scc1 L_noep\ns_mov_b64 exec, 1\nv_mov_b32 v9, s34\nv_mov_b32 v10, {EPOCH}\nbuffer_store_dword v9, v10, {srd(SWS)}, 0 offen sc1\nL_noep:')
    stamp('H', 'out', HST)
    a('L_Hend:')
    stamp_store(HST)
    a('L_end:')
    a('s_endpgm')

    head = HEADER + f'; Written by gen/gen.py (own generator): one persistent launch, 256 workgroups x 8 waves.\n; @launch grid=(256,1,1) block=(512,1,1) lds={LDS_BYTES}\n'
    pre = f'.amdgcn_target "amdgcn-amd-amdhsa--gfx950"\n.text\n.globl {KN}\n.p2align 8\n.type {KN},@function\n'
    post = f'''.section .rodata,"a"
.p2align 6
.amdhsa_kernel {KN}
  .amdhsa_next_free_vgpr 256
  .amdhsa_next_free_sgpr 96
  .amdhsa_accum_offset 256
  .amdhsa_group_segment_fixed_size 0
  .amdhsa_kernarg_size 96
  .amdhsa_user_sgpr_count 2
  .amdhsa_user_sgpr_kernarg_segment_ptr 1
  .amdhsa_system_sgpr_workgroup_id_x 1
  .amdhsa_float_denorm_mode_32 3
.end_amdhsa_kernel
'''
    if not warm:
        return head + pre + '\n'.join(a.render(chosen=[])) + '\n' + post, nst
    saveL = list(a.L)
    a.L = [l.replace('@W0', 'L_warm_end').replace('@W1', 'L_warm_end').replace('@W2', 'L_warm_end') for l in saveL]
    syms = assemble_syms(pre + '\n'.join(a.render(None)) + '\n')
    pos = [syms[f'L_cand{n}'] for n in range(a.ncand)]
    end = syms['L_end']
    chosen = []; last = None
    for n in range(a.ncand):
        nxt = pos[n+1] if n + 1 < a.ncand else end
        if last is None or nxt - last > 900:
            chosen.append(n); last = pos[n]
    k = len(chosen)
    ent = [0, (k + 2) // 3, (2 * k + 2) // 3]
    a.L = [l.replace('@W0', f'L_pad{ent[0]}').replace('@W1', f'L_pad{ent[1]}').replace('@W2', f'L_pad{ent[2]}') for l in saveL]
    body = a.render(chosen)
    gaps = [pos[chosen[i+1]] - pos[chosen[i]] for i in range(k-1)] + [end - pos[chosen[-1]]]
    print('pads', k, 'first', pos[chosen[0]], 'gaps', gaps, 'code bytes', end, file=sys.stderr)
    return head + pre + '\n'.join(body) + '\n' + post, nst

if __name__ == '__main__':
    kw = eval('dict(' + (sys.argv[2] if len(sys.argv) > 2 else '') + ')')
    s, nst = gen(**kw)
    open(sys.argv[1], 'w').write(s)
    if nst: print(nst)
```

```python
import sys
from asmlib import Asm, assemble_syms
NAME = 'sequential_preLN__gqa_block_cached__glu_gated_geglu__decode'
KN = NAME + '_kernel'

QP   = 0x00000
LAM  = 0x10000
XC   = 0x18000
EPOCH = 0x19000
PF   = 0x1a000
M2   = 0x20000
M1   = 0x40000
M3   = 0x80000
MF   = 0x100000
STAMP = 0x8000000
L_WQ = 0
L_G  = 16384
L_U  = 24576 + 64
L_XN = 33792
L_Q  = 34816
L_MX = 35840
L_LS = 35904
L_FAST = 35968
L_EP = 36864
L_YW = 45568
L_HP = 46592
L_ACT = 47616
L_D  = 47872
LDS_BYTES = 56064
SX, SK, SV, SWQ, SWO, SG, SU, SD, SO, SDBG, SWS = 40, 44, 48, 52, 56, 60, 64, 68, 72, 76, 80
def srd(b): return f's[{b}:{b+3}]'
LOG2E = 0x3fb8aa3b
SPIN = 1 << 16
TAGM = 0x3ff
FULL = 'row_mask:0xf bank_mask:0xf'

HEADER = open('cdna_kernels/' + NAME + '.s.ref').read().split('; Override launch')[0]

def gen(D=7, lead_ss=8, lead_sm=16, lead_end=None, n_end=0, wg='b4', wu='b4', wd='hop1', qdelay=7, pd=(2, 5, 0, 11), pdslow=8, local=True, pretouch=False, clrdelay=0, touch=True, lamdelay=64, early='f', tlbwarm=False,
        klin=False, stamps=False, warm=True, nslots=40, dbgwg=0, dbg_now=False, dbg_notail=False, dbg_sleep=0, dbg_extra=0, dbg_rtt=0):
    a = Asm()
    nst = {}
    stubs = []
    SST, HST = (248 if klin else 88), 200
    assert nslots <= (36 if klin else 40)
    def stamp(role, name, vreg):
        if not stamps: return
        if stamps == 'lite' and name not in ('pub', 'out'): return
        idx = nst.setdefault(role, []); idx.append(name)
        a(f's_memrealtime s[90:91]\ns_waitcnt lgkmcnt(0)\nv_writelane_b32 v{vreg}, s90, {len(idx)-1}')
    def stamp_store(vreg):
        if not stamps: return
        if stamps == 'dbg':
            if vreg == SST: return
            a(f's_cmp_lg_u32 s2, {dbgwg}\ns_cbranch_scc1 L_nodbg\ns_cmp_lg_u32 s3, 0\ns_cbranch_scc1 L_nodbg')
            a(f's_mov_b64 exec, -1\nv_subrev_u32 v{vreg}, s94, v{vreg}\nv_lshlrev_b32 v{vreg+1}, 2, v0\nbuffer_store_dword v{vreg}, v{vreg+1}, {srd(SDBG)}, 0 offen\nL_nodbg:')
            return
        a(f's_lshl_b32 s92, s2, 3\ns_add_u32 s92, s92, s3\ns_lshl_b32 s92, s92, 8\ns_add_u32 s92, s92, {STAMP}')
        a(f's_mov_b64 exec, -1\nv_lshlrev_b32 v{vreg+1}, 2, v0\nbuffer_store_dword v{vreg}, v{vreg+1}, {srd(SWS)}, s92 offen')
    def crossg(r, t, op='add'):
        a(f'v_mov_b32 v{t}, v{r}\nv_permlane16_swap_b32 v{t}, v{r}\nv_{op}_f32 v{r}, v{r}, v{t}')
        a(f'v_mov_b32 v{t}, v{r}\nv_permlane32_swap_b32 v{t}, v{r}\nv_{op}_f32 v{r}, v{r}, v{t}')
    def allreduce(r, t, op='add'):
        for sh in (8, 4, 2, 1): a(f'v_{op}_f32_dpp v{r}, v{r}, v{r} row_ror:{sh} {FULL}')
        crossg(r, t, op)
    def rbf(r):
        a(f'v_cvt_pk_bf16_f32 v{r}, v{r}, v{r}\nv_lshlrev_b32 v{r}, 16, v{r}')
    def saddr(dst, terms, const=0, tmp='s10'):
        first = True
        for reg, sh in terms:
            t = dst if first else tmp
            a(f's_lshl_b32 {t}, {reg}, {sh}' if sh else f's_mov_b32 {t}, {reg}')
            if not first: a(f's_add_u32 {dst}, {dst}, {tmp}')
            first = False
        if const: a(f's_add_u32 {dst}, {dst}, {const}')
    def tags():
        a('s_mul_i32 s34, s33, 1664525\ns_add_u32 s34, s34, 1013904223\ns_lshr_b32 s35, s34, 10\ns_lshr_b32 s36, s34, 20\ns_lshr_b32 s37, s34, 22')
    def lanetag(dst, idx):
        a(f'v_mul_u32_u24 v{dst}, 10, v{idx}\nv_min_u32 v{dst}, 22, v{dst}\nv_lshrrev_b32_e64 v{dst}, v{dst}, s34')
    def dual_store(ins, name):
        if not local:
            a(ins + ' sc1'); return
        a(f's_cmp_eq_u32 s39, 0\ns_cbranch_scc1 L_{name}_s\n{ins}\nL_{name}_e:')
        stubs.append(f'L_{name}_s:\n{ins} sc1\ns_branch L_{name}_e')

    a(f'{KN}:')
    a('s_cmp_ge_u32 s2, 256\ns_cbranch_scc1 L_end')
    if stamps: a('s_memrealtime s[94:95]')
    for b, off in ((SK, 8), (SX, 0), (SWQ, 24), (SWS, 88), (SV, 16), (SDBG, 80), (SWO, 32), (SG, 48), (SU, 56), (SD, 64), (SO, 72)):
        a(f's_load_dwordx2 s[{b}:{b+1}], s[0:1], {off}')
    a('v_lshrrev_b32 v1, 6, v0\nv_and_b32 v0, 63, v0')
    a('v_readfirstlane_b32 s3, v1')
    for b, n in ((SX, 1024), (SK, 64 << 20), (SV, 64 << 20), (SWQ, 4 << 20), (SWO, 4 << 20), (SG, 512 * 3584), (SU, 512 * 3584), (SD, 1792 * 1024), (SO, 1024), (SDBG, 256), (SWS, 268435456)):
        a(f's_mov_b32 s{b+2}, {n}\ns_mov_b32 s{b+3}, 0x20000')
    a('s_and_b32 s4, s2, 7\ns_lshr_b32 s5, s2, 3')
    a('s_and_b32 s6, s3, 3')
    a('s_cmp_lt_u32 s3, 4\ns_cbranch_scc1 L_H')
    RING = 96
    def slot(k): return RING + 4 * k
    a('v_and_b32 v1, 3, v0\nv_lshlrev_b32 v1, 8, v1\nv_lshrrev_b32 v2, 2, v0\nv_lshl_add_u32 v1, v2, 4, v1')
    a('v_lshlrev_b32 v2, 4, v0')
    saddr('s7', (('s4', 23), ('s5', 18), ('s6', 12)), tmp='s8')
    a('s_mov_b32 s8, s7')
    if stamps: a(f'v_mov_b32 v{SST}, 0')
    a('s_waitcnt lgkmcnt(0)')
    if stamps: a(f'v_writelane_b32 v{SST}, s94, 0'); nst['S'] = ['start']
    st = dict(I=0, free=list(range(nslots)), where={})
    def issue(pace=True):
        n = st['I']
        fl = st['free']
        k = next(x for x in fl if n < 64 or x >= 8)
        fl.remove(k); st['where'][n] = k
        if pace and n >= D: a(f's_waitcnt vmcnt({D-1})')
        if n == 64: a('s_mov_b32 s8, s7')
        a(f'buffer_load_dwordx4 v[{slot(k)}:{slot(k)+3}], {"v1" if (n < 64 and not klin) else "v2"}, {srd(SK if n < 64 else SV)}, s8 offen offset:{(n & 3) * 1024} nt')
        if n & 3 == 3 and n != 63 and n != 127: a('s_add_u32 s8, s8, 0x4000')
        st['I'] = n + 1
    def can_issue():
        n = st['I']
        return n < 128 and any(n < 64 or x >= 8 for x in st['free'])
    if dbg_extra:
        a('s_add_u32 s9, s7, 0x20000')
        for n in range(dbg_extra):
            if n >= D: a(f's_waitcnt vmcnt({D-1})')
            a(f'buffer_load_dwordx4 v[{slot(n % D)}:{slot(n % D)+3}], v2, {srd(SV)}, s9 offen offset:{(n & 3) * 1024} nt')
            if n & 3 == 3: a('s_add_u32 s9, s9, 0x4000')
        a('s_waitcnt vmcnt(0)')
    for n in range(nslots): issue()
    stamp('S', 'pref', SST)
    a('s_barrier')
    a('s_branch L_S')

    a('L_H:')
    if stamps: a(f'v_mov_b32 v{HST}, 0')
    a('s_and_b32 s17, s5, 7\ns_lshr_b32 s18, s5, 3')
    a('s_cmp_lg_u32 s3, 0\ns_cbranch_scc1 L_Hwarm')
    a('s_setprio 2')
    a('v_lshlrev_b32 v2, 4, v0')
    a('v_lshrrev_b32 v1, 3, v0\nv_lshlrev_b32 v1, 13, v1\nv_and_b32 v3, 7, v0\nv_lshl_add_u32 v1, v3, 4, v1')
    saddr('s8', (('s18', 20), ('s4', 10), ('s17', 7)))
    a(f's_mov_b32 m0, {L_WQ}')
    a('s_waitcnt lgkmcnt(0)')
    if stamps: a(f'v_writelane_b32 v{HST}, s94, 0'); nst['H'] = ['start']
    a(f's_load_dword s33, s[{SWS}:{SWS+1}], {EPOCH}')
    a(f'buffer_load_dwordx4 v[4:7], v2, {srd(SX)}, 0 offen')
    for m in range(16):
        a(f'buffer_load_dwordx4 v1, {srd(SWQ)}, s8 offen nt lds')
        if m < 15: a(f's_add_u32 m0, m0, 1024\ns_add_u32 s8, s8, 0x10000')
    a.cand()
    a('s_mov_b32 s12, 0xffff0000')
    a('s_waitcnt vmcnt(16)')
    for d in range(4): a(f'v_lshlrev_b32 v{8+2*d}, 16, v{4+d}\nv_and_b32 v{9+2*d}, s12, v{4+d}')
    a('v_add_f32 v16, v8, v9\nv_add_f32 v17, v10, v11\nv_add_f32 v18, v12, v13\nv_add_f32 v19, v14, v15\nv_add_f32 v16, v16, v17\nv_add_f32 v18, v18, v19\nv_add_f32 v16, v16, v18')
    allreduce(16, 17)
    a('v_mul_f32 v16, 0x3b000000, v16')
    a('v_sub_f32 v17, v8, v16\nv_mul_f32 v18, v17, v17')
    for e in range(1, 8): a(f'v_sub_f32 v17, v{8+e}, v16\nv_fmac_f32 v18, v17, v17')
    allreduce(18, 17)
    a('v_mul_f32 v18, 0x3b000000, v18'); rbf(18)
    a('v_add_f32 v18, 0x3727c5ac, v18'); rbf(18)
    a('v_sqrt_f32 v18, v18'); rbf(18)
    a('v_rcp_f32 v18, v18'); rbf(16)
    for e in range(8): a(f'v_sub_f32 v{8+e}, v{8+e}, v16')
    for d in range(4): a(f'v_cvt_pk_bf16_f32 v{4+d}, v{8+2*d}, v{9+2*d}')
    for d in range(4): a(f'v_lshlrev_b32 v{8+2*d}, 16, v{4+d}\nv_and_b32 v{9+2*d}, s12, v{4+d}')
    for e in range(8): a(f'v_mul_f32 v{8+e}, v{8+e}, v18')
    for d in range(4): a(f'v_cvt_pk_bf16_f32 v{4+d}, v{8+2*d}, v{9+2*d}')
    a(f'ds_write_b128 v2, v[4:7] offset:{L_XN}')
    a.cand()
    a('v_lshrrev_b32 v3, 4, v0\nv_lshlrev_b32 v16, 4, v3\ns_lshl_b32 s9, s18, 8\nv_add_u32 v16, s9, v16')
    a('v_lshlrev_b32 v17, 10, v3\nv_bfe_u32 v18, v0, 2, 2\nv_lshl_add_u32 v17, v18, 7, v17\nv_and_b32 v18, 3, v0\nv_lshl_add_u32 v17, v18, 3, v17')
    a('s_waitcnt lgkmcnt(0)')
    for s_ in range(4): a(f'ds_read_b128 v[{64+4*s_}:{67+4*s_}], v16 offset:{L_XN + s_*64}')
    tags()
    lanetag(19, 18)
    a(f'v_mov_b32 v20, {TAGM}')
    a('s_waitcnt vmcnt(0) lgkmcnt(0)')
    stamp('H', 'wq', HST)
    a.cand()
    order = [(s_, cg) for s_ in range(4) for cg in range(4)]
    def qmfma(q):
        s_, cg = order[q]
        a(f'v_mfma_f32_16x16x32_bf16 v[{24+4*cg}:{27+4*cg}], v[{64+4*s_}:{67+4*s_}], v[{128+4*q}:{131+4*q}], {"0" if s_ == 0 else f"v[{24+4*cg}:{27+4*cg}]"}')
    for q, (s_, cg) in enumerate(order):
        for eh in range(2): a(f'ds_read_b64_tr_b16 v[{128+4*q+2*eh}:{129+4*q+2*eh}], v17 offset:{L_WQ + s_*4096 + eh*512 + cg*32}')
        if q >= 4:
            a(f's_waitcnt lgkmcnt(8)'); qmfma(q - 4)
    for q in range(12, 16):
        a(f's_waitcnt lgkmcnt({2*(15-q)})'); qmfma(q)
    a('v_lshlrev_b32 v3, 2, v0')
    saddr('s9', (('s4', 13), ('s18', 11), ('s17', 8)), QP)
    saddr('s16', (('s4', 13),), QP); a('s_add_u32 s15, s16, 4096')
    for cg in range(1, 4): a(f'v_mov_b32_dpp v24, v{24+4*cg} quad_perm:[0,1,2,3] row_mask:{1 << cg} bank_mask:0xf')
    a('v_bfi_b32 v24, v20, v19, v24')
    a(f'buffer_store_dword v24, v3, {srd(SWS)}, s9 offen sc1')
    a('s_mov_b32 s14, 0')
    stamp('H', 'qpub', HST)
    a.cand()
    def tagcheck(base, n, tmp):
        for k in range(n):
            a(f's_waitcnt vmcnt({n-1-k})')
            for e in range(4):
                if k == 0: a(f'v_xor_b32 v{tmp+e}, s{34+e}, v{base+e}')
                else: a(f'v_bitop3_b32 v{tmp+e}, v{tmp+e}, v{base+4*k+e}, s{34+e} bitop3:0xf6')
        a(f'v_or3_b32 v{tmp}, v{tmp}, v{tmp+1}, v{tmp+2}\nv_bitop3_b32 v{tmp}, v{tmp}, v{tmp+3}, v{VM} bitop3:0xa8\nv_cmp_ne_u32 vcc, 0, v{tmp}')
    VM = 20
    a('L_qpoll:')
    if qdelay: a(f's_sleep {min(127, 8 * qdelay)}')
    for k in range(8):
        a(f'buffer_load_dwordx4 v[{64+4*k}:{67+4*k}], v2, {srd(SWS)}, {"s16" if k < 4 else "s15"} offen offset:{(k & 3) * 1024} sc1')
    a(f's_add_u32 s14, s14, 1\ns_cmp_gt_u32 s14, {SPIN}\ns_cbranch_scc1 L_qdone')
    tagcheck(64, 8, 8)
    a('s_and_b64 exec, exec, vcc\ns_cbranch_execnz L_qpoll')
    a('L_qdone:')
    a('s_mov_b64 exec, -1\ns_waitcnt vmcnt(0)')
    a('v_lshlrev_b32 v3, 3, v0')
    for e in range(8): a(f'v_add_f32 v{64+e}, v{64+e}, v{72+e}')
    for e in range(8): a(f'v_add_f32 v{80+e}, v{80+e}, v{88+e}')
    for e in range(8): a(f'v_add_f32 v{64+e}, v{64+e}, v{80+e}')
    for d in range(4): a(f'v_cvt_pk_bf16_f32 v{4+d}, v{64+2*d}, v{65+2*d}')
    a(f'ds_write2st64_b64 v3, v[4:5], v[6:7] offset0:{L_Q//512} offset1:{L_Q//512+1}')
    a('s_waitcnt lgkmcnt(0)')
    stamp('H', 'qgot', HST)
    a('s_setprio 0')
    a('s_branch L_Hb1')
    a('L_Hwarm:')
    a('v_mov_b32 v8, -1\nv_mov_b32 v9, -1\nv_mov_b32 v10, -1\nv_mov_b32 v11, -1\nv_lshlrev_b32 v2, 4, v0\nv_lshrrev_b32 v3, 4, v0\nv_and_b32 v4, 15, v0\nv_lshlrev_b32 v4, 4, v4')
    a('s_lshl_b32 s29, s4, 2\ns_add_u32 s29, s29, s18')
    a('s_waitcnt lgkmcnt(0)')
    if stamps: a(f'v_writelane_b32 v{HST}, s94, 0')
    for k in range(clrdelay): a('s_sleep 64')
    a(f's_load_dword s33, s[{SWS}:{SWS+1}], {EPOCH}')
    a('s_cmp_lg_u32 s3, 1\ns_cbranch_scc1 L_clre')
    a('v_lshl_add_u32 v12, v3, 13, v4\nv_lshlrev_b32 v14, 7, v0')
    saddr('s9', (('s4', 15), ('s5', 8)), M1)
    a(f'buffer_store_dwordx4 v[8:11], v12, {srd(SWS)}, s9 offen sc1')
    saddr('s9', (('s4', 9), ('s5', 2)), LAM)
    a(f's_mov_b64 exec, 15\nbuffer_store_dword v8, v14, {srd(SWS)}, s9 offen sc1\ns_mov_b64 exec, -1')
    a('L_clre:')
    if tlbwarm:
        a('s_cmp_lg_u32 s3, 2\ns_cbranch_scc1 L_tw\ns_mov_b64 exec, 1\nv_mov_b32 v12, 0')
        saddr('s9', (('s4', 23), ('s5', 18)))
        a(f'buffer_load_dword v13, v12, {srd(SV)}, s9 offen nt')
        saddr('s9', (('s29', 17), ('s17', 7)))
        a(f'buffer_load_dword v13, v12, {srd(SWO)}, s9 offen nt')
        a(f's_mul_i32 s9, s17, {64*3584}\ns_lshl_b32 s10, s29, 7\ns_add_u32 s9, s9, s10')
        a(f'buffer_load_dword v13, v12, {srd(SG)}, s9 offen nt\nbuffer_load_dword v13, v12, {srd(SU)}, s9 offen nt')
        saddr('s9', (('s29', 16), ('s17', 13)))
        a(f'buffer_load_dword v13, v12, {srd(SD)}, s9 offen nt\nbuffer_load_dword v13, v12, {srd(SO)}, 0 offen nt')
        a('s_mov_b64 exec, -1\nL_tw:')
    if warm:
        a('s_mov_b64 exec, 0')
        a('s_cmp_eq_u32 s3, 1\ns_cbranch_scc1 @W0\ns_cmp_eq_u32 s3, 2\ns_cbranch_scc1 @W1\ns_branch @W2')
        a('L_warm_end:')
        a('s_mov_b64 exec, -1')
        if stamps is True: a(f's_memrealtime s[90:91]\ns_waitcnt lgkmcnt(0)\nv_writelane_b32 v{HST}, s90, 1')
    a('s_waitcnt vmcnt(0) lgkmcnt(0)')
    tags()
    a('L_Hb1:')
    a('s_barrier')
    a('s_branch L_Hmid')

    a('L_S:')
    a.cand()
    Q, P, ACC = 20, 24, 56
    QM = (20, 16, 88, 92)
    if klin:
        a('v_and_b32 v1, 3, v0\nv_lshlrev_b32 v1, 8, v1\nv_bfe_u32 v4, v0, 2, 2\nv_lshl_add_u32 v1, v4, 6, v1')
        for m in range(4): a(f'ds_read_b128 v[{QM[m]}:{QM[m]+3}], v1 offset:{L_Q + 16*m}')
        a('s_mov_b32 s20, 0x55555555\ns_mov_b32 s21, s20\ns_not_b64 s[22:23], s[20:21]\ns_mov_b32 s24, 0x33333333\ns_mov_b32 s25, s24\ns_not_b64 s[26:27], s[24:25]')
    else:
        a(f'ds_read_b128 v[{Q}:{Q+3}], v1 offset:{L_Q}')
    a('s_mov_b32 s12, 0xffff0000\ns_mov_b32 s13, 0x3db504f3\nv_mov_b32 v3, 0xff800000')
    a(f'v_lshrrev_b32 v14, 4, v0')
    a('s_waitcnt lgkmcnt(0)')
    stamp('S', 'q', SST)
    lead = nslots
    for u in range(16):
        a.cand()
        ks = [slot(st['where'][4*u+e]) for e in range(4)]
        T = [ACC + 4*e for e in range(4)]
        a(f's_waitcnt vmcnt({st["I"] - (4*u+4)})')
        def refill():
            nonlocal lead
            for e in range(4): st['free'].append(st['where'][4*u+e])
            C = 4*u + 4
            lead = max(lead_ss, lead - 2)
            tgt = C + lead if u < 15 else C + lead_sm
            while st['I'] < tgt and can_issue(): issue(pace=(u < 15))
        if klin:
            Z = [ACC + 4*e for e in range(4)]; Yk = [ACC + 16 + 4*e for e in range(4)]; DA, DB = 240, 244
            def sel(dst, own, other, perm):
                for d in range(4): a(f'v_cndmask_b32_dpp v{dst+d}, v{other+d}, v{own+d}, vcc quad_perm:{perm} {FULL}')
            def km(m):
                a(f'v_mfma_f32_4x4x4_16b_bf16 v[{DA}:{DA+3}], v[{Yk[m]}:{Yk[m]+1}], v[{QM[m]}:{QM[m]+1}], {"0" if m == 0 else f"v[{DA}:{DA+3}]"}')
                a(f'v_mfma_f32_4x4x4_16b_bf16 v[{DB}:{DB+3}], v[{Yk[m]+2}:{Yk[m]+3}], v[{QM[m]+2}:{QM[m]+3}], {"0" if m == 0 else f"v[{DB}:{DB+3}]"}')
            a('s_mov_b64 vcc, s[20:21]'); sel(Z[0], ks[0], ks[1], '[1,0,3,2]'); sel(Z[2], ks[2], ks[3], '[1,0,3,2]')
            a('s_mov_b64 vcc, s[22:23]'); sel(Z[1], ks[1], ks[0], '[1,0,3,2]'); sel(Z[3], ks[3], ks[2], '[1,0,3,2]')
            refill()
            a('s_mov_b64 vcc, s[24:25]'); sel(Yk[0], Z[0], Z[2], '[2,3,0,1]'); sel(Yk[1], Z[1], Z[3], '[2,3,0,1]')
            a('s_mov_b64 vcc, s[26:27]'); km(0); sel(Yk[2], Z[2], Z[0], '[2,3,0,1]'); km(1); sel(Yk[3], Z[3], Z[1], '[2,3,0,1]'); km(2); a('s_nop 0'); km(3)
            for e in range(4): a(f'v_add_f32 v{T[e]}, v{DA+e}, v{DB+e}')
        else:
            for e in range(4): a(f'v_mfma_f32_4x4x4_16b_bf16 v[{T[e]}:{T[e]+3}], v[{ks[e]}:{ks[e]+1}], v[{Q}:{Q+1}], 0')
            for e in range(4): a(f'v_mfma_f32_4x4x4_16b_bf16 v[{T[e]}:{T[e]+3}], v[{ks[e]+2}:{ks[e]+3}], v[{Q+2}:{Q+3}], v[{T[e]}:{T[e]+3}]')
            refill()
            for e in range(4): a(f'v_permlane32_swap_b32 v{T[e]}, v{T[e]+2}\nv_permlane32_swap_b32 v{T[e]+1}, v{T[e]+3}')
            for e in range(4): a(f'v_add_f32 v{T[e]}, v{T[e]}, v{T[e]+2}\nv_add_f32 v{T[e]+1}, v{T[e]+1}, v{T[e]+3}')
            for e in range(4): a(f'v_permlane16_swap_b32 v{T[e]}, v{T[e]+1}')
            for e in range(4): a(f'v_add_f32 v{T[e]}, v{T[e]}, v{T[e]+1}')
        for e in range(4): a(f'v_add_f32_dpp v{T[e]+1}, v{T[e]}, v{T[e]} row_ror:4 {FULL}')
        for e in range(4): a(f'v_add_f32_dpp v{T[e]}, v{T[e]+1}, v{T[e]+1} row_ror:8 {FULL}')
        a(f'v_cvt_pk_bf16_f32 v5, v{T[0]}, v{T[1]}\nv_cvt_pk_bf16_f32 v6, v{T[2]}, v{T[3]}')
        a('v_lshlrev_b32 v7, 16, v5\nv_and_b32 v8, s12, v5\nv_lshlrev_b32 v9, 16, v6\nv_and_b32 v10, s12, v6')
        a('v_mul_f32 v7, s13, v7\nv_mul_f32 v8, s13, v8\nv_mul_f32 v9, s13, v9\nv_mul_f32 v10, s13, v10')
        a(f'v_cvt_pk_bf16_f32 v{P+2*u}, v7, v8\nv_cvt_pk_bf16_f32 v{P+2*u+1}, v9, v10')
        a('v_max3_f32 v3, v3, v7, v8\nv_max3_f32 v3, v3, v9, v10')
    stamp('S', 'kdone', SST)
    a.cand()
    crossg(3, 5, 'max')
    a(f'v_and_b32 v5, 3, v0\nv_lshlrev_b32 v5, 4, v5\ns_lshl_b32 s9, s6, 2\nv_add_u32 v6, s9, v5')
    a(f's_mov_b64 exec, 15\nds_write_b32 v6, v3 offset:{L_MX}\ns_mov_b64 exec, -1\ns_waitcnt lgkmcnt(0)')
    a('s_barrier')
    a(f'ds_read_b128 v[8:11], v5 offset:{L_MX}')
    a(f's_mov_b32 s14, {LOG2E}\nv_mov_b32 v4, 0')
    a('s_waitcnt lgkmcnt(0)')
    a('v_max3_f32 v3, v8, v9, v10\nv_max_f32 v3, v3, v11'); rbf(3)
    a('v_mul_f32 v3, s14, v3')
    for r in range(0, 32, 2):
        if r % 8 == 0: a.cand()
        a(f'v_lshlrev_b32 v7, 16, v{P+r}\nv_and_b32 v8, s12, v{P+r}\nv_lshlrev_b32 v9, 16, v{P+r+1}\nv_and_b32 v10, s12, v{P+r+1}')
        for t in range(7, 11): a(f'v_fma_f32 v{t}, v{t}, s14, -v3')
        for t in range(7, 11): a(f'v_exp_f32 v{t}, v{t}')
        a(f'v_cvt_pk_bf16_f32 v{P+r}, v7, v8\nv_add_f32 v7, v7, v8\nv_cvt_pk_bf16_f32 v{P+r+1}, v9, v10\nv_add_f32 v9, v9, v10\nv_add_f32 v4, v4, v7\nv_add_f32 v4, v4, v9')
        if r >= 2:
            for q in (3, 2, 1, 0):
                for k in (r - 2, r - 1): a(f'v_mov_b32_dpp v{P+k}, v{P+k} row_newbcast:{q} row_mask:0xf bank_mask:{1 << q}')
                if q: a(f'v_mov_b32 v11, v11')
    for q in (3, 2, 1, 0):
        for k in (30, 31): a(f'v_mov_b32_dpp v{P+k}, v{P+k} row_newbcast:{q} row_mask:0xf bank_mask:{1 << q}')
    crossg(4, 7, 'add')
    a(f's_mov_b64 exec, 15\nds_write_b32 v6, v4 offset:{L_LS}\ns_mov_b64 exec, -1\ns_waitcnt lgkmcnt(0)')
    a('s_barrier')
    stamp('S', 'smdone', SST)
    a(f's_lshl_b32 s9, s6, 4\nv_mov_b32 v13, s9\nds_read_b128 v[8:11], v13 offset:{L_LS}')
    a(f's_lshl_b32 s9, s6, 11\ns_add_u32 s9, s9, {L_EP}\nv_lshl_add_u32 v15, v0, 2, s9')
    a(f'v_and_b32 v17, 3, v0\nv_lshlrev_b32 v16, 9, v17\nv_and_b32 v17, 60, v0\nv_add_u32 v16, v16, v17\ns_lshl_b32 s9, s6, 6\ns_add_u32 s9, s9, {L_EP}\nv_add_u32 v16, s9, v16')
    a(f'v_lshlrev_b32 v17, 2, v0')
    saddr('s15', (('s4', 15), ('s5', 8), ('s6', 13)), M1)
    a('s_mov_b32 s16, 0x05040100\ns_mov_b32 s17, 0x07060302')
    a('s_waitcnt lgkmcnt(0)')
    a('v_add_f32 v8, v8, v9\nv_add_f32 v10, v10, v11\nv_add_f32 v8, v8, v10\nv_rcp_f32 v18, v8')
    AT = RING
    b4_done = False
    for G in range(8):
        a.cand()
        for p in range(4):
            n = 64 + 8*G + 2*p
            k0, k1 = slot(st['where'][n]), slot(st['where'][n+1])
            a(f's_waitcnt vmcnt({st["I"] - (n+2)})')
            for d in range(4):
                a(f'v_perm_b32 v{AT+8*d+p}, v{k1+d}, v{k0+d}, s16\nv_perm_b32 v{AT+8*d+4+p}, v{k1+d}, v{k0+d}, s17')
            st['free'] += [st['where'][n], st['where'][n+1]]
            C = n + 2
            ld_ = lead_end if (lead_end and C >= 128 - n_end) else lead_ss
            while st['I'] < C + ld_ and can_issue(): issue(pace=False)
            if st['I'] == 128 and not b4_done:
                a('s_barrier'); b4_done = True
                a(f'v_mov_b32 v12, 0\nds_read_b32 v12, v12 offset:{L_FAST}\ns_waitcnt lgkmcnt(0)\nv_readfirstlane_b32 s39, v12')
                stamp('S', 'lastiss', SST)
        if G == 7: stamp('S', 'lastdata', SST)
        for dd in range(8):
            a(f'v_mfma_f32_16x16x32_bf16 v[{ACC+4*dd}:{ACC+4*dd+3}], v[{P+4*G}:{P+4*G+3}], v[{AT+4*dd}:{AT+4*dd+3}], {"0" if G == 0 else f"v[{ACC+4*dd}:{ACC+4*dd+3}]"}')
    for dd in range(0, 8, 2): a(f'ds_write2st64_b32 v15, v{ACC+4*dd}, v{ACC+4*dd+4} offset0:{dd} offset1:{dd+1}')
    a('s_waitcnt lgkmcnt(0)')
    a('s_barrier')
    for w in range(4): a(f'ds_read2st64_b32 v[{4+2*w}:{5+2*w}], v16 offset0:{8*w} offset1:{8*w+1}')
    a('s_waitcnt lgkmcnt(2)\nv_add_f32 v4, v4, v6\nv_add_f32 v5, v5, v7\ns_waitcnt lgkmcnt(0)\nv_add_f32 v8, v8, v10\nv_add_f32 v9, v9, v11')
    a('v_add_f32 v4, v4, v8\nv_add_f32 v5, v5, v9\nv_mul_f32 v4, v4, v18\nv_mul_f32 v5, v5, v18\nv_cvt_pk_bf16_f32 v4, v4, v5\nv_min_u32 v4, -2, v4')
    dual_store(f'buffer_store_dword v4, v17, {srd(SWS)}, s15 offen', 'm1')
    stamp('S', 'pub', SST)
    stamp_store(SST)
    a('s_endpgm')

    a('L_Hmid:')
    a.cand()
    W8, WOB, GUB, WDB, A1, DW, Y = 28, 44, 60, 76, 100, 132, 164
    VM = 17
    a('v_lshrrev_b32 v3, 4, v0\nv_and_b32 v4, 15, v0\nv_lshlrev_b32 v5, 4, v3\nv_and_b32 v6, 7, v0')
    a('s_mov_b32 s12, 0xffff0000\ns_lshl_b32 s29, s4, 2\ns_add_u32 s29, s29, s18')
    a(f'v_lshlrev_b32 v7, 1, v0\ns_lshl_b32 s9, s17, 7\nbuffer_load_ushort v40, v7, {srd(SX)}, s9 offen')
    a('v_lshlrev_b32 v25, 2, v0\nv_lshlrev_b32 v19, 4, v0')
    a('v_lshlrev_b32 v20, 8, v4\nv_add_u32 v20, v20, v5\nv_add_u32 v7, 0x1000, v20')
    saddr('s20', (('s29', 13), ('s6', 6)), M1)
    saddr('s21', (('s17', 13), ('s29', 8)), M2)
    saddr('s22', (('s17', 13), ('s6', 11)), M2)
    a(f'v_lshlrev_b32 v23, 4, v4\nv_lshl_add_u32 v23, v3, 2, v23\ns_lshl_b32 s9, s6, 8\nv_add_u32 v23, s9, v23\nv_and_b32 v12, 3, v0')
    AH = 92
    for d in range(8): a(f'v_mov_b32 v{AH+d}, 0x3f803f80')
    lanetag(16, 12)
    a(f'v_mov_b32 v{VM}, {TAGM}')
    a(f's_lshl_b32 s9, s6, 8\ns_add_u32 s9, s9, {L_YW}\nv_add_u32 v26, s9, v25')
    a(f'v_lshlrev_b32 v27, 4, v4\nv_lshl_add_u32 v27, v3, 11, v27')
    saddr('s23', (('s29', 14), ('s17', 8), ('s6', 12)), MF)
    saddr('s24', (('s29', 14), ('s6', 12)), MF)
    saddr('s25', (('s29', 11), ('s17', 8), ('s6', 7)), M3)
    saddr('s27', (('s29', 7),), LAM)
    a('s_lshl_b32 s9, s17, 1\ns_sub_u32 s28, s4, s9\ns_add_u32 s28, s28, 14\ns_mul_i32 s9, s28, 37\ns_lshr_b32 s9, s9, 8\ns_mul_i32 s9, s9, 7\ns_sub_u32 s28, s28, s9\ns_lshl_b32 s28, s28, 2\ns_add_u32 s28, s28, s18')
    a(f's_lshl_b32 s15, s17, 3\ns_add_u32 s15, s15, s28')
    a(f'v_and_b32 v12, 1, v0\nv_lshrrev_b32 v36, 1, v0\nv_lshlrev_b32 v36, 11, v36\nv_lshl_add_u32 v36, v12, 4, v36')
    saddr('s84', (('s15', 5),), M3)
    a(f'v_lshl_add_u32 v37, v12, 2, v3\ns_lshl_b32 s9, s28, 5\nv_lshl_add_u32 v38, v37, 2, s9\nv_lshlrev_b32 v37, 1, v37\ns_lshl_b32 s15, s15, 4')
    a('s_getreg_b32 s38, hwreg(HW_REG_XCC_ID)\ns_and_b32 s38, s38, 15\ns_add_u32 s38, s38, s34')
    a.cand()
    a('s_cmp_lg_u32 s3, 0\ns_cbranch_scc1 L_xdone')
    saddr('s9', (('s4', 7), ('s5', 2)), XC)
    saddr('s11', (('s4', 9), ('s5', 2)), LAM)
    a(f's_mov_b64 exec, 1\nv_mov_b32 v10, s38\nv_mov_b32 v9, 0\nbuffer_store_dword v10, v9, {srd(SWS)}, s9 offen sc1\ns_mov_b64 exec, -1')
    a('L_xdone:')
    a('s_waitcnt vmcnt(0)\nv_lshlrev_b32 v40, 16, v40')
    def wo_issue():
        if dbg_now: return
        saddr('s9', (('s29', 17), ('s6', 15), ('s17', 7)))
        a(f's_lshl_b32 s10, s6, 12\ns_add_u32 m0, s10, {L_WQ}')
        for m in range(4):
            a(f'buffer_load_dwordx4 v18, {srd(SWO)}, s9 offen nt lds')
            if m < 3: a('s_add_u32 m0, m0, 1024\ns_add_u32 s9, s9, 0x2000')
    def gu_addr():
        a(f'v_lshrrev_b32 v14, 3, v0\nv_mul_u32_u24 v14, 0xe00, v14\nv_lshl_add_u32 v14, v6, 4, v14')
        a(f's_mul_i32 s30, s17, {64*3584}\ns_mul_i32 s10, s6, {16*3584}\ns_add_u32 s30, s30, s10\ns_lshl_b32 s10, s29, 7\ns_add_u32 s30, s30, s10')
        a(f's_cmp_eq_u32 s4, 7\ns_cselect_b32 s30, 0x1000000, s30\ns_add_u32 s31, s30, {8*3584}')
        saddr('s32', (('s29', 16), ('s6', 14), ('s17', 7)))
        a('s_add_u32 s19, s32, 0x2000')
        a('v_lshrrev_b32 v18, 3, v0\nv_lshlrev_b32 v18, 10, v18\nv_lshl_add_u32 v18, v6, 4, v18')
        a(f'v_lshrrev_b32 v1, 5, v0\nv_lshl_add_u32 v1, v1, 3, v6\ns_lshl_b32 s9, s6, 4\nv_add_u32 v1, s9, v1\nv_lshlrev_b32 v1, 1, v1')
    def gu_issue(when):
        if dbg_now: return 0
        n = 0
        for w_, base, sr in ((wg, L_G, SG), (wu, L_U, SU)):
            if w_ != when: continue
            a(f's_lshl_b32 s13, s6, 11\ns_add_u32 m0, s13, {base}')
            a(f'buffer_load_dwordx4 v14, {srd(sr)}, s30 offen nt lds\ns_add_u32 m0, m0, 1024')
            a(f'buffer_load_dwordx4 v14, {srd(sr)}, s31 offen nt lds')
            n += 2
        return n
    def dn_issue(when):
        if dbg_now or wd != when: return 0
        a(f's_lshl_b32 s13, s6, 11\ns_add_u32 m0, s13, {L_D}')
        a(f'buffer_load_dwordx4 v18, {srd(SD)}, s32 offen nt lds\ns_add_u32 m0, m0, 1024')
        a(f'buffer_load_dwordx4 v18, {srd(SD)}, s19 offen nt lds')
        return 2
    gu_late = 'hop1' in (wg, wu)
    assert wd != 'p2'
    def wo_read():
        for cg in range(4):
            for eh in range(2): a(f'ds_read_b64_tr_b16 v[{WOB+4*cg+2*eh}:{WOB+4*cg+2*eh+1}], v22 offset:{L_WQ + eh*512 + cg*32}')
    def gu_read():
        for s_ in range(2):
            for sb in range(2):
                for eh in range(2): a(f'ds_read_b64_tr_b16 v[{GUB+8*sb+4*s_+2*eh}:{GUB+8*sb+4*s_+2*eh+1}], v15 offset:{L_G + s_*1024 + eh*512 + sb*16}')
    def dn_read():
        for cgl in range(2):
            for s_ in range(2):
                for eh in range(2): a(f'ds_read_b64_tr_b16 v[{WDB+8*cgl+4*s_+2*eh}:{WDB+8*cgl+4*s_+2*eh+1}], v39 offset:{L_D + s_*4096 + eh*512 + cgl*32}')
    gu_addr()
    a('v_lshlrev_b32 v15, 10, v3\nv_bfe_u32 v13, v0, 2, 2\nv_lshl_add_u32 v15, v13, 7, v15\nv_and_b32 v12, 3, v0\nv_lshl_add_u32 v22, v12, 3, v15\ns_lshl_b32 s9, s6, 6\nv_add_u32 v39, s9, v22\ns_lshl_b32 s9, s6, 12\nv_add_u32 v22, s9, v22')
    a(f'v_and_b32 v12, 1, v0\nv_lshl_add_u32 v15, v12, 3, v15\nv_bfe_u32 v12, v0, 1, 1\nv_mul_u32_u24 v12, {L_U - L_G}, v12\nv_add_u32 v15, v15, v12\nv_lshl_add_u32 v15, v3, 10, v15\ns_lshl_b32 s9, s6, 5\nv_add_u32 v15, s9, v15')
    a('s_barrier')
    a('s_barrier')
    a.cand()
    if touch:
        a(f's_cmp_lg_u32 s3, 0\ns_cbranch_scc1 L_not2\nbuffer_load_dword v{Y}, v25, {srd(SWS)}, s25 offen sc1\nbuffer_load_dword v{Y+4}, v25, {srd(SWS)}, s21 offen sc1\nL_not2:')
    gu_issue('mid'); dn_issue('mid')
    saddr('s9', (('s4', 7),), XC)
    a('s_mov_b32 s14, 0\ns_mov_b32 exec_hi, 0')
    a('L_xpoll:')
    a(f'buffer_load_dword v8, v25, {srd(SWS)}, s9 offen sc1')
    a(f's_add_u32 s14, s14, 1\ns_cmp_gt_u32 s14, {SPIN}\ns_waitcnt vmcnt(0)\ns_cbranch_scc1 L_xout')
    a('v_subrev_u32 v9, s34, v8\nv_cmp_lt_u32 vcc, 15, v9\ns_cbranch_vccz L_xout\ns_sleep 16\ns_branch L_xpoll')
    a('L_xout:')
    a(f'v_cmp_ne_u32 vcc, s38, v8\ns_cmp_eq_u64 vcc, 0\ns_cselect_b32 s39, 1, 0\ns_mov_b64 exec, -1')
    a('s_cmp_lg_u32 s3, 0\ns_cbranch_scc1 L_nolam')
    a(f'v_and_b32 v12, 3, v0\nv_lshlrev_b32 v12, 4, v12\nds_read_b128 v[8:11], v12 offset:{L_MX}\nds_read_b128 v[{Y}:{Y+3}], v12 offset:{L_LS}\ns_mov_b32 s14, {LOG2E}\ns_waitcnt lgkmcnt(0)')
    a('v_max3_f32 v8, v8, v9, v10\nv_max_f32 v8, v8, v11'); rbf(8)
    a(f'v_add_f32 v9, v{Y}, v{Y+1}\nv_add_f32 v10, v{Y+2}, v{Y+3}\nv_add_f32 v9, v9, v10\nv_log_f32 v9, v9\nv_mul_f32 v8, s14, v8\nv_add_f32 v8, v8, v9\nv_min_u32 v8, -2, v8')
    a(f'v_lshlrev_b32 v12, 7, v0\nv_mov_b32 v9, s39\nv_mov_b32 v10, 0\ns_mov_b64 exec, 15\nds_write_b32 v10, v9 offset:{L_FAST}')
    dual_store(f'buffer_store_dword v8, v12, {srd(SWS)}, s11 offen', 'lam')
    a('s_mov_b64 exec, -1')
    a('L_nolam:')
    a.cand()
    a('s_mov_b32 s14, 0')
    a('L_lpoll:')
    a(f's_sleep {lamdelay}')
    a(f'buffer_load_dwordx4 v[{W8}:{W8+3}], v5, {srd(SWS)}, s27 offen sc1\nbuffer_load_dwordx4 v[{W8+4}:{W8+7}], v5, {srd(SWS)}, s27 offen offset:64 sc1')
    a(f's_add_u32 s14, s14, 1\ns_cmp_gt_u32 s14, {SPIN}\ns_waitcnt vmcnt(0) lgkmcnt(0)\ns_cbranch_scc1 L_ldone')
    a(f'v_max3_u32 v8, v{W8}, v{W8+1}, v{W8+2}\nv_max3_u32 v9, v{W8+3}, v{W8+4}, v{W8+5}\nv_max3_u32 v8, v8, v{W8+6}, v{W8+7}\nv_max_u32 v8, v8, v9\nv_cmp_eq_u32 vcc, -1, v8')
    a('s_cbranch_vccnz L_lpoll')
    a('L_ldone:')
    a(f'v_max3_f32 v8, v{W8}, v{W8+1}, v{W8+2}\nv_max3_f32 v9, v{W8+3}, v{W8+4}, v{W8+5}\nv_max3_f32 v8, v8, v{W8+6}, v{W8+7}\nv_max_f32 v8, v8, v9')
    crossg(8, 9, 'max')
    for r in range(8): a(f'v_sub_f32 v{W8+r}, v{W8+r}, v8')
    for r in range(8): a(f'v_exp_f32 v{W8+r}, v{W8+r}')
    a(f'v_add_f32 v8, v{W8}, v{W8+1}')
    for r in range(2, 8): a(f'v_add_f32 v8, v8, v{W8+r}')
    crossg(8, 9, 'add')
    a('v_rcp_f32 v8, v8')
    for r in range(8): a(f'v_mul_f32 v{W8+r}, v{W8+r}, v8')
    stamp('H', 'lam', HST)
    R = Y + 4
    m1_loads = [f'buffer_load_dwordx4 v[{A1+4*t}:{A1+4*t+3}], {("v20", "v7")[t]}, {srd(SWS)}, s20 offen sc1' for t in range(2)]
    m2_loads = [f'buffer_load_dwordx4 v[{Y+4*j}:{Y+4*j+3}], v19, {srd(SWS)}, s22 offen offset:{j*1024} sc1' for j in range(2)]
    mf_loads = [f'buffer_load_dwordx4 v[{A1+4*j}:{A1+4*j+3}], v19, {srd(SWS)}, s24 offen offset:{j*1024} sc1' for j in range(4)]
    m3_loads = [f'buffer_load_dwordx4 v[{R}:{R+3}], v36, {srd(SWS)}, s84 offen sc1']
    if '1' in early:
        for l in m1_loads: a(l)
    a('s_cmp_eq_u32 s4, 7\ns_cbranch_scc1 L_noearly')
    if '2' in early:
        for l in m2_loads: a(l)
    if 'f' in early:
        a('s_cmp_lg_u32 s17, 0\ns_cbranch_scc1 L_noearly2')
        for l in mf_loads: a(l)
        a('L_noearly2:')
    if '3' in early:
        a('s_cmp_gt_u32 s28, 7\ns_cbranch_scc1 L_noearly\ns_cmp_lg_u32 s3, 2\ns_cbranch_scc1 L_noearly')
        for l in m3_loads: a(l)
    a('L_noearly:')
    a('s_waitcnt vmcnt(0)')
    a.cand()
    a('s_barrier')
    wo_issue()
    nwf = gu_issue('b4') + dn_issue('b4')
    a('s_barrier')
    stamp('H', 'b5', HST)
    if dbg_notail:
        stamp('H', 'out', HST); a('s_branch L_Hend')
    a.cand()
    names = ('p1', 'p2', 'p25', 'p3')
    def poll(name, loads, base, tmp=8, tagged=True, after_first=None):
        n = len(loads); nreg = 4 * n
        a('s_mov_b32 s14, 0')
        dl = pd[names.index(name)]
        if name == 'p25' and local and pdslow: a(f's_cmp_lg_u32 s39, 0\ns_cbranch_scc1 L_{name}\ns_sleep {pdslow}')
        elif dl: a(f's_sleep {dl}')
        if after_first:
            for l in loads: a(l)
            after_first()
            a(f's_branch L_{name}_c')
        a(f'L_{name}:')
        for l in loads: a(l)
        a(f's_add_u32 s14, s14, 1\ns_cmp_gt_u32 s14, {SPIN}\ns_cbranch_scc1 L_{name}_x')
        if tagged:
            a(f's_waitcnt vmcnt(0)\nL_{name}_c:')
            for k in range(n):
                for e in range(4):
                    if k == 0: a(f'v_xor_b32 v{tmp+e}, s{34+e}, v{base+e}')
                    else: a(f'v_bitop3_b32 v{tmp+e}, v{tmp+e}, v{base+4*k+e}, s{34+e} bitop3:0xf6')
            a(f'v_or3_b32 v{tmp}, v{tmp}, v{tmp+1}, v{tmp+2}\nv_bitop3_b32 v{tmp}, v{tmp}, v{tmp+3}, v{VM} bitop3:0xa8\nv_cmp_ne_u32 vcc, 0, v{tmp}')
        else:
            a(f's_waitcnt vmcnt(0)\nL_{name}_c:')
            a(f'v_max3_u32 v{tmp}, v{base}, v{base+1}, v{base+2}\nv_max3_u32 v{tmp+1}, v{base+3}, v{base+4}, v{base+5}\nv_max3_u32 v{tmp}, v{tmp}, v{base+6}, v{base+7}\nv_max_u32 v{tmp}, v{tmp}, v{tmp+1}')
            a(f'v_cmp_eq_u32 vcc, -1, v{tmp}')
        a(f's_and_b64 exec, exec, vcc\ns_cbranch_execnz L_{name}')
        a(f'L_{name}_x:')
        a('s_mov_b64 exec, -1')
        if stamps is True: a(f's_add_u32 s14, s14, 1\nv_writelane_b32 v{HST}, s14, {40 + names.index(name)}')
    def p1_first():
        a(f's_waitcnt vmcnt({nwf + 2})'); wo_read(); a('s_waitcnt vmcnt(0)')
    poll('p1', m1_loads, A1, tagged=False, after_first=p1_first)
    a('s_waitcnt vmcnt(0) lgkmcnt(0)')
    stamp('H', 'hop1', HST)
    for cg in range(4):
        for t in range(2):
            a(f'v_mfma_f32_16x16x32_bf16 v[{DW+8*cg+4*t}:{DW+8*cg+4*t+3}], v[{A1+4*t}:{A1+4*t+3}], v[{WOB+4*cg}:{WOB+4*cg+3}], 0')
    gu_issue('hop1'); dn_issue('hop1')
    for cg in range(4):
        a(f'v_pk_mul_f32 v[{DW+8*cg}:{DW+8*cg+1}], v[{W8}:{W8+1}], v[{DW+8*cg}:{DW+8*cg+1}]')
        for r in range(2, 8, 2): a(f'v_pk_fma_f32 v[{DW+8*cg}:{DW+8*cg+1}], v[{W8+r}:{W8+r+1}], v[{DW+8*cg+r}:{DW+8*cg+r+1}], v[{DW+8*cg}:{DW+8*cg+1}]')
    for cg in (0, 2, 1, 3): a(f'v_add_f32 v{8+cg}, v{DW+8*cg}, v{DW+8*cg+1}')
    a('v_permlane32_swap_b32 v8, v10\nv_add_f32 v8, v8, v10\nv_permlane32_swap_b32 v9, v11\nv_add_f32 v9, v9, v11\nv_permlane16_swap_b32 v8, v9\nv_add_f32 v8, v8, v9')
    a('ds_write_b32 v26, v8\ns_waitcnt lgkmcnt(0)')
    a('s_barrier')
    a('s_cmp_lg_u32 s3, 0\ns_cbranch_scc1 L_nowpub')
    a(f'ds_read2st64_b32 v[8:9], v25 offset0:{L_YW//256} offset1:{L_YW//256+1}\nds_read2st64_b32 v[10:11], v25 offset0:{L_YW//256+2} offset1:{L_YW//256+3}')
    a(f's_waitcnt lgkmcnt(0)\nv_add_f32 v8, v8, v9\nv_add_f32 v10, v10, v11\nv_add_f32 v8, v8, v10\nv_bfi_b32 v8, v{VM}, v16, v8')
    a(f'buffer_store_dword v8, v25, {srd(SWS)}, s21 offen sc1')
    a('L_nowpub:')
    stamp('H', 'wpub', HST)
    a('s_cmp_eq_u32 s4, 7\ns_cbranch_scc1 L_Hend')
    if not gu_late: gu_read()
    a.cand()
    def p2_first():
        npt = 0
        if local and pretouch:
            for l in mf_loads: a(l)
            npt = 4
        a(f's_waitcnt vmcnt({npt})')
    poll('p2', m2_loads, Y, after_first=p2_first)
    stamp('H', 'hop2', HST)
    for e in range(4): a(f'v_add_f32 v{Y+e}, v{Y+e}, v{Y+4+e}')
    a(f'v_permlane32_swap_b32 v{Y}, v{Y+2}\nv_permlane32_swap_b32 v{Y+1}, v{Y+3}\nv_add_f32 v{Y}, v{Y}, v{Y+2}\nv_add_f32 v{Y+1}, v{Y+1}, v{Y+3}')
    a(f'v_permlane16_swap_b32 v{Y}, v{Y+1}\nv_add_f32 v8, v{Y}, v{Y+1}')
    a(f'ds_write_b32 v23, v8 offset:{L_HP}\ns_waitcnt lgkmcnt(0)')
    a('s_barrier')
    a(f'ds_read2st64_b32 v[8:9], v25 offset0:{L_HP//256} offset1:{L_HP//256+1}\nds_read2st64_b32 v[10:11], v25 offset0:{L_HP//256+2} offset1:{L_HP//256+3}')
    if gu_late: gu_read()
    nx = 8 if gu_late else 0
    a(f's_waitcnt lgkmcnt({nx + 1})\nv_add_f32 v8, v8, v40\nv_add_f32 v8, v8, v9\ns_waitcnt lgkmcnt({nx})\nv_add_f32 v10, v10, v11\nv_add_f32 v21, v8, v10')
    a(f'v_mov_b32_dpp v9, v21 quad_perm:[1,0,3,2] {FULL}\nv_cvt_pk_bf16_f32 v8, v21, v9')
    a(f's_mov_b32 exec_lo, 0xdddddddd\ns_mov_b32 exec_hi, 0xdddddddd')
    for d in range(8): a(f'v_mov_b32_dpp v{AH+d}, v8 row_newbcast:{2*d} {FULL}')
    a('s_mov_b64 exec, -1')
    for s_ in range(2):
        a(f'v_mfma_f32_16x16x32_bf16 v[{DW+8}:{DW+11}], v[{AH+4*s_}:{AH+4*s_+3}], v[{AH+4*s_}:{AH+4*s_+3}], {"0" if s_ == 0 else f"v[{DW+8}:{DW+11}]"}')
        if nx: a(f's_waitcnt lgkmcnt({4 - 4*s_})')
        for sb in range(2):
            a(f'v_mfma_f32_16x16x32_bf16 v[{DW+4*sb}:{DW+4*sb+3}], v[{AH+4*s_}:{AH+4*s_+3}], v[{GUB+8*sb+4*s_}:{GUB+8*sb+4*s_+3}], {"0" if s_ == 0 else f"v[{DW+4*sb}:{DW+4*sb+3}]"}')
    a('s_mov_b32 exec_hi, 0')
    a(f'v_mov_b32_dpp v10, v{DW+8} quad_perm:[0,0,2,3] {FULL}\nv_mov_b32_dpp v11, v{DW+9} quad_perm:[0,0,2,3] {FULL}')
    a(f'v_bfi_b32 v10, v{VM}, s36, v10\nv_bfi_b32 v11, v{VM}, s37, v11')
    a(f'v_mov_b32_dpp v{DW}, v{DW+4} quad_perm:[0,1,2,3] row_mask:2 bank_mask:0xf\nv_mov_b32_dpp v{DW+1}, v{DW+5} quad_perm:[0,1,2,3] row_mask:2 bank_mask:0xf')
    a(f'v_bfi_b32 v8, v{VM}, s34, v{DW}\nv_bfi_b32 v9, v{VM}, s35, v{DW+1}')
    a('s_waitcnt vmcnt(0)')
    dual_store(f'buffer_store_dwordx4 v[8:11], v27, {srd(SWS)}, s23 offen', 'mf')
    a('s_mov_b64 exec, -1')
    stamp('H', 'f1pub', HST)
    a.cand()
    a('s_mov_b32 s13, 0x3b000000\ns_mov_b32 s16, 0xc0135761\ns_mov_b32 s26, 0xbdd2d3e8')
    dn_read()
    poll('p25', mf_loads, A1, tmp=12)
    a('s_waitcnt vmcnt(0)')
    stamp('H', 'hop25', HST)
    Z = A1
    for e in range(4): a(f'v_add_f32 v{Z+e}, v{Z+e}, v{Z+4+e}\nv_add_f32 v{Z+8+e}, v{Z+8+e}, v{Z+12+e}')
    for e in range(4): a(f'v_permlane32_swap_b32 v{Z+e}, v{Z+8+e}')
    for e in range(4): a(f'v_add_f32 v{Z+e}, v{Z+e}, v{Z+8+e}')
    for e in range(4): a(f'v_mov_b32 v{Z+4+e}, v{Z+e}')
    for e in (3, 2, 0, 1): a(f'v_permlane16_swap_b32 v{Z+e}, v{Z+4+e}')
    for e in (3, 2, 0, 1): a(f'v_add_f32 v{Z+e}, v{Z+e}, v{Z+4+e}')
    a(f'v_mul_f32 v13, s13, v{Z+3}\nv_mul_f32 v14, v13, v13\nv_fma_f32 v12, v{Z+2}, s13, -v14\nv_max_f32 v12, 0, v12\nv_add_f32 v12, 0x3727c5ac, v12\nv_rsq_f32 v12, v12')
    a(f'v_fma_f32 v14, -v13, v{Z+1}, v{Z}\nv_mul_f32 v14, v14, v12')
    a('v_mul_f32 v15, v14, v14\nv_mov_b32 v12, s16\nv_fmac_f32 v12, s26, v15\nv_mul_f32 v12, v12, v14\nv_exp_f32 v12, v12')
    a(f'v_mov_b32_dpp v15, v14 row_ror:8 {FULL}')
    a('v_add_f32 v12, 1.0, v12\nv_rcp_f32 v12, v12\nv_mul_f32 v14, v14, v15\ns_mov_b32 exec_lo, 0xff\ns_mov_b32 exec_hi, 0xff\nv_mul_f32 v14, v14, v12')
    a(f'v_cvt_pk_bf16_f32 v14, v14, v14\nds_write_b16 v1, v14 offset:{L_ACT}\ns_mov_b64 exec, -1\ns_waitcnt lgkmcnt(0)')
    a('s_barrier')
    a('s_cmp_gt_u32 s3, 1\ns_cbranch_scc1 L_R')
    a(f'ds_read_b128 v[{Z}:{Z+3}], v5 offset:{L_ACT}\nds_read_b128 v[{Z+4}:{Z+7}], v5 offset:{L_ACT + 64}')
    for s_ in range(2):
        a(f's_waitcnt lgkmcnt({1 - s_})')
        for cgl in range(2):
            a(f'v_mfma_f32_16x16x32_bf16 v[{DW+4*cgl}:{DW+4*cgl+3}], v[{Z+4*s_}:{Z+4*s_+3}], v[{WDB+8*cgl+4*s_}:{WDB+8*cgl+4*s_+3}], {"0" if s_ == 0 else f"v[{DW+4*cgl}:{DW+4*cgl+3}]"}')
    a('s_mov_b32 exec_hi, 0')
    a(f'v_mov_b32_dpp v{DW}, v{DW+4} quad_perm:[0,1,2,3] row_mask:2 bank_mask:0xf\nv_bfi_b32 v8, v{VM}, v16, v{DW}')
    a(f'buffer_store_dword v8, v25, {srd(SWS)}, s25 offen sc1')
    stamp('H', 'fpub', HST)
    a('s_branch L_Hend')
    a('L_R:')
    a('s_cmp_gt_u32 s28, 7\ns_cbranch_scc1 L_Hend\ns_cmp_lg_u32 s3, 2\ns_cbranch_scc1 L_Hend')
    a.cand()
    a(f'ds_bpermute_b32 v21, v38, v21')
    for e in range(4): a(f'v_mov_b32 v{R+e}, 0')
    a('s_waitcnt lgkmcnt(0)'); rbf(21)
    a('s_mov_b32 exec_hi, 0x00ffffff')
    poll('p3', m3_loads, R)
    stamp('H', 'hop3', HST)
    a(f'v_permlane32_swap_b32 v{R}, v{R+2}\nv_permlane32_swap_b32 v{R+1}, v{R+3}\nv_add_f32 v{R}, v{R}, v{R+2}\nv_add_f32 v{R+1}, v{R+1}, v{R+3}')
    a(f'v_permlane16_swap_b32 v{R}, v{R+1}\nv_add_f32 v8, v{R}, v{R+1}')
    a(f'v_add_f32_dpp v8, v8, v8 row_ror:8 {FULL}\nv_add_f32_dpp v8, v8, v8 row_ror:4 {FULL}\nv_add_f32_dpp v8, v8, v8 quad_perm:[2,3,0,1] {FULL}')
    for k in range(dbg_sleep): a('s_sleep 125')
    rbf(8)
    a('v_add_f32 v8, v8, v21\ns_mov_b32 exec_lo, 0x00030003\ns_mov_b32 exec_hi, 0x00030003\nv_cvt_pk_bf16_f32 v8, v8, v8')
    a(f'buffer_store_short v8, v37, {srd(SO)}, s15 offen')
    a(f's_cmp_lg_u32 s2, 0\ns_cbranch_scc1 L_noep\ns_mov_b64 exec, 1\nv_mov_b32 v9, s34\nv_mov_b32 v10, {EPOCH}\nbuffer_store_dword v9, v10, {srd(SWS)}, 0 offen sc1\nL_noep:')
    stamp('H', 'out', HST)
    a('L_Hend:')
    stamp_store(HST)
    a('L_end:')
    a('s_endpgm')
    for t in stubs: a(t)

    head = HEADER + f'; Written by gen/gen.py (own generator): one persistent launch, 256 workgroups x 8 waves.\n; @launch grid=(256,1,1) block=(512,1,1) lds={LDS_BYTES}\n'
    pre = f'.amdgcn_target "amdgcn-amd-amdhsa--gfx950"\n.text\n.globl {KN}\n.p2align 8\n.type {KN},@function\n'
    post = f'''.section .rodata,"a"
.p2align 6
.amdhsa_kernel {KN}
  .amdhsa_next_free_vgpr 256
  .amdhsa_next_free_sgpr 96
  .amdhsa_accum_offset 256
  .amdhsa_group_segment_fixed_size 0
  .amdhsa_kernarg_size 96
  .amdhsa_user_sgpr_count 2
  .amdhsa_user_sgpr_kernarg_segment_ptr 1
  .amdhsa_system_sgpr_workgroup_id_x 1
  .amdhsa_float_denorm_mode_32 3
.end_amdhsa_kernel
'''
    if not warm:
        return head + pre + '\n'.join(a.render(chosen=[])) + '\n' + post, nst
    saveL = list(a.L)
    a.L = [l.replace('@W0', 'L_warm_end').replace('@W1', 'L_warm_end').replace('@W2', 'L_warm_end') for l in saveL]
    syms = assemble_syms(pre + '\n'.join(a.render(None)) + '\n')
    pos = [syms[f'L_cand{n}'] for n in range(a.ncand)]
    end = syms['L_end']
    chosen = []; last = None
    for n in range(a.ncand):
        nxt = pos[n+1] if n + 1 < a.ncand else end
        if last is None or nxt - last > 900:
            chosen.append(n); last = pos[n]
    k = len(chosen)
    ent = [0, (k + 2) // 3, (2 * k + 2) // 3]
    a.L = [l.replace('@W0', f'L_pad{ent[0]}').replace('@W1', f'L_pad{ent[1]}').replace('@W2', f'L_pad{ent[2]}') for l in saveL]
    body = a.render(chosen)
    gaps = [pos[chosen[i+1]] - pos[chosen[i]] for i in range(k-1)] + [end - pos[chosen[-1]]]
    print('pads', k, 'first', pos[chosen[0]], 'gaps', gaps, 'code bytes', end, file=sys.stderr)
    return head + pre + '\n'.join(body) + '\n' + post, nst

if __name__ == '__main__':
    kw = eval('dict(' + (sys.argv[2] if len(sys.argv) > 2 else '') + ')')
    s, nst = gen(**kw)
    open(sys.argv[1], 'w').write(s)
    if nst: print(nst)
```

```python
import sys
from asmlib import Asm, assemble_syms
NAME = 'sequential_preLN__gqa_block_cached__glu_gated_geglu__decode'
KN = NAME + '_kernel'

QP   = 0x00000
LAM  = 0x10000
XC   = 0x18000
EPOCH = 0x19000
PF   = 0x1a000
M2   = 0x20000
M1   = 0x40000
M3   = 0x80000
MF   = 0x100000
STAMP = 0x8000000
L_WQ = 0
L_G  = 16384
L_U  = 24576 + 64
L_XN = 33792
L_Q  = 34816
L_MX = 35840
L_LS = 35904
L_FAST = 35968
L_EP = 36864
L_YW = 45568
L_HP = 46592
L_ACT = 47616
L_D  = 47872
LDS_BYTES = 56064
SX, SK, SV, SWQ, SWO, SG, SU, SD, SO, SDBG, SWS = 40, 44, 48, 52, 56, 60, 64, 68, 72, 76, 80
def srd(b): return f's[{b}:{b+3}]'
LOG2E = 0x3fb8aa3b
SPIN = 1 << 16
TAGB = 10
TAGM = 0x3ff
FULL = 'row_mask:0xf bank_mask:0xf'

HEADER = open('cdna_kernels/' + NAME + '.s.ref').read().split('; Override launch')[0]

DOC = """; One persistent launch, 256 workgroups (one per CU) x 8 waves; text written by my own generator script.
;     exact row max / row sum of the workgroup, PV with 16x16x32 MFMA, publish the normalised partial O (M1).
;     R  (sum of 28 partials + h)                                                                   -> d_out
"""

def gen(D=7, lead_ss=8, lead_sm=16, lead_end=None, n_end=0, wg='b4', wu='b4', wd='hop1', thr=8, wint=True, padgap=900, sfirst=True, hprio=2, sprio=0, lpos=1, qdelay=9, pd=(2, 5, 0, 11), pdslow=8, local=True, pretouch=False, clrdelay=0, touch=True, lamdelay=100, early='f', tlbwarm=False, outsc='',
        klin=False, stamps=False, warm=True, nslots=40, dbgwg=0, dbg_now=False, dbg_notail=False, dbg_sleep=0, dbg_extra=0, dbg_rtt=0, dbg_noclr=False):
    a = Asm()
    nst = {}
    stubs = []
    SST, HST = (248 if klin else 88), 200
    assert nslots <= (36 if klin else 40)
    def stamp(role, name, vreg):
        if not stamps: return
        if stamps == 'lite' and name not in ('pub', 'out'): return
        idx = nst.setdefault(role, []); idx.append(name)
        a(f's_memrealtime s[90:91]\ns_waitcnt lgkmcnt(0)\nv_writelane_b32 v{vreg}, s90, {len(idx)-1}')
    def stamp_store(vreg):
        if not stamps: return
        if stamps == 'dbg':
            if vreg == SST: return
            a(f's_cmp_lg_u32 s2, {dbgwg}\ns_cbranch_scc1 L_nodbg\ns_cmp_lg_u32 s3, 0\ns_cbranch_scc1 L_nodbg')
            a(f's_mov_b64 exec, -1\nv_subrev_u32 v{vreg}, s94, v{vreg}\nv_lshlrev_b32 v{vreg+1}, 2, v0\nbuffer_store_dword v{vreg}, v{vreg+1}, {srd(SDBG)}, 0 offen\nL_nodbg:')
            return
        a(f's_lshl_b32 s92, s2, 3\ns_add_u32 s92, s92, s3\ns_lshl_b32 s92, s92, 8\ns_add_u32 s92, s92, {STAMP}')
        a(f's_mov_b64 exec, -1\nv_lshlrev_b32 v{vreg+1}, 2, v0\nbuffer_store_dword v{vreg}, v{vreg+1}, {srd(SWS)}, s92 offen')
    def crossg(r, t, op='add'):
        a(f'v_mov_b32 v{t}, v{r}\nv_permlane16_swap_b32 v{t}, v{r}\nv_{op}_f32 v{r}, v{r}, v{t}')
        a(f'v_mov_b32 v{t}, v{r}\nv_permlane32_swap_b32 v{t}, v{r}\nv_{op}_f32 v{r}, v{r}, v{t}')
    def allreduce(r, t, op='add'):
        for sh in (8, 4, 2, 1): a(f'v_{op}_f32_dpp v{r}, v{r}, v{r} row_ror:{sh} {FULL}')
        crossg(r, t, op)
    def rbf(r):
        a(f'v_cvt_pk_bf16_f32 v{r}, v{r}, v{r}\nv_lshlrev_b32 v{r}, 16, v{r}')
    def saddr(dst, terms, const=0, tmp='s10'):
        first = True
        for reg, sh in terms:
            t = dst if first else tmp
            a(f's_lshl_b32 {t}, {reg}, {sh}' if sh else f's_mov_b32 {t}, {reg}')
            if not first: a(f's_add_u32 {dst}, {dst}, {tmp}')
            first = False
        if const: a(f's_add_u32 {dst}, {dst}, {const}')
    def tags():
        a(f's_mul_i32 s96, s33, 1664525\ns_add_u32 s96, s96, 1013904223\ns_and_b32 s34, s96, {TAGM}\ns_bfe_u32 s35, s96, {TAGB << 16 | 10}\ns_bfe_u32 s36, s96, {TAGB << 16 | 20}\ns_lshr_b32 s37, s96, 22')
    def lanetag(dst, idx):
        a(f'v_mul_u32_u24 v{dst}, 10, v{idx}\nv_min_u32 v{dst}, 22, v{dst}\nv_lshrrev_b32_e64 v{dst}, v{dst}, s96')
    def dual_store(ins, name):
        if not local:
            a(ins + ' sc1'); return
        a(f's_cmp_eq_u32 s39, 0\ns_cbranch_scc1 L_{name}_s\n{ins}\nL_{name}_e:')
        stubs.append(f'L_{name}_s:\n{ins} sc1\ns_branch L_{name}_e')

    a('; ================================================================== entry')
    a(f'{KN}:')
    a('s_cmp_ge_u32 s2, 256\ns_cbranch_scc1 L_end')
    if stamps: a('s_memrealtime s[94:95]')
    for b, off in ((SK, 8), (SX, 0), (SWQ, 24), (SWS, 88), (SV, 16), (SWO, 32), (SG, 48), (SU, 56), (SD, 64), (SO, 72)) + (((SDBG, 80),) if stamps == 'dbg' else ()):
        a(f's_load_dwordx2 s[{b}:{b+1}], s[0:1], {off}')
    a('v_lshrrev_b32 v1, 6, v0\nv_and_b32 v0, 63, v0')
    a('v_readfirstlane_b32 s3, v1')
    for b, n in ((SX, 1024), (SK, 64 << 20), (SV, 64 << 20), (SWQ, 4 << 20), (SWO, 4 << 20), (SG, 512 * 3584), (SU, 512 * 3584), (SD, 1792 * 1024), (SO, 1024), (SWS, 268435456)) + (((SDBG, 256),) if stamps == 'dbg' else ()):
        a(f's_mov_b32 s{b+2}, {n}\ns_mov_b32 s{b+3}, 0x20000')
    a('s_and_b32 s4, s2, 7\ns_lshr_b32 s5, s2, 3')
    if sfirst: a('s_xor_b32 s3, s3, 4')
    a('s_and_b32 s6, s3, 3')
    a('s_cmp_lt_u32 s3, 4\ns_cbranch_scc1 L_H')
    RING = 96
    if sprio: a(f's_setprio {sprio}')
    def slot(k): return RING + 4 * k
    a('v_and_b32 v1, 3, v0\nv_lshlrev_b32 v1, 8, v1\nv_lshrrev_b32 v2, 2, v0\nv_lshl_add_u32 v1, v2, 4, v1')
    a('v_lshlrev_b32 v2, 4, v0')
    saddr('s7', (('s4', 23), ('s5', 18), ('s6', 12)), tmp='s8')
    a('s_mov_b32 s8, s7')
    if stamps: a(f'v_mov_b32 v{SST}, 0')
    a('s_waitcnt lgkmcnt(0)')
    if stamps: a(f'v_writelane_b32 v{SST}, s94, 0'); nst['S'] = ['start']
    st = dict(I=0, free=list(range(nslots)), where={})
    def issue(pace=True):
        n = st['I']
        fl = st['free']
        k = next(x for x in fl if n < 64 or x >= 8)
        fl.remove(k); st['where'][n] = k
        if pace and n >= D: a(f's_waitcnt vmcnt({D-1})')
        if n == 64: a('s_mov_b32 s8, s7')
        a(f'buffer_load_dwordx4 v[{slot(k)}:{slot(k)+3}], {"v1" if (n < 64 and not klin) else "v2"}, {srd(SK if n < 64 else SV)}, s8 offen offset:{(n & 3) * 1024} nt')
        if n & 3 == 3 and n != 63 and n != 127: a('s_add_u32 s8, s8, 0x4000')
        st['I'] = n + 1
    def can_issue():
        n = st['I']
        return n < 128 and any(n < 64 or x >= 8 for x in st['free'])
    if dbg_extra:
        a('s_add_u32 s9, s7, 0x20000')
        for n in range(dbg_extra):
            if n >= D: a(f's_waitcnt vmcnt({D-1})')
            a(f'buffer_load_dwordx4 v[{slot(n % D)}:{slot(n % D)+3}], v2, {srd(SV)}, s9 offen offset:{(n & 3) * 1024} nt')
            if n & 3 == 3: a('s_add_u32 s9, s9, 0x4000')
        a('s_waitcnt vmcnt(0)')
    for n in range(nslots): issue()
    stamp('S', 'pref', SST)
    a('s_barrier')
    a('s_branch L_S')

    a('; ================================================================== H start')
    a('L_H:')
    if stamps: a(f'v_mov_b32 v{HST}, 0')
    a('s_and_b32 s17, s5, 7\ns_lshr_b32 s18, s5, 3')
    a('s_cmp_lg_u32 s3, 0\ns_cbranch_scc1 L_Hwarm')
    if hprio: a(f's_setprio {hprio}')
    a('v_lshlrev_b32 v2, 4, v0')
    a('v_lshrrev_b32 v1, 3, v0\nv_lshlrev_b32 v1, 13, v1\nv_and_b32 v3, 7, v0\nv_lshl_add_u32 v1, v3, 4, v1')
    saddr('s8', (('s18', 20), ('s4', 10), ('s17', 7)))
    a(f's_mov_b32 m0, {L_WQ}')
    a('s_waitcnt lgkmcnt(0)')
    if stamps: a(f'v_writelane_b32 v{HST}, s94, 0'); nst['H'] = ['start']
    a(f's_load_dword s33, s[{SWS}:{SWS+1}], {EPOCH}')
    a(f'buffer_load_dwordx4 v[4:7], v2, {srd(SX)}, 0 offen')
    for m in range(16):
        a(f'buffer_load_dwordx4 v1, {srd(SWQ)}, s8 offen nt lds')
        if m < 15: a(f's_add_u32 m0, m0, 1024\ns_add_u32 s8, s8, 0x10000')
    a.cand()
    a('s_mov_b32 s12, 0xffff0000')
    a('s_waitcnt vmcnt(16)')
    for d in range(4): a(f'v_lshlrev_b32 v{8+2*d}, 16, v{4+d}\nv_and_b32 v{9+2*d}, s12, v{4+d}')
    a('v_add_f32 v16, v8, v9\nv_add_f32 v17, v10, v11\nv_add_f32 v18, v12, v13\nv_add_f32 v19, v14, v15\nv_add_f32 v16, v16, v17\nv_add_f32 v18, v18, v19\nv_add_f32 v16, v16, v18')
    allreduce(16, 17)
    a('v_mul_f32 v16, 0x3b000000, v16')
    a('v_sub_f32 v17, v8, v16\nv_mul_f32 v18, v17, v17')
    for e in range(1, 8): a(f'v_sub_f32 v17, v{8+e}, v16\nv_fmac_f32 v18, v17, v17')
    allreduce(18, 17)
    a('v_mul_f32 v18, 0x3b000000, v18'); rbf(18)
    a('v_add_f32 v18, 0x3727c5ac, v18'); rbf(18)
    a('v_sqrt_f32 v18, v18'); rbf(18)
    a('v_rcp_f32 v18, v18'); rbf(16)
    for e in range(8): a(f'v_sub_f32 v{8+e}, v{8+e}, v16')
    for d in range(4): a(f'v_cvt_pk_bf16_f32 v{4+d}, v{8+2*d}, v{9+2*d}')
    for d in range(4): a(f'v_lshlrev_b32 v{8+2*d}, 16, v{4+d}\nv_and_b32 v{9+2*d}, s12, v{4+d}')
    for e in range(8): a(f'v_mul_f32 v{8+e}, v{8+e}, v18')
    for d in range(4): a(f'v_cvt_pk_bf16_f32 v{4+d}, v{8+2*d}, v{9+2*d}')
    a(f'ds_write_b128 v2, v[4:7] offset:{L_XN}')
    a.cand()
    a('v_lshrrev_b32 v3, 4, v0\nv_lshlrev_b32 v16, 4, v3\ns_lshl_b32 s9, s18, 8\nv_add_u32 v16, s9, v16')
    a('v_lshlrev_b32 v17, 10, v3\nv_bfe_u32 v18, v0, 2, 2\nv_lshl_add_u32 v17, v18, 7, v17\nv_and_b32 v18, 3, v0\nv_lshl_add_u32 v17, v18, 3, v17')
    a('s_waitcnt lgkmcnt(0)')
    for s_ in range(4): a(f'ds_read_b128 v[{64+4*s_}:{67+4*s_}], v16 offset:{L_XN + s_*64}')
    tags()
    lanetag(19, 18)
    a(f'v_mov_b32 v20, {TAGM}')
    a('s_waitcnt vmcnt(0) lgkmcnt(0)')
    stamp('H', 'wq', HST)
    a.cand()
    order = [(s_, cg) for s_ in range(4) for cg in range(4)]
    def qmfma(q):
        s_, cg = order[q]
        a(f'v_mfma_f32_16x16x32_bf16 v[{24+4*cg}:{27+4*cg}], v[{64+4*s_}:{67+4*s_}], v[{128+4*q}:{131+4*q}], {"0" if s_ == 0 else f"v[{24+4*cg}:{27+4*cg}]"}')
    for q, (s_, cg) in enumerate(order):
        for eh in range(2): a(f'ds_read_b64_tr_b16 v[{128+4*q+2*eh}:{129+4*q+2*eh}], v17 offset:{L_WQ + s_*4096 + eh*512 + cg*32}')
        if q >= 4:
            a(f's_waitcnt lgkmcnt(8)'); qmfma(q - 4)
    for q in range(12, 16):
        a(f's_waitcnt lgkmcnt({2*(15-q)})'); qmfma(q)
    a('v_lshlrev_b32 v3, 2, v0')
    saddr('s9', (('s4', 13), ('s18', 11), ('s17', 8)), QP)
    saddr('s16', (('s4', 13),), QP); a('s_add_u32 s15, s16, 4096')
    for cg in range(1, 4): a(f'v_mov_b32_dpp v24, v{24+4*cg} quad_perm:[0,1,2,3] row_mask:{1 << cg} bank_mask:0xf')
    a(f'v_add_u32 v24, {(TAGM + 1) // 2}, v24\nv_bfi_b32 v24, v20, v19, v24')
    a(f'buffer_store_dword v24, v3, {srd(SWS)}, s9 offen sc1')
    a('s_mov_b32 s14, 0')
    stamp('H', 'qpub', HST)
    a.cand()
    def tagcheck(base, n, tmp, waits=True):
        for k in range(n):
            if waits: a(f's_waitcnt vmcnt({n-1-k})')
            r = base + 4*k
            for e in range(4): a(f'v_xor_b32 v{r+e}, s{34+e}, v{r+e}')
            if k == 0: a(f'v_or_b32 v{tmp}, v{r}, v{r+1}\nv_or_b32 v{tmp+1}, v{r+2}, v{r+3}')
            else: a(f'v_or3_b32 v{tmp}, v{tmp}, v{r}, v{r+1}\nv_or3_b32 v{tmp+1}, v{tmp+1}, v{r+2}, v{r+3}')
        a(f'v_bitop3_b32 v{tmp}, v{tmp}, v{tmp+1}, v{VM} bitop3:0xa8\nv_cmp_ne_u32 vcc, 0, v{tmp}')
    VM = 20
    a('L_qpoll:')
    if qdelay: a(f's_sleep {min(127, 8 * qdelay)}      ; back-off: every failed sweep takes 8 KB out of this CU\'s K/V stream')
    for k in range(8):
        a(f'buffer_load_dwordx4 v[{64+4*k}:{67+4*k}], v2, {srd(SWS)}, {"s16" if k < 4 else "s15"} offen offset:{(k & 3) * 1024} sc1')
    a(f's_add_u32 s14, s14, 1\ns_cmp_gt_u32 s14, {SPIN}\ns_cbranch_scc1 L_qdone')
    tagcheck(64, 8, 8)
    a('s_and_b64 exec, exec, vcc\ns_cbranch_execnz L_qpoll')
    a('L_qdone:')
    a('s_mov_b64 exec, -1\ns_waitcnt vmcnt(0)')
    a('v_lshlrev_b32 v3, 3, v0')
    for e in range(8): a(f'v_add_f32 v{64+e}, v{64+e}, v{72+e}')
    for e in range(8): a(f'v_add_f32 v{80+e}, v{80+e}, v{88+e}')
    for e in range(8): a(f'v_add_f32 v{64+e}, v{64+e}, v{80+e}')
    for d in range(4): a(f'v_cvt_pk_bf16_f32 v{4+d}, v{64+2*d}, v{65+2*d}')
    a(f'ds_write2st64_b64 v3, v[4:5], v[6:7] offset0:{L_Q//512} offset1:{L_Q//512+1}')
    a('s_waitcnt lgkmcnt(0)')
    stamp('H', 'qgot', HST)
    if hprio: a('s_setprio 0')
    a('s_branch L_Hb1')
    a('L_Hwarm:')
    a('v_mov_b32 v8, -1\nv_mov_b32 v9, -1\nv_mov_b32 v10, -1\nv_mov_b32 v11, -1\nv_lshlrev_b32 v2, 4, v0\nv_lshrrev_b32 v3, 4, v0\nv_and_b32 v4, 15, v0\nv_lshlrev_b32 v4, 4, v4')
    a('s_lshl_b32 s29, s4, 2\ns_add_u32 s29, s29, s18')
    a('s_waitcnt lgkmcnt(0)')
    if stamps: a(f'v_writelane_b32 v{HST}, s94, 0')
    for k in range(clrdelay): a('s_sleep 64')
    a(f's_load_dword s33, s[{SWS}:{SWS+1}], {EPOCH}')
    a('s_cmp_lg_u32 s3, 1\ns_cbranch_scc1 L_clre')
    if dbg_noclr: a('s_branch L_clre')
    a('v_lshl_add_u32 v12, v3, 13, v4\nv_lshlrev_b32 v14, 7, v0')
    saddr('s9', (('s4', 15), ('s5', 8)), M1)
    a(f'buffer_store_dwordx4 v[8:11], v12, {srd(SWS)}, s9 offen sc1')
    saddr('s9', (('s4', 9), ('s5', 2)), LAM)
    a(f's_mov_b64 exec, 15\nbuffer_store_dword v8, v14, {srd(SWS)}, s9 offen sc1\ns_mov_b64 exec, -1')
    a('L_clre:')
    if tlbwarm:
        a('s_cmp_lg_u32 s3, 2\ns_cbranch_scc1 L_tw\ns_mov_b64 exec, 1\nv_mov_b32 v12, 0')
        saddr('s9', (('s4', 23), ('s5', 18)))
        a(f'buffer_load_dword v13, v12, {srd(SV)}, s9 offen nt')
        saddr('s9', (('s29', 17), ('s17', 7)))
        a(f'buffer_load_dword v13, v12, {srd(SWO)}, s9 offen nt')
        a(f's_mul_i32 s9, s17, {64*3584}\ns_lshl_b32 s10, s29, 7\ns_add_u32 s9, s9, s10')
        a(f'buffer_load_dword v13, v12, {srd(SG)}, s9 offen nt\nbuffer_load_dword v13, v12, {srd(SU)}, s9 offen nt')
        saddr('s9', (('s29', 16), ('s17', 13)))
        a(f'buffer_load_dword v13, v12, {srd(SD)}, s9 offen nt\nbuffer_load_dword v13, v12, {srd(SO)}, 0 offen nt')
        a('s_mov_b64 exec, -1\nL_tw:')
    if warm:
        a('s_mov_b64 exec, 0')
        a('s_cmp_eq_u32 s3, 1\ns_cbranch_scc1 @W0\ns_cmp_eq_u32 s3, 2\ns_cbranch_scc1 @W1\ns_branch @W2')
        a('L_warm_end:')
        a('s_mov_b64 exec, -1')
        if stamps is True: a(f's_memrealtime s[90:91]\ns_waitcnt lgkmcnt(0)\nv_writelane_b32 v{HST}, s90, 1')
    a('s_waitcnt vmcnt(0) lgkmcnt(0)')
    tags()
    a('L_Hb1:')
    a('s_barrier      ; B1')
    a('s_branch L_Hmid')

    a('; ================================================================== S main')
    a('L_S:')
    a.cand()
    Q, P, ACC = 20, 24, 56
    QM = (20, 16, 88, 92)
    if klin:
        a('v_and_b32 v1, 3, v0\nv_lshlrev_b32 v1, 8, v1\nv_bfe_u32 v4, v0, 2, 2\nv_lshl_add_u32 v1, v4, 6, v1')
        for m in range(4): a(f'ds_read_b128 v[{QM[m]}:{QM[m]+3}], v1 offset:{L_Q + 16*m}')
        a('s_mov_b32 s20, 0x55555555\ns_mov_b32 s21, s20\ns_not_b64 s[22:23], s[20:21]\ns_mov_b32 s24, 0x33333333\ns_mov_b32 s25, s24\ns_not_b64 s[26:27], s[24:25]')
    else:
        a(f'ds_read_b128 v[{Q}:{Q+3}], v1 offset:{L_Q}')
    a('s_mov_b32 s12, 0xffff0000\ns_mov_b32 s13, 0x3db504f3\nv_mov_b32 v3, 0xff800000')
    a(f'v_lshrrev_b32 v14, 4, v0')
    a('s_waitcnt lgkmcnt(0)')
    stamp('S', 'q', SST)
    lead = nslots
    for u in range(16):
        a.cand()
        ks = [slot(st['where'][4*u+e]) for e in range(4)]
        T = [ACC + 4*e for e in range(4)]
        a(f's_waitcnt vmcnt({st["I"] - (4*u+4)})')
        def refill():
            nonlocal lead
            for e in range(4): st['free'].append(st['where'][4*u+e])
            C = 4*u + 4
            lead = max(lead_ss, lead - 2)
            tgt = C + lead if u < 15 else C + lead_sm
            while st['I'] < tgt and can_issue(): issue(pace=(u < 15))
        if klin:
            Z = [ACC + 4*e for e in range(4)]; Yk = [ACC + 16 + 4*e for e in range(4)]; DA, DB = 240, 244
            def sel(dst, own, other, perm):
                for d in range(4): a(f'v_cndmask_b32_dpp v{dst+d}, v{other+d}, v{own+d}, vcc quad_perm:{perm} {FULL}')
            def km(m):
                a(f'v_mfma_f32_4x4x4_16b_bf16 v[{DA}:{DA+3}], v[{Yk[m]}:{Yk[m]+1}], v[{QM[m]}:{QM[m]+1}], {"0" if m == 0 else f"v[{DA}:{DA+3}]"}')
                a(f'v_mfma_f32_4x4x4_16b_bf16 v[{DB}:{DB+3}], v[{Yk[m]+2}:{Yk[m]+3}], v[{QM[m]+2}:{QM[m]+3}], {"0" if m == 0 else f"v[{DB}:{DB+3}]"}')
            a('s_mov_b64 vcc, s[20:21]'); sel(Z[0], ks[0], ks[1], '[1,0,3,2]'); sel(Z[2], ks[2], ks[3], '[1,0,3,2]')
            a('s_mov_b64 vcc, s[22:23]'); sel(Z[1], ks[1], ks[0], '[1,0,3,2]'); sel(Z[3], ks[3], ks[2], '[1,0,3,2]')
            refill()
            a('s_mov_b64 vcc, s[24:25]'); sel(Yk[0], Z[0], Z[2], '[2,3,0,1]'); sel(Yk[1], Z[1], Z[3], '[2,3,0,1]')
            a('s_mov_b64 vcc, s[26:27]'); km(0); sel(Yk[2], Z[2], Z[0], '[2,3,0,1]'); km(1); sel(Yk[3], Z[3], Z[1], '[2,3,0,1]'); km(2); a('s_nop 0'); km(3)
            for e in range(4): a(f'v_add_f32 v{T[e]}, v{DA+e}, v{DB+e}')
        else:
            for e in range(4): a(f'v_mfma_f32_4x4x4_16b_bf16 v[{T[e]}:{T[e]+3}], v[{ks[e]}:{ks[e]+1}], v[{Q}:{Q+1}], 0')
            for e in range(4): a(f'v_mfma_f32_4x4x4_16b_bf16 v[{T[e]}:{T[e]+3}], v[{ks[e]+2}:{ks[e]+3}], v[{Q+2}:{Q+3}], v[{T[e]}:{T[e]+3}]')
            refill()
            for e in range(4): a(f'v_permlane32_swap_b32 v{T[e]}, v{T[e]+2}\nv_permlane32_swap_b32 v{T[e]+1}, v{T[e]+3}')
            for e in range(4): a(f'v_add_f32 v{T[e]}, v{T[e]}, v{T[e]+2}\nv_add_f32 v{T[e]+1}, v{T[e]+1}, v{T[e]+3}')
            for e in range(4): a(f'v_permlane16_swap_b32 v{T[e]}, v{T[e]+1}')
            for e in range(4): a(f'v_add_f32 v{T[e]}, v{T[e]}, v{T[e]+1}')
        a.cand()
        for e in range(4): a(f'v_add_f32_dpp v{T[e]+1}, v{T[e]}, v{T[e]} row_ror:4 {FULL}')
        for e in range(4): a(f'v_add_f32_dpp v{T[e]}, v{T[e]+1}, v{T[e]+1} row_ror:8 {FULL}')
        a(f'v_cvt_pk_bf16_f32 v5, v{T[0]}, v{T[1]}\nv_cvt_pk_bf16_f32 v6, v{T[2]}, v{T[3]}')
        a('v_lshlrev_b32 v7, 16, v5\nv_and_b32 v8, s12, v5\nv_lshlrev_b32 v9, 16, v6\nv_and_b32 v10, s12, v6')
        a('v_mul_f32 v7, s13, v7\nv_mul_f32 v8, s13, v8\nv_mul_f32 v9, s13, v9\nv_mul_f32 v10, s13, v10')
        a(f'v_cvt_pk_bf16_f32 v{P+2*u}, v7, v8\nv_cvt_pk_bf16_f32 v{P+2*u+1}, v9, v10')
        a('v_max3_f32 v3, v3, v7, v8\nv_max3_f32 v3, v3, v9, v10')
    stamp('S', 'kdone', SST)
    a.cand()
    crossg(3, 5, 'max')
    a(f'v_and_b32 v5, 3, v0\nv_lshlrev_b32 v5, 4, v5\ns_lshl_b32 s9, s6, 2\nv_add_u32 v6, s9, v5')
    a(f's_mov_b64 exec, 15\nds_write_b32 v6, v3 offset:{L_MX}\ns_mov_b64 exec, -1\ns_waitcnt lgkmcnt(0)')
    a('s_barrier')
    a(f'ds_read_b128 v[8:11], v5 offset:{L_MX}')
    a(f's_mov_b32 s14, {LOG2E}\nv_mov_b32 v4, 0')
    a('s_waitcnt lgkmcnt(0)')
    a('v_max3_f32 v3, v8, v9, v10\nv_max_f32 v3, v3, v11'); rbf(3)
    a('v_mul_f32 v3, s14, v3')
    for r in range(0, 32, 2):
        a.cand()
        a(f'v_lshlrev_b32 v7, 16, v{P+r}\nv_and_b32 v8, s12, v{P+r}\nv_lshlrev_b32 v9, 16, v{P+r+1}\nv_and_b32 v10, s12, v{P+r+1}')
        for t in range(7, 11): a(f'v_fma_f32 v{t}, v{t}, s14, -v3')
        for t in range(7, 11): a(f'v_exp_f32 v{t}, v{t}')
        a(f'v_cvt_pk_bf16_f32 v{P+r}, v7, v8\nv_add_f32 v7, v7, v8\nv_cvt_pk_bf16_f32 v{P+r+1}, v9, v10\nv_add_f32 v9, v9, v10\nv_add_f32 v4, v4, v7\nv_add_f32 v4, v4, v9')
        if r >= 2:
            for q in (3, 2, 1, 0):
                for k in (r - 2, r - 1): a(f'v_mov_b32_dpp v{P+k}, v{P+k} row_newbcast:{q} row_mask:0xf bank_mask:{1 << q}')
                if q: a(f'v_mov_b32 v11, v11')
    for q in (3, 2, 1, 0):
        for k in (30, 31): a(f'v_mov_b32_dpp v{P+k}, v{P+k} row_newbcast:{q} row_mask:0xf bank_mask:{1 << q}')
    crossg(4, 7, 'add')
    a(f's_mov_b64 exec, 15\nds_write_b32 v6, v4 offset:{L_LS}\ns_mov_b64 exec, -1\ns_waitcnt lgkmcnt(0)')
    a('s_barrier')
    stamp('S', 'smdone', SST)
    a(f's_lshl_b32 s9, s6, 4\nv_mov_b32 v13, s9\nds_read_b128 v[8:11], v13 offset:{L_LS}')
    a(f's_lshl_b32 s9, s6, 11\ns_add_u32 s9, s9, {L_EP}\nv_lshl_add_u32 v15, v0, 2, s9')
    a(f'v_and_b32 v17, 3, v0\nv_lshlrev_b32 v16, 9, v17\nv_and_b32 v17, 60, v0\nv_add_u32 v16, v16, v17\ns_lshl_b32 s9, s6, 6\ns_add_u32 s9, s9, {L_EP}\nv_add_u32 v16, s9, v16')
    a(f'v_lshlrev_b32 v17, 2, v0')
    saddr('s15', (('s4', 15), ('s5', 8), ('s6', 13)), M1)
    a('s_mov_b32 s16, 0x05040100\ns_mov_b32 s17, 0x07060302')
    a('s_waitcnt lgkmcnt(0)')
    a('v_add_f32 v8, v8, v9\nv_add_f32 v10, v10, v11\nv_add_f32 v8, v8, v10\nv_rcp_f32 v18, v8')
    AT = RING
    b4_done = False
    for G in range(8):
        a.cand()
        for p in range(4):
            n = 64 + 8*G + 2*p
            k0, k1 = slot(st['where'][n]), slot(st['where'][n+1])
            a(f's_waitcnt vmcnt({st["I"] - (n+2)})')
            for d in range(4):
                a(f'v_perm_b32 v{AT+8*d+p}, v{k1+d}, v{k0+d}, s16\nv_perm_b32 v{AT+8*d+4+p}, v{k1+d}, v{k0+d}, s17')
            a.cand()
            st['free'] += [st['where'][n], st['where'][n+1]]
            C = n + 2
            ld_ = lead_end if (lead_end and C >= 128 - n_end) else lead_ss
            while st['I'] < C + ld_ and can_issue(): issue(pace=False)
            if st['I'] == 128 and not b4_done:
                a('s_barrier'); b4_done = True
                a(f'v_mov_b32 v12, 0\nds_read_b32 v12, v12 offset:{L_FAST}\ns_waitcnt lgkmcnt(0)\nv_readfirstlane_b32 s39, v12')
                stamp('S', 'lastiss', SST)
        if G == 7: stamp('S', 'lastdata', SST)
        for dd in range(8):
            a(f'v_mfma_f32_16x16x32_bf16 v[{ACC+4*dd}:{ACC+4*dd+3}], v[{P+4*G}:{P+4*G+3}], v[{AT+4*dd}:{AT+4*dd+3}], {"0" if G == 0 else f"v[{ACC+4*dd}:{ACC+4*dd+3}]"}')
    for dd in range(0, 8, 2): a(f'ds_write2st64_b32 v15, v{ACC+4*dd}, v{ACC+4*dd+4} offset0:{dd} offset1:{dd+1}')
    a('s_waitcnt lgkmcnt(0)')
    a('s_barrier      ; B5: partial outputs of the four waves')
    for w in range(4): a(f'ds_read2st64_b32 v[{4+2*w}:{5+2*w}], v16 offset0:{8*w} offset1:{8*w+1}')
    a('s_waitcnt lgkmcnt(2)\nv_add_f32 v4, v4, v6\nv_add_f32 v5, v5, v7\ns_waitcnt lgkmcnt(0)\nv_add_f32 v8, v8, v10\nv_add_f32 v9, v9, v11')
    a('v_add_f32 v4, v4, v8\nv_add_f32 v5, v5, v9\nv_mul_f32 v4, v4, v18\nv_mul_f32 v5, v5, v18\nv_cvt_pk_bf16_f32 v4, v4, v5\nv_min_u32 v4, -2, v4')
    dual_store(f'buffer_store_dword v4, v17, {srd(SWS)}, s15 offen', 'm1')
    stamp('S', 'pub', SST)
    stamp_store(SST)
    a('s_endpgm')

    a('; ================================================================== H mid')
    a('L_Hmid:')
    a.cand()
    W8, WOB, GUB, WDB, A1, DW, Y = 28, 44, 60, 76, 100, 132, 164
    VM = 17
    a('v_lshrrev_b32 v3, 4, v0\nv_and_b32 v4, 15, v0\nv_lshlrev_b32 v5, 4, v3\nv_and_b32 v6, 7, v0')
    a('s_mov_b32 s12, 0xffff0000\ns_lshl_b32 s29, s4, 2\ns_add_u32 s29, s29, s18')
    a(f'v_lshlrev_b32 v7, 1, v0\ns_lshl_b32 s9, s17, 7\nbuffer_load_ushort v40, v7, {srd(SX)}, s9 offen')
    a('v_lshlrev_b32 v25, 2, v0\nv_lshlrev_b32 v19, 4, v0')
    a('v_lshlrev_b32 v20, 8, v4\nv_add_u32 v20, v20, v5\nv_add_u32 v7, 0x1000, v20')
    saddr('s20', (('s29', 13), ('s6', 6)), M1)
    saddr('s21', (('s17', 13), ('s29', 8)), M2)
    saddr('s22', (('s17', 13), ('s6', 11)), M2)
    a(f'v_lshlrev_b32 v23, 4, v4\nv_lshl_add_u32 v23, v3, 2, v23\ns_lshl_b32 s9, s6, 8\nv_add_u32 v23, s9, v23\nv_and_b32 v12, 3, v0')
    AH = 92
    for d in range(8): a(f'v_mov_b32 v{AH+d}, 0x3f803f80')
    lanetag(16, 12)
    a(f'v_mov_b32 v{VM}, {TAGM}')
    a(f's_lshl_b32 s9, s6, 8\ns_add_u32 s9, s9, {L_YW}\nv_add_u32 v26, s9, v25')
    a(f'v_lshlrev_b32 v27, 4, v4\nv_lshl_add_u32 v27, v3, 11, v27')
    saddr('s23', (('s29', 14), ('s17', 8), ('s6', 12)), MF)
    saddr('s24', (('s29', 14), ('s6', 12)), MF)
    saddr('s25', (('s29', 11), ('s17', 8), ('s6', 7)), M3)
    saddr('s27', (('s29', 7),), LAM)
    a('s_lshl_b32 s9, s17, 1\ns_sub_u32 s28, s4, s9\ns_add_u32 s28, s28, 14\ns_mul_i32 s9, s28, 37\ns_lshr_b32 s9, s9, 8\ns_mul_i32 s9, s9, 7\ns_sub_u32 s28, s28, s9\ns_lshl_b32 s28, s28, 2\ns_add_u32 s28, s28, s18')
    a(f's_lshl_b32 s15, s17, 3\ns_add_u32 s15, s15, s28')
    a(f'v_and_b32 v12, 1, v0\nv_lshrrev_b32 v36, 1, v0\nv_lshlrev_b32 v36, 11, v36\nv_lshl_add_u32 v36, v12, 4, v36')
    saddr('s84', (('s15', 5),), M3)
    a(f'v_lshl_add_u32 v37, v12, 2, v3\ns_lshl_b32 s9, s28, 5\nv_lshl_add_u32 v38, v37, 2, s9\nv_lshlrev_b32 v37, 1, v37\ns_lshl_b32 s15, s15, 4')
    a('s_getreg_b32 s38, hwreg(HW_REG_XCC_ID)\ns_and_b32 s38, s38, 15\ns_add_u32 s38, s38, s96')
    a.cand()
    a('s_cmp_lg_u32 s3, 0\ns_cbranch_scc1 L_xdone')
    saddr('s9', (('s4', 7), ('s5', 2)), XC)
    saddr('s11', (('s4', 9), ('s5', 2)), LAM)
    a(f's_mov_b64 exec, 1\nv_mov_b32 v10, s38\nv_mov_b32 v9, 0\nbuffer_store_dword v10, v9, {srd(SWS)}, s9 offen sc1\ns_mov_b64 exec, -1')
    a('L_xdone:')
    a('s_waitcnt vmcnt(0)\nv_lshlrev_b32 v40, 16, v40')
    def wo_issue():
        if dbg_now: return
        saddr('s9', (('s29', 17), ('s6', 15), ('s17', 7)))
        a(f's_lshl_b32 s10, s6, 12\ns_add_u32 m0, s10, {L_WQ}')
        for m in range(4):
            a(f'buffer_load_dwordx4 v18, {srd(SWO)}, s9 offen nt lds')
            if m < 3: a('s_add_u32 m0, m0, 1024\ns_add_u32 s9, s9, 0x2000')
    a('; For the group without an F role (h = 7) these offsets lie past the end of the weight buffers: the loads return zeros.')
    def gu_addr():
        a(f'v_lshrrev_b32 v14, 3, v0\nv_mul_u32_u24 v14, 0xe00, v14\nv_lshl_add_u32 v14, v6, 4, v14')
        a(f's_mul_i32 s30, s17, {64*3584}\ns_mul_i32 s10, s6, {16*3584}\ns_add_u32 s30, s30, s10\ns_lshl_b32 s10, s29, 7\ns_add_u32 s30, s30, s10')
        a(f's_cmp_eq_u32 s4, 7\ns_cselect_b32 s30, 0x1000000, s30\ns_add_u32 s31, s30, {8*3584 - 1024}')
        saddr('s32', (('s29', 16), ('s6', 14), ('s17', 7)))
        a(f's_add_u32 s19, s32, {0x2000 - 1024}\ns_lshl_b32 s13, s6, 11\ns_add_u32 s85, s13, {L_G}\ns_add_u32 s87, s13, {L_U}\ns_add_u32 s33, s13, {L_D}')
        if wd == 'p2':
            saddr('s32', (('s29', 16), ('s17', 7), ('s6', 6)))
            a(f's_cmp_gt_u32 s6, 1\ns_cselect_b32 s32, 0x1000000, s32\ns_lshl_b32 s33, s6, 12\ns_add_u32 s33, s33, {L_D}')
            a('v_lshrrev_b32 v41, 2, v0\nv_lshlrev_b32 v41, 10, v41\nv_and_b32 v12, 3, v0\nv_lshl_add_u32 v41, v12, 4, v41')
        a('v_lshrrev_b32 v18, 3, v0\nv_lshlrev_b32 v18, 10, v18\nv_lshl_add_u32 v18, v6, 4, v18')
        a(f'v_lshrrev_b32 v1, 5, v0\nv_lshl_add_u32 v1, v1, 3, v6\ns_lshl_b32 s9, s6, 4\nv_add_u32 v1, s9, v1\nv_lshlrev_b32 v1, 1, v1')
    def gu_issue(when):
        if dbg_now: return 0
        n = 0
        for w_, base, sr in ((wg, 's85', SG), (wu, 's87', SU)):
            if w_ != when: continue
            a(f's_mov_b32 m0, {base}')
            a(f'buffer_load_dwordx4 v14, {srd(sr)}, s30 offen nt lds')
            a(f'buffer_load_dwordx4 v14, {srd(sr)}, s31 offen offset:1024 nt lds')
            n += 2
        return n
    def dn_issue(when):
        if dbg_now or wd != when: return 0
        if wd == 'p2':
            a(f's_mov_b32 m0, s33')
            for m in range(4):
                a(f'buffer_load_dwordx4 v41, {srd(SD)}, s32 offen offset:{1024*m} nt lds')
                if m < 3: a(f's_add_u32 s32, s32, {0x4000 - 1024}')
            return 4
        a(f's_mov_b32 m0, s33')
        a(f'buffer_load_dwordx4 v18, {srd(SD)}, s32 offen nt lds')
        a(f'buffer_load_dwordx4 v18, {srd(SD)}, s19 offen offset:1024 nt lds')
        return 2
    adapt = 'adapt' in (wg, wu, wd)
    gu_late = 'hop1' in (wg, wu) or 'adapt' in (wg, wu)
    def wo_read():
        for cg in range(4):
            for eh in range(2): a(f'ds_read_b64_tr_b16 v[{WOB+4*cg+2*eh}:{WOB+4*cg+2*eh+1}], v22 offset:{L_WQ + eh*512 + cg*32}')
    def gu_read():
        for s_ in range(2):
            for sb in range(2):
                for eh in range(2): a(f'ds_read_b64_tr_b16 v[{GUB+8*sb+4*s_+2*eh}:{GUB+8*sb+4*s_+2*eh+1}], v15 offset:{L_G + s_*1024 + eh*512 + sb*16}')
    def dn_read():
        for cgl in range(2):
            for s_ in range(2):
                for eh in range(2):
                    off = L_D + (s_*2048 + eh*256 if wd == 'p2' else s_*4096 + eh*512) + cgl*32
                    a(f'ds_read_b64_tr_b16 v[{WDB+8*cgl+4*s_+2*eh}:{WDB+8*cgl+4*s_+2*eh+1}], v39 offset:{off}')
    gu_addr()
    a('v_lshlrev_b32 v15, 10, v3\nv_bfe_u32 v13, v0, 2, 2\nv_lshl_add_u32 v15, v13, 7, v15\nv_and_b32 v12, 3, v0\nv_lshl_add_u32 v22, v12, 3, v15\ns_lshl_b32 s9, s6, 6\nv_add_u32 v39, s9, v22\ns_lshl_b32 s9, s6, 12\nv_add_u32 v22, s9, v22')
    a(f'v_and_b32 v12, 1, v0\nv_lshl_add_u32 v15, v12, 3, v15\nv_bfe_u32 v12, v0, 1, 1\nv_mul_u32_u24 v12, {L_U - L_G}, v12\nv_add_u32 v15, v15, v12\nv_lshl_add_u32 v15, v3, 10, v15\ns_lshl_b32 s9, s6, 5\nv_add_u32 v15, s9, v15')
    if wd == 'p2': a('v_lshlrev_b32 v39, 9, v3\nv_lshl_add_u32 v39, v13, 6, v39\nv_and_b32 v12, 3, v0\nv_lshl_add_u32 v39, v12, 3, v39\ns_lshl_b32 s9, s6, 12\nv_add_u32 v39, s9, v39')
    a('s_barrier      ; B2')
    a('s_barrier      ; B3')
    a.cand()
    if touch:
        a(f's_cmp_lg_u32 s3, 0\ns_cbranch_scc1 L_not2\nbuffer_load_dword v{Y}, v25, {srd(SWS)}, s25 offen sc1\nbuffer_load_dword v{Y+4}, v25, {srd(SWS)}, s21 offen sc1\nL_not2:')
    gu_issue('mid'); dn_issue('mid')
    saddr('s9', (('s4', 7),), XC)
    a('s_mov_b32 s14, 0\ns_mov_b32 exec_hi, 0')
    a('L_xpoll:')
    a(f'buffer_load_dword v8, v25, {srd(SWS)}, s9 offen sc1')
    a(f's_add_u32 s14, s14, 1\ns_cmp_gt_u32 s14, {SPIN}\ns_waitcnt vmcnt(0)\ns_cbranch_scc1 L_xout')
    a('v_subrev_u32 v9, s96, v8\nv_cmp_lt_u32 vcc, 15, v9\ns_cbranch_vccz L_xout\ns_sleep 16      ; back-off\ns_branch L_xpoll')
    a('L_xout:')
    a(f'v_cmp_ne_u32 vcc, s38, v8\ns_cmp_eq_u64 vcc, 0\ns_cselect_b32 s39, 1, 0\ns_mov_b64 exec, -1')
    a('s_cmp_lg_u32 s3, 0\ns_cbranch_scc1 L_nolam')
    a(f'v_and_b32 v12, 3, v0\nv_lshlrev_b32 v12, 4, v12\nds_read_b128 v[8:11], v12 offset:{L_MX}\nds_read_b128 v[{Y}:{Y+3}], v12 offset:{L_LS}\ns_mov_b32 s14, {LOG2E}\ns_waitcnt lgkmcnt(0)')
    a('v_max3_f32 v8, v8, v9, v10\nv_max_f32 v8, v8, v11'); rbf(8)
    a(f'v_add_f32 v9, v{Y}, v{Y+1}\nv_add_f32 v10, v{Y+2}, v{Y+3}\nv_add_f32 v9, v9, v10\nv_log_f32 v9, v9\nv_mul_f32 v8, s14, v8\nv_add_f32 v8, v8, v9\nv_min_u32 v8, -2, v8')
    a(f'v_lshlrev_b32 v12, 7, v0\nv_mov_b32 v9, s39\nv_mov_b32 v10, 0\ns_mov_b64 exec, 15\nds_write_b32 v10, v9 offset:{L_FAST}')
    dual_store(f'buffer_store_dword v8, v12, {srd(SWS)}, s11 offen', 'lam')
    a('s_mov_b64 exec, -1')
    a('L_nolam:')
    a.cand()
    a('s_mov_b32 s14, 0')
    a('L_lpoll:')
    a(f's_sleep {lamdelay}')
    a(f'buffer_load_dwordx4 v[{W8}:{W8+3}], v5, {srd(SWS)}, s27 offen sc1\nbuffer_load_dwordx4 v[{W8+4}:{W8+7}], v5, {srd(SWS)}, s27 offen offset:64 sc1')
    a(f's_add_u32 s14, s14, 1\ns_cmp_gt_u32 s14, {SPIN}\ns_waitcnt vmcnt(0) lgkmcnt(0)\ns_cbranch_scc1 L_ldone')
    a(f'v_max3_u32 v8, v{W8}, v{W8+1}, v{W8+2}\nv_max3_u32 v9, v{W8+3}, v{W8+4}, v{W8+5}\nv_max3_u32 v8, v8, v{W8+6}, v{W8+7}\nv_max_u32 v8, v8, v9\nv_cmp_eq_u32 vcc, -1, v8')
    a('s_cbranch_vccnz L_lpoll')
    a('L_ldone:')
    a(f'v_max3_f32 v8, v{W8}, v{W8+1}, v{W8+2}\nv_max3_f32 v9, v{W8+3}, v{W8+4}, v{W8+5}\nv_max3_f32 v8, v8, v{W8+6}, v{W8+7}\nv_max_f32 v8, v8, v9')
    crossg(8, 9, 'max')
    for r in range(8): a(f'v_sub_f32 v{W8+r}, v{W8+r}, v8')
    for r in range(8): a(f'v_exp_f32 v{W8+r}, v{W8+r}')
    a(f'v_add_f32 v8, v{W8}, v{W8+1}')
    for r in range(2, 8): a(f'v_add_f32 v8, v8, v{W8+r}')
    crossg(8, 9, 'add')
    a('v_rcp_f32 v8, v8')
    for r in range(8): a(f'v_mul_f32 v{W8+r}, v{W8+r}, v8')
    stamp('H', 'lam', HST)
    R = Y + 4
    m1_loads = [f'buffer_load_dwordx4 v[{A1+4*t}:{A1+4*t+3}], {("v20", "v7")[t]}, {srd(SWS)}, s20 offen sc1' for t in range(2)]
    m2_loads = [f'buffer_load_dwordx4 v[{Y+4*j}:{Y+4*j+3}], v19, {srd(SWS)}, s22 offen offset:{j*1024} sc1' for j in range(2)]
    mf_loads = [f'buffer_load_dwordx4 v[{A1+4*j}:{A1+4*j+3}], v19, {srd(SWS)}, s24 offen offset:{j*1024} sc1' for j in range(4)]
    m3_loads = [f'buffer_load_dwordx4 v[{R}:{R+3}], v36, {srd(SWS)}, s84 offen sc1']
    if '1' in early:
        for l in m1_loads: a(l)
    a('s_cmp_eq_u32 s4, 7\ns_cbranch_scc1 L_noearly')
    if '2' in early:
        for l in m2_loads: a(l)
    if 'f' in early:
        a('s_cmp_lg_u32 s17, 0\ns_cbranch_scc1 L_noearly2')
        for l in mf_loads: a(l)
        a('L_noearly2:')
    if '3' in early:
        a('s_cmp_gt_u32 s28, 7\ns_cbranch_scc1 L_noearly\ns_cmp_lg_u32 s3, 2\ns_cbranch_scc1 L_noearly')
        for l in m3_loads: a(l)
    a('L_noearly:')
    a('s_waitcnt vmcnt(0)')
    a.cand()
    a('s_barrier      ; B4')
    wo_issue()
    nwf = gu_issue('b4') + dn_issue('b4')
    if adapt: a('s_mov_b32 s86, 0')
    a('s_barrier      ; B5')
    stamp('H', 'b5', HST)
    if dbg_notail:
        stamp('H', 'out', HST); a('s_branch L_Hend')
    a.cand()
    names = ('p1', 'p2', 'p25', 'p3')
    def poll(name, loads, base, tmp=8, tagged=True, after_first=None):
        n = len(loads); nreg = 4 * n
        a('s_mov_b32 s14, 0')
        dl = pd[names.index(name)]
        if name == 'p25' and local and pdslow: a(f's_cmp_lg_u32 s39, 0\ns_cbranch_scc1 L_{name}\ns_sleep {pdslow}')
        elif dl: a(f's_sleep {dl}')
        if after_first:
            for l in loads: a(l)
            after_first()
            a(f's_branch L_{name}_c')
        a(f'L_{name}:')
        for l in loads: a(l)
        a(f's_add_u32 s14, s14, 1\ns_cmp_gt_u32 s14, {SPIN}\ns_cbranch_scc1 L_{name}_x')
        if tagged:
            a(f's_waitcnt vmcnt(0)\nL_{name}_c:')
            tagcheck(base, n, tmp, waits=False)
        else:
            a(f's_waitcnt vmcnt(0)\nL_{name}_c:')
            a(f'v_max3_u32 v{tmp}, v{base}, v{base+1}, v{base+2}\nv_max3_u32 v{tmp+1}, v{base+3}, v{base+4}, v{base+5}\nv_max3_u32 v{tmp}, v{tmp}, v{base+6}, v{base+7}\nv_max_u32 v{tmp}, v{tmp}, v{tmp+1}')
            a(f'v_cmp_eq_u32 vcc, -1, v{tmp}')
        if name == 'p1' and adapt:
            a(f's_and_b64 exec, exec, vcc\ns_cbranch_execnz L_p1_more')
            keep = a.L; a.L = []
            a(f'L_p1_more:\ns_cmp_lg_u32 s14, 0\ns_cbranch_scc1 L_p1\ns_bcnt1_i32_b64 s9, exec\ns_cmp_lt_u32 s9, {4 * thr}\ns_cbranch_scc1 L_p1')
            a('s_mov_b64 s[88:89], exec\ns_mov_b64 exec, -1\ns_mov_b32 s86, 1')
            gu_issue('adapt'); dn_issue('adapt')
            a('s_mov_b64 exec, s[88:89]\ns_branch L_p1')
            stubs.append('\n'.join(a.L)); a.L = keep
        else:
            a(f's_and_b64 exec, exec, vcc\ns_cbranch_execnz L_{name}')
        a(f'L_{name}_x:')
        a('s_mov_b64 exec, -1')
        if stamps is True: a(f's_add_u32 s14, s14, 1\nv_writelane_b32 v{HST}, s14, {40 + names.index(name)}')
    def p1_first():
        a(f's_waitcnt vmcnt({nwf + 2})'); wo_read(); a('s_waitcnt vmcnt(0)')
    poll('p1', m1_loads, A1, tagged=False, after_first=p1_first)
    a('s_waitcnt vmcnt(0) lgkmcnt(0)')
    stamp('H', 'hop1', HST)
    fm = [f'v_mul_f32 v8, v{W8}, v{DW}'] + [f'v_fmac_f32 v8, v{W8+r}, v{DW+r}' for r in range(1, 8)]
    for cg in range(4):
        for t in range(2):
            a(f'v_mfma_f32_16x16x32_bf16 v[{DW+8*cg+4*t}:{DW+8*cg+4*t+3}], v[{A1+4*t}:{A1+4*t+3}], v[{WOB+4*cg}:{WOB+4*cg+3}], 0')
            if wint and 2*cg + t >= 6:
                for k in range(2): a(fm.pop(0))
    def late_issue():
        if adapt:
            a('s_cmp_lg_u32 s86, 0\ns_cbranch_scc1 L_ad')
            gu_issue('adapt'); dn_issue('adapt')
            a('L_ad:')
        gu_issue('hop1'); dn_issue('hop1')
    if lpos == 0: late_issue()
    if wint:
        for l in fm: a(l)
    for cg in range(1 if wint else 0, 4):
        a(f'v_pk_mul_f32 v[{DW+8*cg}:{DW+8*cg+1}], v[{W8}:{W8+1}], v[{DW+8*cg}:{DW+8*cg+1}]')
        for r in range(2, 8, 2): a(f'v_pk_fma_f32 v[{DW+8*cg}:{DW+8*cg+1}], v[{W8+r}:{W8+r+1}], v[{DW+8*cg+r}:{DW+8*cg+r+1}], v[{DW+8*cg}:{DW+8*cg+1}]')
    for cg in ((2, 1, 3) if wint else (0, 2, 1, 3)): a(f'v_add_f32 v{8+cg}, v{DW+8*cg}, v{DW+8*cg+1}')
    a('v_permlane32_swap_b32 v8, v10\nv_add_f32 v8, v8, v10\nv_permlane32_swap_b32 v9, v11\nv_add_f32 v9, v9, v11\nv_permlane16_swap_b32 v8, v9\nv_add_f32 v8, v8, v9')
    a('ds_write_b32 v26, v8')
    if lpos == 1: late_issue()
    a('s_waitcnt lgkmcnt(0)')
    a('s_barrier      ; BW')
    a('s_cmp_lg_u32 s3, 0\ns_cbranch_scc1 L_nowpub')
    a(f'ds_read2st64_b32 v[8:9], v25 offset0:{L_YW//256} offset1:{L_YW//256+1}\nds_read2st64_b32 v[10:11], v25 offset0:{L_YW//256+2} offset1:{L_YW//256+3}')
    a(f's_waitcnt lgkmcnt(0)\nv_add_f32 v8, v8, v9\nv_add_f32 v10, v10, v11\nv_add_f32 v8, v8, v10\nv_bfi_b32 v8, v{VM}, v16, v8')
    a(f'buffer_store_dword v8, v25, {srd(SWS)}, s21 offen sc1')
    a('L_nowpub:')
    if lpos == 2: late_issue()
    stamp('H', 'wpub', HST)
    a('s_cmp_eq_u32 s4, 7\ns_cbranch_scc1 L_Hend')
    if not gu_late: gu_read()
    a.cand()
    def p2_first():
        npt = 0
        if local and pretouch:
            for l in mf_loads: a(l)
            npt = 4
        npt += dn_issue('p2')
        a(f's_waitcnt vmcnt({npt})')
    poll('p2', m2_loads, Y, after_first=p2_first)
    stamp('H', 'hop2', HST)
    for e in range(4): a(f'v_add_f32 v{Y+e}, v{Y+e}, v{Y+4+e}')
    a(f'v_permlane32_swap_b32 v{Y}, v{Y+2}\nv_permlane32_swap_b32 v{Y+1}, v{Y+3}\nv_add_f32 v{Y}, v{Y}, v{Y+2}\nv_add_f32 v{Y+1}, v{Y+1}, v{Y+3}')
    a(f'v_permlane16_swap_b32 v{Y}, v{Y+1}\nv_add_f32 v8, v{Y}, v{Y+1}')
    a(f'ds_write_b32 v23, v8 offset:{L_HP}\ns_waitcnt lgkmcnt(0)')
    a('s_barrier      ; BF')
    a(f'ds_read2st64_b32 v[8:9], v25 offset0:{L_HP//256} offset1:{L_HP//256+1}\nds_read2st64_b32 v[10:11], v25 offset0:{L_HP//256+2} offset1:{L_HP//256+3}')
    if gu_late: gu_read()
    nx = 8 if gu_late else 0
    a(f's_waitcnt lgkmcnt({nx + 1})\nv_add_f32 v8, v8, v40\nv_add_f32 v8, v8, v9\ns_waitcnt lgkmcnt({nx})\nv_add_f32 v10, v10, v11\nv_add_f32 v21, v8, v10')
    a(f'v_mov_b32_dpp v9, v21 quad_perm:[1,0,3,2] {FULL}\nv_cvt_pk_bf16_f32 v8, v21, v9')
    a(f's_mov_b32 exec_lo, 0xdddddddd\ns_mov_b32 exec_hi, 0xdddddddd')
    for d in range(8): a(f'v_mov_b32_dpp v{AH+d}, v8 row_newbcast:{2*d} {FULL}')
    a('s_mov_b64 exec, -1')
    for s_ in range(2):
        a(f'v_mfma_f32_16x16x32_bf16 v[{DW+8}:{DW+11}], v[{AH+4*s_}:{AH+4*s_+3}], v[{AH+4*s_}:{AH+4*s_+3}], {"0" if s_ == 0 else f"v[{DW+8}:{DW+11}]"}')
        if nx: a(f's_waitcnt lgkmcnt({4 - 4*s_})')
        for sb in range(2):
            a(f'v_mfma_f32_16x16x32_bf16 v[{DW+4*sb}:{DW+4*sb+3}], v[{AH+4*s_}:{AH+4*s_+3}], v[{GUB+8*sb+4*s_}:{GUB+8*sb+4*s_+3}], {"0" if s_ == 0 else f"v[{DW+4*sb}:{DW+4*sb+3}]"}')
    a('s_mov_b32 exec_hi, 0')
    a(f'v_mov_b32_dpp v10, v{DW+8} quad_perm:[0,0,2,3] {FULL}\nv_mov_b32_dpp v11, v{DW+9} quad_perm:[0,0,2,3] {FULL}')
    a(f'v_bfi_b32 v10, v{VM}, s36, v10\nv_bfi_b32 v11, v{VM}, s37, v11')
    a(f'v_mov_b32_dpp v{DW}, v{DW+4} quad_perm:[0,1,2,3] row_mask:2 bank_mask:0xf\nv_mov_b32_dpp v{DW+1}, v{DW+5} quad_perm:[0,1,2,3] row_mask:2 bank_mask:0xf')
    a(f'v_bfi_b32 v8, v{VM}, s34, v{DW}\nv_bfi_b32 v9, v{VM}, s35, v{DW+1}')
    if pretouch or wd == 'p2': a('s_waitcnt vmcnt(0)')
    dual_store(f'buffer_store_dwordx4 v[8:11], v27, {srd(SWS)}, s23 offen', 'mf')
    a('s_mov_b64 exec, -1')
    stamp('H', 'f1pub', HST)
    a.cand()
    a('s_mov_b32 s13, 0x3b000000\ns_mov_b32 s16, 0xc0135761\ns_mov_b32 s26, 0xbdd2d3e8')
    dn_read()
    poll('p25', mf_loads, A1, tmp=12)
    a('s_waitcnt vmcnt(0)')
    stamp('H', 'hop25', HST)
    Z = A1
    for e in range(4): a(f'v_add_f32 v{Z+e}, v{Z+e}, v{Z+4+e}\nv_add_f32 v{Z+8+e}, v{Z+8+e}, v{Z+12+e}')
    for e in range(4): a(f'v_permlane32_swap_b32 v{Z+e}, v{Z+8+e}')
    for e in range(4): a(f'v_add_f32 v{Z+e}, v{Z+e}, v{Z+8+e}')
    for e in range(4): a(f'v_mov_b32 v{Z+4+e}, v{Z+e}')
    for e in (3, 2, 0, 1): a(f'v_permlane16_swap_b32 v{Z+e}, v{Z+4+e}')
    for e in (3, 2, 0, 1): a(f'v_add_f32 v{Z+e}, v{Z+e}, v{Z+4+e}')
    a(f'v_mul_f32 v13, s13, v{Z+3}\nv_mul_f32 v14, v13, v13\nv_fma_f32 v12, v{Z+2}, s13, -v14\nv_max_f32 v12, 0, v12\nv_add_f32 v12, 0x3727c5ac, v12\nv_rsq_f32 v12, v12')
    a(f'v_fma_f32 v14, -v13, v{Z+1}, v{Z}\nv_mul_f32 v14, v14, v12')
    a('v_mul_f32 v15, v14, v14\nv_mov_b32 v12, s16\nv_fmac_f32 v12, s26, v15\nv_mul_f32 v12, v12, v14\nv_exp_f32 v12, v12')
    a(f'v_mov_b32_dpp v15, v14 row_ror:8 {FULL}')
    a('v_add_f32 v12, 1.0, v12\nv_rcp_f32 v12, v12\nv_mul_f32 v14, v14, v15\ns_mov_b32 exec_lo, 0xff\ns_mov_b32 exec_hi, 0xff\nv_mul_f32 v14, v14, v12')
    a(f'v_cvt_pk_bf16_f32 v14, v14, v14\nds_write_b16 v1, v14 offset:{L_ACT}\ns_mov_b64 exec, -1\ns_waitcnt lgkmcnt(0)')
    a('s_barrier      ; BA')
    a('s_cmp_gt_u32 s3, 1\ns_cbranch_scc1 L_R')
    a(f'ds_read_b128 v[{Z}:{Z+3}], v5 offset:{L_ACT}\nds_read_b128 v[{Z+4}:{Z+7}], v5 offset:{L_ACT + 64}')
    for s_ in range(2):
        a(f's_waitcnt lgkmcnt({1 - s_})')
        for cgl in range(2):
            a(f'v_mfma_f32_16x16x32_bf16 v[{DW+4*cgl}:{DW+4*cgl+3}], v[{Z+4*s_}:{Z+4*s_+3}], v[{WDB+8*cgl+4*s_}:{WDB+8*cgl+4*s_+3}], {"0" if s_ == 0 else f"v[{DW+4*cgl}:{DW+4*cgl+3}]"}')
    a('s_mov_b32 exec_hi, 0')
    a(f'v_mov_b32_dpp v{DW}, v{DW+4} quad_perm:[0,1,2,3] row_mask:2 bank_mask:0xf\nv_bfi_b32 v8, v{VM}, v16, v{DW}')
    a(f'buffer_store_dword v8, v25, {srd(SWS)}, s25 offen sc1')
    stamp('H', 'fpub', HST)
    a('s_branch L_Hend')
    a('L_R:')
    a('s_cmp_eq_u32 s3, 2\ns_cbranch_scc1 L_R2')
    a(f's_cmp_lg_u32 s2, 0\ns_cbranch_scc1 L_Hend\ns_mov_b64 exec, 1\nv_mov_b32 v9, s96\nv_mov_b32 v10, {EPOCH}\nbuffer_store_dword v9, v10, {srd(SWS)}, 0 offen sc1\ns_branch L_Hend')
    a('L_R2:')
    a('s_cmp_gt_u32 s28, 7\ns_cbranch_scc1 L_Hend')
    a.cand()
    a(f'ds_bpermute_b32 v21, v38, v21')
    for e in range(4): a(f'v_mov_b32 v{R+e}, 0')
    a('s_waitcnt lgkmcnt(0)'); rbf(21)
    a('s_mov_b32 exec_hi, 0x00ffffff')
    poll('p3', m3_loads, R)
    stamp('H', 'hop3', HST)
    a(f'v_permlane32_swap_b32 v{R}, v{R+2}\nv_permlane32_swap_b32 v{R+1}, v{R+3}\nv_add_f32 v{R}, v{R}, v{R+2}\nv_add_f32 v{R+1}, v{R+1}, v{R+3}')
    a(f'v_permlane16_swap_b32 v{R}, v{R+1}\nv_add_f32 v8, v{R}, v{R+1}')
    a(f'v_add_f32_dpp v8, v8, v8 row_ror:8 {FULL}\nv_add_f32_dpp v8, v8, v8 row_ror:4 {FULL}\nv_add_f32_dpp v8, v8, v8 quad_perm:[2,3,0,1] {FULL}')
    for k in range(dbg_sleep): a('s_sleep 125')
    rbf(8)
    a('v_add_f32 v8, v8, v21\ns_mov_b32 exec_lo, 0x00030003\ns_mov_b32 exec_hi, 0x00030003\nv_cvt_pk_bf16_f32 v8, v8, v8')
    a(f'buffer_store_short v8, v37, {srd(SO)}, s15 offen {outsc}')
    stamp('H', 'out', HST)
    a('L_Hend:')
    stamp_store(HST)
    a('L_end:')
    a('s_endpgm')
    for t in stubs: a(t)

    head = HEADER + DOC + f'; @launch grid=(256,1,1) block=(512,1,1) lds={LDS_BYTES}\n'
    pre = f'.amdgcn_target "amdgcn-amd-amdhsa--gfx950"\n.text\n.globl {KN}\n.p2align 8\n.type {KN},@function\n'
    post = f'''.section .rodata,"a"
.p2align 6
.amdhsa_kernel {KN}
  .amdhsa_next_free_vgpr 256
  .amdhsa_next_free_sgpr 98
  .amdhsa_accum_offset 256
  .amdhsa_group_segment_fixed_size 0
  .amdhsa_kernarg_size 96
  .amdhsa_user_sgpr_count 2
  .amdhsa_user_sgpr_kernarg_segment_ptr 1
  .amdhsa_system_sgpr_workgroup_id_x 1
  .amdhsa_float_denorm_mode_32 3
.end_amdhsa_kernel
'''
    if not warm:
        return head + pre + '\n'.join(a.render(chosen=[])) + '\n' + post, nst
    saveL = list(a.L)
    a.L = [l.replace('@W0', 'L_warm_end').replace('@W1', 'L_warm_end').replace('@W2', 'L_warm_end') for l in saveL]
    syms = assemble_syms(pre + '\n'.join(a.render(None)) + '\n')
    pos = [syms[f'L_cand{n}'] for n in range(a.ncand)]
    end = syms['L_end']
    chosen = []; last = None
    for n in range(a.ncand):
        nxt = pos[n+1] if n + 1 < a.ncand else end
        if last is None or nxt - last > padgap:
            chosen.append(n); last = pos[n]
    k = len(chosen)
    ent = [0, (k + 2) // 3, (2 * k + 2) // 3]
    a.L = [l.replace('@W0', f'L_pad{ent[0]}').replace('@W1', f'L_pad{ent[1]}').replace('@W2', f'L_pad{ent[2]}') for l in saveL]
    body = a.render(chosen)
    gaps = [pos[chosen[i+1]] - pos[chosen[i]] for i in range(k-1)] + [end - pos[chosen[-1]]]
    print('pads', k, 'first', pos[chosen[0]], 'gaps', gaps, 'code bytes', end, file=sys.stderr)
    return head + pre + '\n'.join(body) + '\n' + post, nst

if __name__ == '__main__':
    kw = eval('dict(' + (sys.argv[2] if len(sys.argv) > 2 else '') + ')')
    s, nst = gen(**kw)
    open(sys.argv[1], 'w').write(s)
    if nst: print(nst)
```

```python
import sys
from asmlib import Asm, assemble_syms
NAME = 'sequential_preLN__gqa_block_cached__glu_gated_geglu__decode'
KN = NAME + '_kernel'

QP   = 0x00000
LAM  = 0x10000
EPOCH = 0x19000
M2   = 0x20000
M1   = 0x40000
M3   = 0x80000
MF   = 0x100000
STAMP = 0x8000000
L_WQ = 0
L_G  = 16384
L_U  = 24576 + 64
L_XN = 33792
L_Q  = 34816
L_MX = 35840
L_LS = 35904
L_FAST = 35968
L_W  = 36096
L_EP = 36864
L_YW = 45568
L_HP = 46592
L_ACT = 47616
L_D  = 47872
LDS_BYTES = 56064
SX, SK, SV, SWQ, SWO, SG, SU, SD, SO, SDBG, SWS = 40, 44, 48, 52, 56, 60, 64, 68, 72, 76, 80
def srd(b): return f's[{b}:{b+3}]'
LOG2E = 0x3fb8aa3b
SPIN = 1 << 16
TAGB = 10
TAGM = 0x3ff
FULL = 'row_mask:0xf bank_mask:0xf'

HEADER = open('cdna_kernels/' + NAME + '.s.ref').read().split('; Override launch')[0]

DOC = """; One persistent launch, 256 workgroups (one per CU) x 8 waves; text written by my own generator script.
;     exact row max / row sum of the workgroup, PV with 16x16x32 MFMA, publish the normalised partial O (M1).
;     R  (sum of 28 partials + h)                                                                   -> d_out
;   owner publishes its log-sum-exp words, which every reader of the slot has received.
"""

def gen(D=7, lead_ss=8, lead_sm=16, lead_end=None, n_end=0, wg='b4', wu='hop1', wd='hop1', thr=8, wint=True, epi=True, preinv=False, hfirst=False, D0=11, align=None, qlocal=2, clrpos=1, progw=True, dlo=None, dmask=0xaa, dfrom=0, dstep=1, pcs=18, padgap=900, sfirst=True, hprio=2, sprio=0, lpos=0, qdelay=5, pd=(10, 14, 0, 11), pdslow=8, local=True, pretouch=False, touch=True, lamdelay=100, early='f', outsc='',
        klin=False, stamps=False, warm=True, nslots=40, dbgwg=0, dbg_now=False, dbg_notail=False, dbg_sleep=0, dbg_extra=0, dbg_rtt=0, dbg_noclr=False, dbg_noq=False, dbg_nomid=False, dbg_klin=False, dbg_nocomp=False, dbg_tlb=0):
    a = Asm()
    nst = {}
    stubs = []
    SST, HST = (248 if klin else 88), 200
    assert nslots <= (36 if klin else 40)
    def stamp(role, name, vreg):
        if not stamps: return
        if stamps == 'lite' and name not in ('pub', 'out'): return
        idx = nst.setdefault(role, []); idx.append(name)
        a(f's_memrealtime s[90:91]\ns_waitcnt lgkmcnt(0)\nv_writelane_b32 v{vreg}, s90, {len(idx)-1}')
    def stamp_store(vreg):
        if not stamps: return
        if stamps == 'dbg':
            if vreg == SST: return
            a(f's_cmp_lg_u32 s2, {dbgwg}\ns_cbranch_scc1 L_nodbg\ns_cmp_lg_u32 s3, 0\ns_cbranch_scc1 L_nodbg')
            a(f's_mov_b64 exec, -1\nv_subrev_u32 v{vreg}, s94, v{vreg}\nv_lshlrev_b32 v{vreg+1}, 2, v0\nbuffer_store_dword v{vreg}, v{vreg+1}, {srd(SDBG)}, 0 offen\nL_nodbg:')
            return
        a(f's_lshl_b32 s92, s2, 3\ns_add_u32 s92, s92, s3\ns_lshl_b32 s92, s92, 8\ns_add_u32 s92, s92, {STAMP}')
        a(f's_mov_b64 exec, -1\nv_lshlrev_b32 v{vreg+1}, 2, v0\nbuffer_store_dword v{vreg}, v{vreg+1}, {srd(SWS)}, s92 offen')
    def crossg(r, t, op='add'):
        a(f'v_mov_b32 v{t}, v{r}\nv_permlane16_swap_b32 v{t}, v{r}\nv_{op}_f32 v{r}, v{r}, v{t}')
        a(f'v_mov_b32 v{t}, v{r}\nv_permlane32_swap_b32 v{t}, v{r}\nv_{op}_f32 v{r}, v{r}, v{t}')
    def allreduce(r, t, op='add'):
        for sh in (8, 4, 2, 1): a(f'v_{op}_f32_dpp v{r}, v{r}, v{r} row_ror:{sh} {FULL}')
        crossg(r, t, op)
    def rbf(r):
        a(f'v_cvt_pk_bf16_f32 v{r}, v{r}, v{r}\nv_lshlrev_b32 v{r}, 16, v{r}')
    def saddr(dst, terms, const=0, tmp='s10'):
        first = True
        for reg, sh in terms:
            t = dst if first else tmp
            a(f's_lshl_b32 {t}, {reg}, {sh}' if sh else f's_mov_b32 {t}, {reg}')
            if not first: a(f's_add_u32 {dst}, {dst}, {tmp}')
            first = False
        if const: a(f's_add_u32 {dst}, {dst}, {const}')
    def tags():
        a(f's_mul_i32 s96, s33, 1664525\ns_add_u32 s96, s96, 1013904223\ns_and_b32 s34, s96, {TAGM}\ns_bfe_u32 s35, s96, {TAGB << 16 | 10}\ns_bfe_u32 s36, s96, {TAGB << 16 | 20}\ns_lshr_b32 s37, s96, 22')
    def lanetag(dst, idx):
        a(f'v_mul_u32_u24 v{dst}, 10, v{idx}\nv_min_u32 v{dst}, 22, v{dst}\nv_lshrrev_b32_e64 v{dst}, v{dst}, s96')
    def dual_store(ins, name):
        if not local:
            a(ins + ' sc1'); return
        a(f's_cmp_eq_u32 s39, 0\ns_cbranch_scc1 L_{name}_s\n{ins}\nL_{name}_e:')
        stubs.append(f'L_{name}_s:\n{ins} sc1\ns_branch L_{name}_e')

    a('; ================================================================== entry')
    a(f'{KN}:')
    a('s_cmp_ge_u32 s2, 256\ns_cbranch_scc1 L_end')
    if stamps: a('s_memrealtime s[94:95]')
    PTRS = ((SK, 8, 64 << 20), (SX, 0, 1024), (SWQ, 24, 4 << 20), (SWS, 88, 268435456), (SV, 16, 64 << 20), (SWO, 32, 4 << 20), (SG, 48, 512 * 3584),
            (SU, 56, 512 * 3584), (SD, 64, 1792 * 1024), (SO, 72, 1024)) + (((SDBG, 80, 256),) if stamps == 'dbg' else ())
    def srds(which):
        for b, off, n in which: a(f's_load_dwordx2 s[{b}:{b+1}], s[0:1], {off}')
        for b, off, n in which: a(f's_mov_b32 s{b+2}, {n}\ns_mov_b32 s{b+3}, 0x20000')
    a(f's_load_dwordx2 s[{SK}:{SK+1}], s[0:1], 8')
    a('v_lshrrev_b32 v1, 6, v0\nv_and_b32 v0, 63, v0')
    a('v_readfirstlane_b32 s3, v1')
    a(f's_mov_b32 s{SK+2}, {64 << 20}\ns_mov_b32 s{SK+3}, 0x20000')
    a('s_and_b32 s4, s2, 7\ns_lshr_b32 s5, s2, 3')
    if sfirst: a('s_xor_b32 s3, s3, 4')
    a('s_and_b32 s6, s3, 3')
    a('s_cmp_lt_u32 s3, 4\ns_cbranch_scc1 L_H')
    RING = 96
    if sprio: a(f's_setprio {sprio}')
    def slot(k): return RING + 4 * k
    a('v_and_b32 v1, 3, v0\nv_lshlrev_b32 v1, 8, v1\nv_lshrrev_b32 v2, 2, v0\nv_lshl_add_u32 v1, v2, 4, v1')
    a('v_lshlrev_b32 v2, 4, v0')
    if dbg_klin: a('v_mov_b32 v1, v2')
    saddr('s7', (('s4', 23), ('s5', pcs), ('s6', 12)), tmp='s8')
    a('s_mov_b32 s8, s7')
    if dlo: a(f's_getreg_b32 s9, hwreg(HW_REG_XCC_ID)\ns_and_b32 s9, s9, 7\ns_lshr_b32 s9, {dmask}, s9\ns_and_b32 s9, s9, 1\ns_cselect_b64 vcc, -1, 0')
    if stamps: a(f'v_mov_b32 v{SST}, 0')
    a('s_waitcnt lgkmcnt(0)')
    if stamps: a(f'v_writelane_b32 v{SST}, s94, 0'); nst['S'] = ['start']
    st = dict(I=0, free=list(range(nslots)), where={})
    def issue(pace=True):
        n = st['I']
        fl = st['free']
        k = next(x for x in fl if n < 64 or x >= 8)
        fl.remove(k); st['where'][n] = k
        if pace and n >= (D0 or D): a(f's_waitcnt vmcnt({D-1})')
        if dlo and n >= max(dlo, dfrom) and n % dstep == 0 and not (80 - lead_sm <= n - 0 < 80 and not pace and n < 64 + lead_sm):
            a(f's_cbranch_vccnz L_d{n}\ns_waitcnt vmcnt({dlo-1})\nL_d{n}:')
        if stamps is True and n in (7, 16, 24, 33): stamp('S', f'n{n}', SST)
        if n == 64: a('s_mov_b32 s8, s7')
        a(f'buffer_load_dwordx4 v[{slot(k)}:{slot(k)+3}], {"v1" if (n < 64 and not klin) else "v2"}, {srd(SK if n < 64 else SV)}, s8 offen offset:{(n & 3) * 1024} nt')
        if n & 3 == 3 and n != 63 and n != 127:
            jump = ((n + 1) * 4096) % (1 << pcs) == 0
            a(f's_add_u32 s8, s8, {0x4000 + (31 << pcs if jump else 0)}')
        st['I'] = n + 1
    def can_issue():
        n = st['I']
        return n < 128 and any(n < 64 or x >= 8 for x in st['free'])
    if dbg_extra:
        a('s_add_u32 s9, s7, 0x20000')
        for n in range(dbg_extra):
            if n >= D: a(f's_waitcnt vmcnt({D-1})')
            a(f'buffer_load_dwordx4 v[{slot(n % D)}:{slot(n % D)+3}], v2, {srd(SV)}, s9 offen offset:{(n & 3) * 1024} nt')
            if n & 3 == 3: a('s_add_u32 s9, s9, 0x4000')
        a('s_waitcnt vmcnt(0)')
    for n in range(nslots):
        if n == (D0 or D):
            if hfirst:
                a('s_branch L_S0'); srest0 = len(a.L); a('L_S0:')
            srds(PTRS[1:])
        issue()
    a('s_waitcnt lgkmcnt(0)')
    stamp('S', 'pref', SST)
    a('s_barrier')
    a('s_branch L_S')
    if hfirst:
        srest = a.L[srest0:]; del a.L[srest0:]

    a('; ================================================================== H start')
    a('L_H:')
    srds(PTRS[1:])
    if stamps: a(f'v_mov_b32 v{HST}, 0')
    a('s_and_b32 s17, s5, 7\ns_lshr_b32 s18, s5, 3')
    a('s_cmp_lg_u32 s3, 0\ns_cbranch_scc1 L_Hwarm')
    if dbg_noq: a('s_branch L_Hwarm')
    if hprio: a(f's_setprio {hprio}')
    a('v_lshlrev_b32 v2, 4, v0')
    a('v_lshrrev_b32 v1, 3, v0\nv_lshlrev_b32 v1, 13, v1\nv_and_b32 v3, 7, v0\nv_lshl_add_u32 v1, v3, 4, v1')
    saddr('s8', (('s18', 20), ('s4', 10), ('s17', 7)))
    a(f's_mov_b32 m0, {L_WQ}')
    a('s_getreg_b32 s38, hwreg(HW_REG_XCC_ID)\ns_and_b32 s38, s38, 15')
    a('s_waitcnt lgkmcnt(0)')
    if stamps: a(f'v_writelane_b32 v{HST}, s94, 0'); nst['H'] = ['start']
    a(f's_load_dword s33, s[{SWS}:{SWS+1}], {EPOCH}')
    a(f'buffer_load_dwordx4 v[4:7], v2, {srd(SX)}, 0 offen')
    for m in range(16):
        a(f'buffer_load_dwordx4 v1, {srd(SWQ)}, s8 offen nt lds')
        if m < 15: a(f's_add_u32 m0, m0, 1024\ns_add_u32 s8, s8, 0x10000')
    a.cand()
    a('s_mov_b32 s12, 0xffff0000')
    a('s_waitcnt vmcnt(16)')
    for d in range(4): a(f'v_lshlrev_b32 v{8+2*d}, 16, v{4+d}\nv_and_b32 v{9+2*d}, s12, v{4+d}')
    a('v_add_f32 v16, v8, v9\nv_add_f32 v17, v10, v11\nv_add_f32 v18, v12, v13\nv_add_f32 v19, v14, v15\nv_add_f32 v16, v16, v17\nv_add_f32 v18, v18, v19\nv_add_f32 v16, v16, v18')
    allreduce(16, 17)
    a('v_mul_f32 v16, 0x3b000000, v16')
    a('v_sub_f32 v17, v8, v16\nv_mul_f32 v18, v17, v17')
    for e in range(1, 8): a(f'v_sub_f32 v17, v{8+e}, v16\nv_fmac_f32 v18, v17, v17')
    allreduce(18, 17)
    a('v_mul_f32 v18, 0x3b000000, v18'); rbf(18)
    a('v_add_f32 v18, 0x3727c5ac, v18'); rbf(18)
    a('v_sqrt_f32 v18, v18'); rbf(18)
    a('v_rcp_f32 v18, v18'); rbf(16)
    for e in range(8): a(f'v_sub_f32 v{8+e}, v{8+e}, v16')
    for d in range(4): a(f'v_cvt_pk_bf16_f32 v{4+d}, v{8+2*d}, v{9+2*d}')
    for d in range(4): a(f'v_lshlrev_b32 v{8+2*d}, 16, v{4+d}\nv_and_b32 v{9+2*d}, s12, v{4+d}')
    for e in range(8): a(f'v_mul_f32 v{8+e}, v{8+e}, v18')
    for d in range(4): a(f'v_cvt_pk_bf16_f32 v{4+d}, v{8+2*d}, v{9+2*d}')
    a(f'ds_write_b128 v2, v[4:7] offset:{L_XN}')
    a.cand()
    a('v_lshrrev_b32 v3, 4, v0\nv_lshlrev_b32 v16, 4, v3\ns_lshl_b32 s9, s18, 8\nv_add_u32 v16, s9, v16')
    a('v_lshlrev_b32 v17, 10, v3\nv_bfe_u32 v18, v0, 2, 2\nv_lshl_add_u32 v17, v18, 7, v17\nv_and_b32 v18, 3, v0\nv_lshl_add_u32 v17, v18, 3, v17')
    a('s_waitcnt lgkmcnt(0)')
    for s_ in range(4): a(f'ds_read_b128 v[{64+4*s_}:{67+4*s_}], v16 offset:{L_XN + s_*64}')
    tags()
    lanetag(19, 18)
    a(f'v_cmp_eq_u32 vcc, 3, v18\nv_mov_b32 v21, s38\nv_mov_b32 v20, {TAGM}\nv_cndmask_b32 v21, 0, v21, vcc\nv_xor_b32 v19, v19, v21\ns_xor_b32 s13, s37, s38')
    a('s_waitcnt vmcnt(0) lgkmcnt(0)')
    stamp('H', 'wq', HST)
    a.cand()
    order = [(s_, cg) for s_ in range(4) for cg in range(4)]
    def qmfma(q):
        s_, cg = order[q]
        a(f'v_mfma_f32_16x16x32_bf16 v[{24+4*cg}:{27+4*cg}], v[{64+4*s_}:{67+4*s_}], v[{128+4*q}:{131+4*q}], {"0" if s_ == 0 else f"v[{24+4*cg}:{27+4*cg}]"}')
    for q, (s_, cg) in enumerate(order):
        for eh in range(2): a(f'ds_read_b64_tr_b16 v[{128+4*q+2*eh}:{129+4*q+2*eh}], v17 offset:{L_WQ + s_*4096 + eh*512 + cg*32}')
        if q >= 4:
            a(f's_waitcnt lgkmcnt(8)'); qmfma(q - 4)
    for q in range(12, 16):
        a(f's_waitcnt lgkmcnt({2*(15-q)})'); qmfma(q)
    a('v_lshlrev_b32 v3, 2, v0')
    saddr('s9', (('s4', 13), ('s18', 11), ('s17', 8)), QP)
    saddr('s16', (('s4', 13),), QP); a('s_add_u32 s15, s16, 4096')
    for cg in range(1, 4): a(f'v_mov_b32_dpp v24, v{24+4*cg} quad_perm:[0,1,2,3] row_mask:{1 << cg} bank_mask:0xf')
    a(f'v_add_u32 v24, {(TAGM + 1) // 2}, v24\nv_bfi_b32 v24, v20, v19, v24')
    if qlocal: a('; first without device scope (enough if the group shares a die); repeated with device scope after two failed sweeps or on seeing another die')
    a(f'buffer_store_dword v24, v3, {srd(SWS)}, s9 offen {"" if qlocal else "sc1"}')
    a('s_mov_b32 s14, 0')
    stamp('H', 'qpub', HST)
    a.cand()
    def tagcheck(base, n, tmp, waits=True):
        for k in range(n):
            if waits: a(f's_waitcnt vmcnt({n-1-k})')
            r = base + 4*k
            for e in range(4): a(f'v_xor_b32 v{r+e}, s{34+e}, v{r+e}')
            if k == 0: a(f'v_or_b32 v{tmp}, v{r}, v{r+1}\nv_or_b32 v{tmp+1}, v{r+2}, v{r+3}')
            else: a(f'v_or3_b32 v{tmp}, v{tmp}, v{r}, v{r+1}\nv_or3_b32 v{tmp+1}, v{tmp+1}, v{r+2}, v{r+3}')
        a(f'v_bitop3_b32 v{tmp}, v{tmp}, v{tmp+1}, v{VM} bitop3:0xa8\nv_cmp_ne_u32 vcc, 0, v{tmp}')
    VM = 20
    a('L_qpoll:')
    if qlocal:
        a(f's_cmp_lg_u32 s14, {qlocal}\ns_cbranch_scc1 L_qnr\ns_mov_b64 s[22:23], exec\ns_mov_b64 exec, -1\nbuffer_store_dword v24, v3, {srd(SWS)}, s9 offen sc1\ns_mov_b64 exec, s[22:23]\nL_qnr:')
    if qdelay: a(f's_sleep {min(127, 8 * qdelay)}      ; back-off: every failed sweep takes 8 KB out of this CU\'s K/V stream')
    for k in range(8):
        a(f'buffer_load_dwordx4 v[{64+4*k}:{67+4*k}], v2, {srd(SWS)}, {"s16" if k < 4 else "s15"} offen offset:{(k & 3) * 1024} sc1')
    a(f's_add_u32 s14, s14, 1\ns_cmp_gt_u32 s14, {SPIN}\ns_cbranch_scc1 L_qdone')
    for k in range(8):
        r = 64 + 4*k
        a(f's_waitcnt vmcnt({7-k})\nv_xor_b32 v{r}, s34, v{r}\nv_xor_b32 v{r+1}, s35, v{r+1}\nv_xor_b32 v{r+2}, s36, v{r+2}\nv_xor_b32 v{r+3}, s13, v{r+3}')
        if k == 0: a(f'v_or3_b32 v8, v{r}, v{r+1}, v{r+2}\nv_mov_b32 v9, v{r+3}')
        else: a(f'v_or3_b32 v8, v8, v{r}, v{r+1}\nv_or_b32 v8, v8, v{r+2}\nv_or_b32 v9, v9, v{r+3}')
    a(f'v_and_b32 v10, {TAGM & ~15}, v9\nv_bitop3_b32 v8, v8, v10, v20 bitop3:0xa8\nv_cmp_ne_u32 vcc, 0, v8')
    a('s_and_b64 exec, exec, vcc\ns_cbranch_execnz L_qpoll')
    a('L_qdone:')
    a('s_mov_b64 exec, -1\ns_waitcnt vmcnt(0)')
    a(f'v_and_b32 v9, 15, v9\nv_cmp_ne_u32 vcc, 0, v9\ns_cmp_eq_u64 vcc, 0\ns_cselect_b32 s39, 1, 0\nv_mov_b32 v9, s39\nv_mov_b32 v10, 0\nds_write_b32 v10, v9 offset:{L_FAST}')
    if qlocal:
        a(f's_cmp_lg_u32 s39, 0\ns_cbranch_scc1 L_qsame\nbuffer_store_dword v24, v3, {srd(SWS)}, s9 offen sc1\nL_qsame:')
    for k in range(8): a(f'v_and_b32 v{67+4*k}, -16, v{67+4*k}')
    a('v_lshlrev_b32 v3, 3, v0')
    for e in range(8): a(f'v_add_f32 v{64+e}, v{64+e}, v{72+e}')
    for e in range(8): a(f'v_add_f32 v{80+e}, v{80+e}, v{88+e}')
    for e in range(8): a(f'v_add_f32 v{64+e}, v{64+e}, v{80+e}')
    for d in range(4): a(f'v_cvt_pk_bf16_f32 v{4+d}, v{64+2*d}, v{65+2*d}')
    a(f'ds_write2st64_b64 v3, v[4:5], v[6:7] offset0:{L_Q//512} offset1:{L_Q//512+1}')
    a('s_waitcnt lgkmcnt(0)')
    stamp('H', 'qgot', HST)
    if hprio: a('s_setprio 0')
    a('s_branch L_Hb1')
    if hfirst: a.L += srest
    a('L_Hwarm:')
    a('s_waitcnt lgkmcnt(0)')
    if stamps: a(f'v_writelane_b32 v{HST}, s94, 0')
    a(f's_load_dword s33, s[{SWS}:{SWS+1}], {EPOCH}')
    if warm:
        a('s_mov_b64 exec, 0')
        a('s_cmp_eq_u32 s3, 1\ns_cbranch_scc1 @W0\ns_cmp_eq_u32 s3, 2\ns_cbranch_scc1 @W1\ns_branch @W2')
        a('L_warm_end:')
        a('s_mov_b64 exec, -1')
        if stamps is True: a(f's_memrealtime s[90:91]\ns_waitcnt lgkmcnt(0)\nv_writelane_b32 v{HST}, s90, 1')
    a('s_waitcnt lgkmcnt(0)')
    tags()
    a('L_Hb1:')
    a('s_barrier      ; B1')
    a('s_branch L_Hmid')

    smain0 = len(a.L)
    a('; ================================================================== S main')
    a('L_S:')
    a.cand()
    Q, P, ACC = 20, 24, 56
    QM = (20, 16, 88, 92)
    if klin:
        a('v_and_b32 v1, 3, v0\nv_lshlrev_b32 v1, 8, v1\nv_bfe_u32 v4, v0, 2, 2\nv_lshl_add_u32 v1, v4, 6, v1')
        for m in range(4): a(f'ds_read_b128 v[{QM[m]}:{QM[m]+3}], v1 offset:{L_Q + 16*m}')
        a('s_mov_b32 s20, 0x55555555\ns_mov_b32 s21, s20\ns_not_b64 s[22:23], s[20:21]\ns_mov_b32 s24, 0x33333333\ns_mov_b32 s25, s24\ns_not_b64 s[26:27], s[24:25]')
    else:
        a(f'ds_read_b128 v[{Q}:{Q+3}], v1 offset:{L_Q}')
    a(f'v_mov_b32 v12, 0\nds_read_b32 v12, v12 offset:{L_FAST}')
    a('s_mov_b32 s12, 0xffff0000\ns_mov_b32 s13, 0x3db504f3\nv_mov_b32 v3, 0xff800000')
    a(f'v_lshrrev_b32 v14, 4, v0')
    a('s_waitcnt lgkmcnt(0)\nv_readfirstlane_b32 s39, v12')
    stamp('S', 'q', SST)
    lead = nslots
    for u in range(16):
        a.cand()
        ks = [slot(st['where'][4*u+e]) for e in range(4)]
        T = [ACC + 4*e for e in range(4)]
        a(f's_waitcnt vmcnt({st["I"] - (4*u+4)})')
        def refill():
            nonlocal lead
            for e in range(4): st['free'].append(st['where'][4*u+e])
            C = 4*u + 4
            lead = max(lead_ss, lead - 2)
            tgt = C + lead if u < 15 else C + lead_sm
            while st['I'] < tgt and can_issue(): issue(pace=(u < 15))
        if klin:
            Z = [ACC + 4*e for e in range(4)]; Yk = [ACC + 16 + 4*e for e in range(4)]; DA, DB = 240, 244
            def sel(dst, own, other, perm):
                for d in range(4): a(f'v_cndmask_b32_dpp v{dst+d}, v{other+d}, v{own+d}, vcc quad_perm:{perm} {FULL}')
            def km(m):
                a(f'v_mfma_f32_4x4x4_16b_bf16 v[{DA}:{DA+3}], v[{Yk[m]}:{Yk[m]+1}], v[{QM[m]}:{QM[m]+1}], {"0" if m == 0 else f"v[{DA}:{DA+3}]"}')
                a(f'v_mfma_f32_4x4x4_16b_bf16 v[{DB}:{DB+3}], v[{Yk[m]+2}:{Yk[m]+3}], v[{QM[m]+2}:{QM[m]+3}], {"0" if m == 0 else f"v[{DB}:{DB+3}]"}')
            a('s_mov_b64 vcc, s[20:21]'); sel(Z[0], ks[0], ks[1], '[1,0,3,2]'); sel(Z[2], ks[2], ks[3], '[1,0,3,2]')
            a('s_mov_b64 vcc, s[22:23]'); sel(Z[1], ks[1], ks[0], '[1,0,3,2]'); sel(Z[3], ks[3], ks[2], '[1,0,3,2]')
            refill()
            a('s_mov_b64 vcc, s[24:25]'); sel(Yk[0], Z[0], Z[2], '[2,3,0,1]'); sel(Yk[1], Z[1], Z[3], '[2,3,0,1]')
            a('s_mov_b64 vcc, s[26:27]'); km(0); sel(Yk[2], Z[2], Z[0], '[2,3,0,1]'); km(1); sel(Yk[3], Z[3], Z[1], '[2,3,0,1]'); km(2); a('s_nop 0'); km(3)
            for e in range(4): a(f'v_add_f32 v{T[e]}, v{DA+e}, v{DB+e}')
        else:
            for e in range(4): a(f'v_mfma_f32_4x4x4_16b_bf16 v[{T[e]}:{T[e]+3}], v[{ks[e]}:{ks[e]+1}], v[{Q}:{Q+1}], 0')
            for e in range(4): a(f'v_mfma_f32_4x4x4_16b_bf16 v[{T[e]}:{T[e]+3}], v[{ks[e]+2}:{ks[e]+3}], v[{Q+2}:{Q+3}], v[{T[e]}:{T[e]+3}]')
            refill()
            for e in range(4): a(f'v_permlane32_swap_b32 v{T[e]}, v{T[e]+2}\nv_permlane32_swap_b32 v{T[e]+1}, v{T[e]+3}')
            for e in range(4): a(f'v_add_f32 v{T[e]}, v{T[e]}, v{T[e]+2}\nv_add_f32 v{T[e]+1}, v{T[e]+1}, v{T[e]+3}')
            for e in range(4): a(f'v_permlane16_swap_b32 v{T[e]}, v{T[e]+1}')
            for e in range(4): a(f'v_add_f32 v{T[e]}, v{T[e]}, v{T[e]+1}')
        a.cand()
        for e in range(4): a(f'v_add_f32_dpp v{T[e]+1}, v{T[e]}, v{T[e]} row_ror:4 {FULL}')
        for e in range(4): a(f'v_add_f32_dpp v{T[e]}, v{T[e]+1}, v{T[e]+1} row_ror:8 {FULL}')
        a(f'v_cvt_pk_bf16_f32 v5, v{T[0]}, v{T[1]}\nv_cvt_pk_bf16_f32 v6, v{T[2]}, v{T[3]}')
        a('v_lshlrev_b32 v7, 16, v5\nv_and_b32 v8, s12, v5\nv_lshlrev_b32 v9, 16, v6\nv_and_b32 v10, s12, v6')
        a('v_mul_f32 v7, s13, v7\nv_mul_f32 v8, s13, v8\nv_mul_f32 v9, s13, v9\nv_mul_f32 v10, s13, v10')
        a(f'v_cvt_pk_bf16_f32 v{P+2*u}, v7, v8\nv_cvt_pk_bf16_f32 v{P+2*u+1}, v9, v10')
        a('v_max3_f32 v3, v3, v7, v8\nv_max3_f32 v3, v3, v9, v10')
    stamp('S', 'kdone', SST)
    a.cand()
    crossg(3, 5, 'max')
    a(f'v_and_b32 v5, 3, v0\nv_lshlrev_b32 v5, 4, v5\ns_lshl_b32 s9, s6, 2\nv_add_u32 v6, s9, v5')
    a(f's_mov_b64 exec, 15\nds_write_b32 v6, v3 offset:{L_MX}\ns_mov_b64 exec, -1\ns_waitcnt lgkmcnt(0)')
    a('s_barrier')
    a(f'ds_read_b128 v[8:11], v5 offset:{L_MX}')
    a(f's_mov_b32 s14, {LOG2E}\nv_mov_b32 v4, 0')
    a('s_waitcnt lgkmcnt(0)')
    a('v_max3_f32 v3, v8, v9, v10\nv_max_f32 v3, v3, v11'); rbf(3)
    a('v_mul_f32 v3, s14, v3')
    for r in range(0, 32, 2):
        a.cand()
        a(f'v_lshlrev_b32 v7, 16, v{P+r}\nv_and_b32 v8, s12, v{P+r}\nv_lshlrev_b32 v9, 16, v{P+r+1}\nv_and_b32 v10, s12, v{P+r+1}')
        for t in range(7, 11): a(f'v_fma_f32 v{t}, v{t}, s14, -v3')
        for t in range(7, 11): a(f'v_exp_f32 v{t}, v{t}')
        a(f'v_cvt_pk_bf16_f32 v{P+r}, v7, v8\nv_add_f32 v7, v7, v8\nv_cvt_pk_bf16_f32 v{P+r+1}, v9, v10\nv_add_f32 v9, v9, v10\nv_add_f32 v4, v4, v7\nv_add_f32 v4, v4, v9')
        if r >= 2:
            for q in (3, 2, 1, 0):
                for k in (r - 2, r - 1): a(f'v_mov_b32_dpp v{P+k}, v{P+k} row_newbcast:{q} row_mask:0xf bank_mask:{1 << q}')
                if q: a(f'v_mov_b32 v11, v11')
    for q in (3, 2, 1, 0):
        for k in (30, 31): a(f'v_mov_b32_dpp v{P+k}, v{P+k} row_newbcast:{q} row_mask:0xf bank_mask:{1 << q}')
    crossg(4, 7, 'add')
    a(f's_mov_b64 exec, 15\nds_write_b32 v6, v4 offset:{L_LS}\ns_mov_b64 exec, -1\ns_waitcnt lgkmcnt(0)')
    a('s_barrier')
    stamp('S', 'smdone', SST)
    a(f's_lshl_b32 s9, s6, 4\nv_mov_b32 v13, s9\nds_read_b128 v[8:11], v13 offset:{L_LS}')
    a(f's_lshl_b32 s9, s6, 11\ns_add_u32 s9, s9, {L_EP}\nv_lshl_add_u32 v15, v0, 2, s9')
    a(f'v_and_b32 v17, 3, v0\nv_lshlrev_b32 v16, 9, v17\nv_and_b32 v17, 60, v0\nv_add_u32 v16, v16, v17\ns_lshl_b32 s9, s6, 6\ns_add_u32 s9, s9, {L_EP}\nv_add_u32 v16, s9, v16')
    a(f'v_lshlrev_b32 v17, 2, v0')
    saddr('s15', (('s4', 15), ('s5', 8), ('s6', 13)), M1)
    a('s_mov_b32 s16, 0x05040100\ns_mov_b32 s17, 0x07060302')
    a('s_waitcnt lgkmcnt(0)')
    a('v_add_f32 v8, v8, v9\nv_add_f32 v10, v10, v11\nv_add_f32 v8, v8, v10\nv_rcp_f32 v18, v8')
    AT = RING
    b4_done = False
    for G in range(8):
        a.cand()
        for p in range(4):
            n = 64 + 8*G + 2*p
            k0, k1 = slot(st['where'][n]), slot(st['where'][n+1])
            a(f's_waitcnt vmcnt({st["I"] - (n+2)})')
            lastp = epi and G == 7 and p == 3
            if lastp: stamp('S', 'lastdata', SST)
            pm = [f'v_perm_b32 v{AT+8*d+p}, v{k1+d}, v{k0+d}, s16\nv_perm_b32 v{AT+8*d+4+p}, v{k1+d}, v{k0+d}, s17' for d in range(4)]
            for d in range(2 if lastp else 4): a(pm[d])
            a.cand()
            st['free'] += [st['where'][n], st['where'][n+1]]
            C = n + 2
            ld_ = lead_end if (lead_end and C >= 128 - n_end) else lead_ss
            while st['I'] < C + ld_ and can_issue(): issue(pace=False)
            if st['I'] == 128 and not b4_done:
                a('s_barrier'); b4_done = True
                stamp('S', 'lastiss', SST)
        if G == 7 and not epi: stamp('S', 'lastdata', SST)
        for dd in range(8):
            a(f'v_mfma_f32_16x16x32_bf16 v[{ACC+4*dd}:{ACC+4*dd+3}], v[{P+4*G}:{P+4*G+3}], v[{AT+4*dd}:{AT+4*dd+3}], {"0" if G == 0 else f"v[{ACC+4*dd}:{ACC+4*dd+3}]"}')
            if epi and G == 7 and dd < 2: a(pm[2 + dd])
            if epi and G == 7 and dd == 6: a(f'ds_write2st64_b32 v15, v{ACC}, v{ACC+4} offset0:0 offset1:1')
    for dd in range(2 if epi else 0, 8, 2): a(f'ds_write2st64_b32 v15, v{ACC+4*dd}, v{ACC+4*dd+4} offset0:{dd} offset1:{dd+1}')
    a('s_waitcnt lgkmcnt(0)')
    a('s_barrier      ; B5: partial outputs of the four waves')
    for w in range(4): a(f'ds_read2st64_b32 v[{4+2*w}:{5+2*w}], v16 offset0:{8*w} offset1:{8*w+1}')
    a('s_waitcnt lgkmcnt(2)\nv_add_f32 v4, v4, v6\nv_add_f32 v5, v5, v7\ns_waitcnt lgkmcnt(0)\nv_add_f32 v8, v8, v10\nv_add_f32 v9, v9, v11')
    a('v_add_f32 v4, v4, v8\nv_add_f32 v5, v5, v9\nv_mul_f32 v4, v4, v18\nv_mul_f32 v5, v5, v18\nv_cvt_pk_bf16_f32 v4, v4, v5\nv_min_u32 v4, -2, v4')
    dual_store(f'buffer_store_dword v4, v17, {srd(SWS)}, s15 offen', 'm1')
    stamp('S', 'pub', SST)
    stamp_store(SST)
    a('s_endpgm')

    if dbg_nocomp:
        keepmn = ('v_writelane', 'v_lshlrev_b32 v17, 2', 'v_mov_b32 v12, 0', 'v_readfirstlane', 'v_lshlrev_b32 v%d' % (SST + 1))
        pat = {1: ('v_',), 2: ('v_mfma',), 3: ('v_perm_b32', 'v_permlane', 'v_add', 'v_cvt', 'v_mul', 'v_fma', 'v_exp', 'v_max', 'v_and', 'v_mov_b32_dpp')}[dbg_nocomp]
        a.L[smain0:] = [l for l in a.L[smain0:] if not (l.startswith(pat) and not l.startswith(keepmn))]
    a('; ================================================================== H mid')
    a('L_Hmid:')
    a.cand()
    W8, WOB, GUB, WDB, A1, DW, Y = 28, 44, 60, 76, 100, 132, 164
    VM = 17
    a('v_lshrrev_b32 v3, 4, v0\nv_and_b32 v4, 15, v0\nv_lshlrev_b32 v5, 4, v3\nv_and_b32 v6, 7, v0')
    a('s_mov_b32 s12, 0xffff0000\ns_lshl_b32 s29, s4, 2\ns_add_u32 s29, s29, s18')
    a(f'v_lshlrev_b32 v7, 1, v0\ns_lshl_b32 s9, s17, 7\nbuffer_load_ushort v40, v7, {srd(SX)}, s9 offen')
    a('v_lshlrev_b32 v25, 2, v0\nv_lshlrev_b32 v19, 4, v0')
    a('v_lshlrev_b32 v20, 8, v4\nv_add_u32 v20, v20, v5\nv_add_u32 v7, 0x1000, v20')
    saddr('s20', (('s29', 13), ('s6', 6)), M1)
    saddr('s21', (('s17', 13), ('s29', 8)), M2)
    saddr('s22', (('s17', 13), ('s6', 11)), M2)
    a(f'v_lshlrev_b32 v23, 4, v4\nv_lshl_add_u32 v23, v3, 2, v23\ns_lshl_b32 s9, s6, 8\nv_add_u32 v23, s9, v23\nv_and_b32 v12, 3, v0')
    AH = 92
    for d in range(8): a(f'v_mov_b32 v{AH+d}, 0x3f803f80')
    lanetag(16, 12)
    a(f'v_mov_b32 v{VM}, {TAGM}')
    a(f's_lshl_b32 s9, s6, 8\ns_add_u32 s9, s9, {L_YW}\nv_add_u32 v26, s9, v25')
    a(f'v_lshlrev_b32 v27, 4, v4\nv_lshl_add_u32 v27, v3, 11, v27')
    saddr('s23', (('s29', 14), ('s17', 8), ('s6', 12)), MF)
    saddr('s24', (('s29', 14), ('s6', 12)), MF)
    saddr('s25', (('s29', 11), ('s17', 8), ('s6', 7)), M3)
    a(f'v_mov_b32 v42, 0\nds_read_b32 v42, v42 offset:{L_FAST}')
    a('s_lshl_b32 s9, s17, 1\ns_sub_u32 s28, s4, s9\ns_add_u32 s28, s28, 14\ns_mul_i32 s9, s28, 37\ns_lshr_b32 s9, s9, 8\ns_mul_i32 s9, s9, 7\ns_sub_u32 s28, s28, s9\ns_lshl_b32 s28, s28, 2\ns_add_u32 s28, s28, s18')
    a(f's_lshl_b32 s15, s17, 3\ns_add_u32 s15, s15, s28')
    a(f'v_and_b32 v12, 1, v0\nv_lshrrev_b32 v36, 1, v0\nv_lshlrev_b32 v36, 11, v36\nv_lshl_add_u32 v36, v12, 4, v36')
    saddr('s84', (('s15', 5),), M3)
    a(f'v_lshl_add_u32 v37, v12, 2, v3\ns_lshl_b32 s9, s28, 5\nv_lshl_add_u32 v38, v37, 2, s9\nv_lshlrev_b32 v37, 1, v37\ns_lshl_b32 s15, s15, 4')
    a.cand()
    a('s_waitcnt vmcnt(0) lgkmcnt(0)\nv_lshlrev_b32 v40, 16, v40\nv_readfirstlane_b32 s39, v42')
    def wo_issue():
        if dbg_now: return
        saddr('s9', (('s29', 17), ('s6', 15), ('s17', 7)))
        a(f's_lshl_b32 s10, s6, 12\ns_add_u32 m0, s10, {L_WQ}')
        for m in range(4):
            a(f'buffer_load_dwordx4 v18, {srd(SWO)}, s9 offen nt lds')
            if m < 3: a('s_add_u32 m0, m0, 1024\ns_add_u32 s9, s9, 0x2000')
    a('; For the group without an F role (h = 7) these offsets lie past the end of the weight buffers: the loads return zeros.')
    def gu_addr():
        a(f'v_lshrrev_b32 v14, 3, v0\nv_mul_u32_u24 v14, 0xe00, v14\nv_lshl_add_u32 v14, v6, 4, v14')
        a(f's_mul_i32 s30, s17, {64*3584}\ns_mul_i32 s10, s6, {16*3584}\ns_add_u32 s30, s30, s10\ns_lshl_b32 s10, s29, 7\ns_add_u32 s30, s30, s10')
        a(f's_cmp_eq_u32 s4, 7\ns_cselect_b32 s30, 0x1000000, s30\ns_add_u32 s31, s30, {8*3584 - 1024}')
        saddr('s32', (('s29', 16), ('s6', 14), ('s17', 7)))
        a(f's_add_u32 s19, s32, {0x2000 - 1024}\ns_lshl_b32 s13, s6, 11\ns_add_u32 s85, s13, {L_G}\ns_add_u32 s87, s13, {L_U}\ns_add_u32 s33, s13, {L_D}')
        if wd == 'p2':
            saddr('s32', (('s29', 16), ('s17', 7), ('s6', 6)))
            a(f's_cmp_gt_u32 s6, 1\ns_cselect_b32 s32, 0x1000000, s32\ns_lshl_b32 s33, s6, 12\ns_add_u32 s33, s33, {L_D}')
            a('v_lshrrev_b32 v41, 2, v0\nv_lshlrev_b32 v41, 10, v41\nv_and_b32 v12, 3, v0\nv_lshl_add_u32 v41, v12, 4, v41')
        a('v_lshrrev_b32 v18, 3, v0\nv_lshlrev_b32 v18, 10, v18\nv_lshl_add_u32 v18, v6, 4, v18')
        a(f'v_lshrrev_b32 v1, 5, v0\nv_lshl_add_u32 v1, v1, 3, v6\ns_lshl_b32 s9, s6, 4\nv_add_u32 v1, s9, v1\nv_lshlrev_b32 v1, 1, v1')
    def gu_issue(when):
        if dbg_now: return 0
        n = 0
        for w_, base, sr in ((wg, 's85', SG), (wu, 's87', SU)):
            if w_ != when: continue
            a(f's_mov_b32 m0, {base}')
            a(f'buffer_load_dwordx4 v14, {srd(sr)}, s30 offen nt lds')
            a(f'buffer_load_dwordx4 v14, {srd(sr)}, s31 offen offset:1024 nt lds')
            n += 2
        return n
    def dn_issue(when):
        if dbg_now or wd != when: return 0
        if wd == 'p2':
            a(f's_mov_b32 m0, s33')
            for m in range(4):
                a(f'buffer_load_dwordx4 v41, {srd(SD)}, s32 offen offset:{1024*m} nt lds')
                if m < 3: a(f's_add_u32 s32, s32, {0x4000 - 1024}')
            return 4
        a(f's_mov_b32 m0, s33')
        a(f'buffer_load_dwordx4 v18, {srd(SD)}, s32 offen nt lds')
        a(f'buffer_load_dwordx4 v18, {srd(SD)}, s19 offen offset:1024 nt lds')
        return 2
    adapt = 'adapt' in (wg, wu, wd)
    gu_late = 'hop1' in (wg, wu) or 'adapt' in (wg, wu)
    def wo_read():
        for cg in range(4):
            for eh in range(2): a(f'ds_read_b64_tr_b16 v[{WOB+4*cg+2*eh}:{WOB+4*cg+2*eh+1}], v22 offset:{L_WQ + eh*512 + cg*32}')
    def gu_read():
        for s_ in range(2):
            for sb in range(2):
                for eh in range(2): a(f'ds_read_b64_tr_b16 v[{GUB+8*sb+4*s_+2*eh}:{GUB+8*sb+4*s_+2*eh+1}], v15 offset:{L_G + s_*1024 + eh*512 + sb*16}')
    def dn_read():
        for cgl in range(2):
            for s_ in range(2):
                for eh in range(2):
                    off = L_D + (s_*2048 + eh*256 if wd == 'p2' else s_*4096 + eh*512) + cgl*32
                    a(f'ds_read_b64_tr_b16 v[{WDB+8*cgl+4*s_+2*eh}:{WDB+8*cgl+4*s_+2*eh+1}], v39 offset:{off}')
    gu_addr()
    a('v_lshlrev_b32 v15, 10, v3\nv_bfe_u32 v13, v0, 2, 2\nv_lshl_add_u32 v15, v13, 7, v15\nv_and_b32 v12, 3, v0\nv_lshl_add_u32 v22, v12, 3, v15\ns_lshl_b32 s9, s6, 6\nv_add_u32 v39, s9, v22\ns_lshl_b32 s9, s6, 12\nv_add_u32 v22, s9, v22')
    a(f'v_and_b32 v12, 1, v0\nv_lshl_add_u32 v15, v12, 3, v15\nv_bfe_u32 v12, v0, 1, 1\nv_mul_u32_u24 v12, {L_U - L_G}, v12\nv_add_u32 v15, v15, v12\nv_lshl_add_u32 v15, v3, 10, v15\ns_lshl_b32 s9, s6, 5\nv_add_u32 v15, s9, v15')
    if wd == 'p2': a('v_lshlrev_b32 v39, 9, v3\nv_lshl_add_u32 v39, v13, 6, v39\nv_and_b32 v12, 3, v0\nv_lshl_add_u32 v39, v12, 3, v39\ns_lshl_b32 s9, s6, 12\nv_add_u32 v39, s9, v39')
    def m1_clear():
        a('; empty the own M1 slots; the log-sum-exp words are published only after this store is acknowledged')
        a('v_mov_b32 v8, -1\nv_mov_b32 v9, -1\nv_mov_b32 v10, -1\nv_mov_b32 v11, -1\nv_lshlrev_b32 v12, 13, v3\nv_lshl_add_u32 v12, v4, 4, v12')
        saddr('s9', (('s4', 15), ('s5', 8)), M1)
        if not dbg_noclr: dual_store(f'buffer_store_dwordx4 v[8:11], v12, {srd(SWS)}, s9 offen', 'clr')
        a('s_waitcnt vmcnt(0)')
    if clrpos == 1:
        a('s_cmp_lg_u32 s3, 0\ns_cbranch_scc1 L_clre'); m1_clear(); a('L_clre:')
    a('s_barrier      ; B2')
    a('s_barrier      ; B3')
    a.cand()
    if dbg_nomid: a('s_branch L_noearly')
    gu_issue('mid'); dn_issue('mid')
    a('s_cmp_lg_u32 s3, 0\ns_cbranch_scc1 L_nolam')
    if clrpos == 3: m1_clear()
    if touch:
        a(f'buffer_load_dword v{Y+8}, v25, {srd(SWS)}, s25 offen sc1\nbuffer_load_dword v{Y+9}, v25, {srd(SWS)}, s21 offen sc1')
    a("; publish the log2-sum-exp of this workgroup's chunk, collect those of the head it will combine")
    a(f'v_and_b32 v12, 3, v0\nv_lshlrev_b32 v12, 4, v12\nds_read_b128 v[8:11], v12 offset:{L_MX}\nds_read_b128 v[{Y}:{Y+3}], v12 offset:{L_LS}\ns_mov_b32 s14, {LOG2E}')
    saddr('s11', (('s4', 10), ('s5', 5)), LAM)
    saddr('s27', (('s4', 10), ('s18', 3)), LAM)
    a('s_waitcnt lgkmcnt(0)')
    a('v_max3_f32 v8, v8, v9, v10\nv_max_f32 v8, v8, v11'); rbf(8)
    a(f'v_add_f32 v9, v{Y}, v{Y+1}\nv_add_f32 v10, v{Y+2}, v{Y+3}\nv_add_f32 v9, v9, v10\nv_log_f32 v9, v9\nv_mul_f32 v8, s14, v8\nv_add_f32 v8, v8, v9\nv_mov_b32 v9, s96')
    a(f'v_lshlrev_b32 v12, 3, v0\ns_mov_b64 exec, 15')
    dual_store(f'buffer_store_dwordx2 v[8:9], v12, {srd(SWS)}, s11 offen', 'lam')
    a('s_mov_b64 exec, -1\nv_and_b32 v12, 31, v0\nv_lshlrev_b32 v12, 5, v12\ns_mov_b32 s14, 0')
    a.cand()
    a('L_lpoll:')
    a(f's_sleep {lamdelay}')
    a(f'buffer_load_dwordx2 v[10:11], v12, {srd(SWS)}, s27 offen sc1')
    a(f's_add_u32 s14, s14, 1\ns_cmp_gt_u32 s14, {SPIN}\ns_waitcnt vmcnt(0)\ns_cbranch_scc1 L_ldone')
    a('v_cmp_ne_u32 vcc, s96, v11\ns_cbranch_vccnz L_lpoll')
    a('L_ldone:')
    a('v_mov_b32 v8, v10'); allreduce(8, 9, 'max')
    a('v_sub_f32 v10, v10, v8\nv_exp_f32 v10, v10\ns_nop 0\nv_mov_b32 v8, v10'); allreduce(8, 9, 'add')
    a(f'v_rcp_f32 v8, v8\nv_add_f32 v10, v10, v10\nv_mul_f32 v10, v10, v8\ns_mov_b32 exec_hi, 0\nds_write_b32 v25, v10 offset:{L_W}\ns_mov_b64 exec, -1')
    a('L_nolam:')
    stamp('H', 'lam', HST)
    R = Y + 4
    m1_loads = [f'buffer_load_dwordx4 v[{A1+4*t}:{A1+4*t+3}], {("v20", "v7")[t]}, {srd(SWS)}, s20 offen sc1' for t in range(2)]
    m2_loads = [f'buffer_load_dwordx4 v[{Y+4*j}:{Y+4*j+3}], v19, {srd(SWS)}, s22 offen offset:{j*1024} sc1' for j in range(2)]
    mf_loads = [f'buffer_load_dwordx4 v[{A1+4*j}:{A1+4*j+3}], v19, {srd(SWS)}, s24 offen offset:{j*1024} sc1' for j in range(4)]
    m3_loads = [f'buffer_load_dwordx4 v[{R}:{R+3}], v36, {srd(SWS)}, s84 offen sc1']
    if '1' in early:
        for l in m1_loads: a(l)
    a('s_cmp_eq_u32 s4, 7\ns_cbranch_scc1 L_noearly')
    if '2' in early:
        for l in m2_loads: a(l)
    if 'f' in early:
        a('s_cmp_lg_u32 s17, 0\ns_cbranch_scc1 L_noearly2')
        for l in mf_loads: a(l)
        a('L_noearly2:')
    if '3' in early:
        a('s_cmp_gt_u32 s28, 7\ns_cbranch_scc1 L_noearly\ns_cmp_lg_u32 s3, 2\ns_cbranch_scc1 L_noearly')
        for l in m3_loads: a(l)
    a('L_noearly:')
    a('s_waitcnt vmcnt(0) lgkmcnt(0)')
    a.cand()
    a('s_barrier      ; B4')
    wo_issue()
    nwf = gu_issue('b4') + dn_issue('b4')
    if adapt: a('s_mov_b32 s86, 0')
    a(f'ds_read_b128 v[{W8}:{W8+3}], v5 offset:{L_W}\nds_read_b128 v[{W8+4}:{W8+7}], v5 offset:{L_W + 64}')
    a('s_barrier      ; B5')
    stamp('H', 'b5', HST)
    if dbg_notail:
        stamp('H', 'out', HST); a('s_branch L_Hend')
    a.cand()
    names = ('p1', 'p2', 'p25', 'p3')
    def poll(name, loads, base, tmp=8, tagged=True, after_first=None):
        n = len(loads); nreg = 4 * n
        a('s_mov_b32 s14, 0')
        dl = pd[names.index(name)]
        if name == 'p25' and local and pdslow: a(f's_cmp_lg_u32 s39, 0\ns_cbranch_scc1 L_{name}\ns_sleep {pdslow}')
        elif dl: a(f's_sleep {dl}')
        if after_first:
            for l in loads: a(l)
            after_first()
            a(f's_branch L_{name}_c')
        a(f'L_{name}:')
        for l in loads: a(l)
        a(f's_add_u32 s14, s14, 1\ns_cmp_gt_u32 s14, {SPIN}\ns_cbranch_scc1 L_{name}_x')
        if tagged:
            prog = progw and not (name == 'p2' and (pretouch or wd == 'p2'))
            a(f'L_{name}_c:' if prog else f's_waitcnt vmcnt(0)\nL_{name}_c:')
            tagcheck(base, n, tmp, waits=prog)
        else:
            a(f's_waitcnt vmcnt(0)\nL_{name}_c:')
            a(f'v_max3_u32 v{tmp}, v{base}, v{base+1}, v{base+2}\nv_max3_u32 v{tmp+1}, v{base+3}, v{base+4}, v{base+5}\nv_max3_u32 v{tmp}, v{tmp}, v{base+6}, v{base+7}\nv_max_u32 v{tmp}, v{tmp}, v{tmp+1}')
            a(f'v_cmp_eq_u32 vcc, -1, v{tmp}')
        if name == 'p1' and adapt:
            a(f's_and_b64 exec, exec, vcc\ns_cbranch_execnz L_p1_more')
            keep = a.L; a.L = []
            a(f'L_p1_more:\ns_cmp_lg_u32 s14, 0\ns_cbranch_scc1 L_p1\ns_bcnt1_i32_b64 s9, exec\ns_cmp_lt_u32 s9, {4 * thr}\ns_cbranch_scc1 L_p1')
            a('s_mov_b64 s[88:89], exec\ns_mov_b64 exec, -1\ns_mov_b32 s86, 1')
            gu_issue('adapt'); dn_issue('adapt')
            a('s_mov_b64 exec, s[88:89]\ns_branch L_p1')
            stubs.append('\n'.join(a.L)); a.L = keep
        else:
            a(f's_and_b64 exec, exec, vcc\ns_cbranch_execnz L_{name}')
        a(f'L_{name}_x:')
        a('s_mov_b64 exec, -1')
        if stamps is True: a(f's_add_u32 s14, s14, 1\nv_writelane_b32 v{HST}, s14, {40 + names.index(name)}')
    def p1_first():
        a(f's_waitcnt vmcnt({nwf + 2})'); wo_read(); a('s_waitcnt vmcnt(0)')
    poll('p1', m1_loads, A1, tagged=False, after_first=p1_first)
    a('s_waitcnt vmcnt(0) lgkmcnt(0)')
    stamp('H', 'hop1', HST)
    if preinv:
        a(f's_cmp_lg_u32 s3, 0\ns_cbranch_scc1 L_npi\nv_not_b32 v12, v16\nbuffer_store_dword v12, v25, {srd(SWS)}, s21 offen sc1\nL_npi:')
    fm = [f'v_mul_f32 v8, v{W8}, v{DW}'] + [f'v_fmac_f32 v8, v{W8+r}, v{DW+r}' for r in range(1, 8)]
    for cg in range(4):
        for t in range(2):
            a(f'v_mfma_f32_16x16x32_bf16 v[{DW+8*cg+4*t}:{DW+8*cg+4*t+3}], v[{A1+4*t}:{A1+4*t+3}], v[{WOB+4*cg}:{WOB+4*cg+3}], 0')
            if wint and 2*cg + t >= 6:
                for k in range(2): a(fm.pop(0))
    def late_issue():
        if adapt:
            a('s_cmp_lg_u32 s86, 0\ns_cbranch_scc1 L_ad')
            gu_issue('adapt'); dn_issue('adapt')
            a('L_ad:')
        gu_issue('hop1'); dn_issue('hop1')
    if lpos == 0: late_issue()
    if wint:
        for l in fm: a(l)
    for cg in range(1 if wint else 0, 4):
        a(f'v_pk_mul_f32 v[{DW+8*cg}:{DW+8*cg+1}], v[{W8}:{W8+1}], v[{DW+8*cg}:{DW+8*cg+1}]')
        for r in range(2, 8, 2): a(f'v_pk_fma_f32 v[{DW+8*cg}:{DW+8*cg+1}], v[{W8+r}:{W8+r+1}], v[{DW+8*cg+r}:{DW+8*cg+r+1}], v[{DW+8*cg}:{DW+8*cg+1}]')
    for cg in ((2, 1, 3) if wint else (0, 2, 1, 3)): a(f'v_add_f32 v{8+cg}, v{DW+8*cg}, v{DW+8*cg+1}')
    a('v_permlane32_swap_b32 v8, v10\nv_add_f32 v8, v8, v10\nv_permlane32_swap_b32 v9, v11\nv_add_f32 v9, v9, v11\nv_permlane16_swap_b32 v8, v9\nv_add_f32 v8, v8, v9')
    a('ds_write_b32 v26, v8')
    if lpos == 1: late_issue()
    a('s_waitcnt lgkmcnt(0)')
    a('s_barrier      ; BW')
    a('s_cmp_lg_u32 s3, 0\ns_cbranch_scc1 L_nowpub')
    a(f'ds_read2st64_b32 v[8:9], v25 offset0:{L_YW//256} offset1:{L_YW//256+1}\nds_read2st64_b32 v[10:11], v25 offset0:{L_YW//256+2} offset1:{L_YW//256+3}')
    a(f's_waitcnt lgkmcnt(0)\nv_add_f32 v8, v8, v9\nv_add_f32 v10, v10, v11\nv_add_f32 v8, v8, v10\nv_bfi_b32 v8, v{VM}, v16, v8')
    a(f'buffer_store_dword v8, v25, {srd(SWS)}, s21 offen sc1')
    a('L_nowpub:')
    if lpos == 2: late_issue()
    stamp('H', 'wpub', HST)
    a('s_cmp_eq_u32 s4, 7\ns_cbranch_scc1 L_Hend')
    if not gu_late: gu_read()
    a.cand()
    def p2_first():
        npt = 0
        if local and pretouch:
            for l in mf_loads: a(l)
            npt = 4
        npt += dn_issue('p2')
        if npt or not progw: a(f's_waitcnt vmcnt({npt})')
    poll('p2', m2_loads, Y, after_first=p2_first)
    stamp('H', 'hop2', HST)
    for e in range(4): a(f'v_add_f32 v{Y+e}, v{Y+e}, v{Y+4+e}')
    a(f'v_permlane32_swap_b32 v{Y}, v{Y+2}\nv_permlane32_swap_b32 v{Y+1}, v{Y+3}\nv_add_f32 v{Y}, v{Y}, v{Y+2}\nv_add_f32 v{Y+1}, v{Y+1}, v{Y+3}')
    a(f'v_permlane16_swap_b32 v{Y}, v{Y+1}\nv_add_f32 v8, v{Y}, v{Y+1}')
    a(f'ds_write_b32 v23, v8 offset:{L_HP}\ns_waitcnt lgkmcnt(0)')
    a('s_barrier      ; BF')
    a(f'ds_read2st64_b32 v[8:9], v25 offset0:{L_HP//256} offset1:{L_HP//256+1}\nds_read2st64_b32 v[10:11], v25 offset0:{L_HP//256+2} offset1:{L_HP//256+3}')
    if gu_late: gu_read()
    nx = 8 if gu_late else 0
    a(f's_waitcnt lgkmcnt({nx + 1})\nv_add_f32 v8, v8, v40\nv_add_f32 v8, v8, v9\ns_waitcnt lgkmcnt({nx})\nv_add_f32 v10, v10, v11\nv_add_f32 v21, v8, v10')
    a(f'v_mov_b32_dpp v9, v21 quad_perm:[1,0,3,2] {FULL}\nv_cvt_pk_bf16_f32 v8, v21, v9')
    a(f's_mov_b32 exec_lo, 0xdddddddd\ns_mov_b32 exec_hi, 0xdddddddd')
    for d in range(8): a(f'v_mov_b32_dpp v{AH+d}, v8 row_newbcast:{2*d} {FULL}')
    a('s_mov_b64 exec, -1')
    for s_ in range(2):
        a(f'v_mfma_f32_16x16x32_bf16 v[{DW+8}:{DW+11}], v[{AH+4*s_}:{AH+4*s_+3}], v[{AH+4*s_}:{AH+4*s_+3}], {"0" if s_ == 0 else f"v[{DW+8}:{DW+11}]"}')
        if nx: a(f's_waitcnt lgkmcnt({4 - 4*s_})')
        for sb in range(2):
            a(f'v_mfma_f32_16x16x32_bf16 v[{DW+4*sb}:{DW+4*sb+3}], v[{AH+4*s_}:{AH+4*s_+3}], v[{GUB+8*sb+4*s_}:{GUB+8*sb+4*s_+3}], {"0" if s_ == 0 else f"v[{DW+4*sb}:{DW+4*sb+3}]"}')
    a('s_mov_b32 exec_hi, 0')
    a(f'v_mov_b32_dpp v10, v{DW+8} quad_perm:[0,0,2,3] {FULL}\nv_mov_b32_dpp v11, v{DW+9} quad_perm:[0,0,2,3] {FULL}')
    a(f'v_bfi_b32 v10, v{VM}, s36, v10\nv_bfi_b32 v11, v{VM}, s37, v11')
    a(f'v_mov_b32_dpp v{DW}, v{DW+4} quad_perm:[0,1,2,3] row_mask:2 bank_mask:0xf\nv_mov_b32_dpp v{DW+1}, v{DW+5} quad_perm:[0,1,2,3] row_mask:2 bank_mask:0xf')
    a(f'v_bfi_b32 v8, v{VM}, s34, v{DW}\nv_bfi_b32 v9, v{VM}, s35, v{DW+1}')
    if pretouch or wd == 'p2': a('s_waitcnt vmcnt(0)')
    dual_store(f'buffer_store_dwordx4 v[8:11], v27, {srd(SWS)}, s23 offen', 'mf')
    a('s_mov_b64 exec, -1')
    stamp('H', 'f1pub', HST)
    a.cand()
    a('s_mov_b32 s13, 0x3b000000\ns_mov_b32 s16, 0xc0135761\ns_mov_b32 s26, 0xbdd2d3e8')
    dn_read()
    poll('p25', mf_loads, A1, tmp=12)
    a('s_waitcnt vmcnt(0)')
    stamp('H', 'hop25', HST)
    Z = A1
    for e in range(4): a(f'v_add_f32 v{Z+e}, v{Z+e}, v{Z+4+e}\nv_add_f32 v{Z+8+e}, v{Z+8+e}, v{Z+12+e}')
    for e in range(4): a(f'v_permlane32_swap_b32 v{Z+e}, v{Z+8+e}')
    for e in range(4): a(f'v_add_f32 v{Z+e}, v{Z+e}, v{Z+8+e}')
    for e in range(4): a(f'v_mov_b32 v{Z+4+e}, v{Z+e}')
    for e in (3, 2, 0, 1): a(f'v_permlane16_swap_b32 v{Z+e}, v{Z+4+e}')
    for e in (3, 2, 0, 1): a(f'v_add_f32 v{Z+e}, v{Z+e}, v{Z+4+e}')
    a(f'v_mul_f32 v13, s13, v{Z+3}\nv_mul_f32 v14, v13, v13\nv_fma_f32 v12, v{Z+2}, s13, -v14\nv_max_f32 v12, 0, v12\nv_add_f32 v12, 0x3727c5ac, v12\nv_rsq_f32 v12, v12')
    a(f'v_fma_f32 v14, -v13, v{Z+1}, v{Z}\nv_mul_f32 v14, v14, v12')
    a('v_mul_f32 v15, v14, v14\nv_mov_b32 v12, s16\nv_fmac_f32 v12, s26, v15\nv_mul_f32 v12, v12, v14\nv_exp_f32 v12, v12')
    a(f'v_mov_b32_dpp v15, v14 row_ror:8 {FULL}')
    a('v_add_f32 v12, 1.0, v12\nv_rcp_f32 v12, v12\nv_mul_f32 v14, v14, v15\ns_mov_b32 exec_lo, 0xff\ns_mov_b32 exec_hi, 0xff\nv_mul_f32 v14, v14, v12')
    a(f'v_cvt_pk_bf16_f32 v14, v14, v14\nds_write_b16 v1, v14 offset:{L_ACT}\ns_mov_b64 exec, -1\ns_waitcnt lgkmcnt(0)')
    a('s_barrier      ; BA')
    a('s_cmp_gt_u32 s3, 1\ns_cbranch_scc1 L_R')
    a(f'ds_read_b128 v[{Z}:{Z+3}], v5 offset:{L_ACT}\nds_read_b128 v[{Z+4}:{Z+7}], v5 offset:{L_ACT + 64}')
    for s_ in range(2):
        a(f's_waitcnt lgkmcnt({1 - s_})')
        for cgl in range(2):
            a(f'v_mfma_f32_16x16x32_bf16 v[{DW+4*cgl}:{DW+4*cgl+3}], v[{Z+4*s_}:{Z+4*s_+3}], v[{WDB+8*cgl+4*s_}:{WDB+8*cgl+4*s_+3}], {"0" if s_ == 0 else f"v[{DW+4*cgl}:{DW+4*cgl+3}]"}')
    a('s_mov_b32 exec_hi, 0')
    a(f'v_mov_b32_dpp v{DW}, v{DW+4} quad_perm:[0,1,2,3] row_mask:2 bank_mask:0xf\nv_bfi_b32 v8, v{VM}, v16, v{DW}')
    a(f'buffer_store_dword v8, v25, {srd(SWS)}, s25 offen sc1')
    stamp('H', 'fpub', HST)
    a('s_branch L_Hend')
    a('L_R:')
    a('s_cmp_eq_u32 s3, 2\ns_cbranch_scc1 L_R2')
    a(f's_cmp_lg_u32 s2, 0\ns_cbranch_scc1 L_Hend\ns_mov_b64 exec, 1\nv_mov_b32 v9, s96\nv_mov_b32 v10, {EPOCH}\nbuffer_store_dword v9, v10, {srd(SWS)}, 0 offen sc1\ns_branch L_Hend')
    a('L_R2:')
    a('s_cmp_gt_u32 s28, 7\ns_cbranch_scc1 L_Hend')
    a.cand()
    a(f'ds_bpermute_b32 v21, v38, v21')
    for e in range(4): a(f'v_mov_b32 v{R+e}, 0')
    a('s_waitcnt lgkmcnt(0)'); rbf(21)
    a('s_mov_b32 exec_hi, 0x00ffffff')
    poll('p3', m3_loads, R)
    stamp('H', 'hop3', HST)
    a(f'v_permlane32_swap_b32 v{R}, v{R+2}\nv_permlane32_swap_b32 v{R+1}, v{R+3}\nv_add_f32 v{R}, v{R}, v{R+2}\nv_add_f32 v{R+1}, v{R+1}, v{R+3}')
    a(f'v_permlane16_swap_b32 v{R}, v{R+1}\nv_add_f32 v8, v{R}, v{R+1}')
    a(f'v_add_f32_dpp v8, v8, v8 row_ror:8 {FULL}\nv_add_f32_dpp v8, v8, v8 row_ror:4 {FULL}\nv_add_f32_dpp v8, v8, v8 quad_perm:[2,3,0,1] {FULL}')
    for k in range(dbg_sleep): a('s_sleep 125')
    for k in range(abs(dbg_tlb)):
        a(f's_add_u32 s9, s4, {1 + (k % 7 if dbg_tlb > 0 else 0)}\ns_and_b32 s9, s9, 7\ns_lshl_b32 s9, s9, 23\ns_lshl_b32 s10, s2, 10\ns_add_u32 s9, s9, s10\ns_add_u32 s9, s9, {((k // 7 * 2 + (k & 1)) << 21 if dbg_tlb > 0 else 0) + k * 0x40000 % 0x200000 * (dbg_tlb < 0)}\nbuffer_load_dword v9, v37, {srd(SK)}, s9 offen nt\ns_waitcnt vmcnt(0)')
    rbf(8)
    a('v_add_f32 v8, v8, v21\ns_mov_b32 exec_lo, 0x00030003\ns_mov_b32 exec_hi, 0x00030003\nv_cvt_pk_bf16_f32 v8, v8, v8')
    a(f'buffer_store_short v8, v37, {srd(SO)}, s15 offen {outsc}')
    stamp('H', 'out', HST)
    a('L_Hend:')
    stamp_store(HST)
    a('L_end:')
    a('s_endpgm')
    for t in stubs: a(t)

    head = HEADER + DOC + f'; @launch grid=(256,1,1) block=(512,1,1) lds={LDS_BYTES}\n'
    al = '' if align is None else f'.p2align 12\n.fill {align // 4}, 4, 0xbf800000\n'
    pre = f'.amdgcn_target "amdgcn-amd-amdhsa--gfx950"\n.text\n.globl {KN}\n{al}.p2align 8\n.type {KN},@function\n'
    post = f'''.section .rodata,"a"
.p2align 6
.amdhsa_kernel {KN}
  .amdhsa_next_free_vgpr 256
  .amdhsa_next_free_sgpr 98
  .amdhsa_accum_offset 256
  .amdhsa_group_segment_fixed_size 0
  .amdhsa_kernarg_size 96
  .amdhsa_user_sgpr_count 2
  .amdhsa_user_sgpr_kernarg_segment_ptr 1
  .amdhsa_system_sgpr_workgroup_id_x 1
  .amdhsa_float_denorm_mode_32 3
.end_amdhsa_kernel
'''
    if not warm:
        return head + pre + '\n'.join(a.render(chosen=[])) + '\n' + post, nst
    saveL = list(a.L)
    a.L = [l.replace('@W0', 'L_warm_end').replace('@W1', 'L_warm_end').replace('@W2', 'L_warm_end') for l in saveL]
    syms = assemble_syms(pre + '\n'.join(a.render(None)) + '\n')
    pos = [syms[f'L_cand{n}'] for n in range(a.ncand)]
    end = syms['L_end']
    chosen = []; last = None
    for n in range(a.ncand):
        nxt = pos[n+1] if n + 1 < a.ncand else end
        if last is None or nxt - last > padgap:
            chosen.append(n); last = pos[n]
    k = len(chosen)
    ent = [0, (k + 2) // 3, (2 * k + 2) // 3]
    a.L = [l.replace('@W0', f'L_pad{ent[0]}').replace('@W1', f'L_pad{ent[1]}').replace('@W2', f'L_pad{ent[2]}') for l in saveL]
    body = a.render(chosen)
    gaps = [pos[chosen[i+1]] - pos[chosen[i]] for i in range(k-1)] + [end - pos[chosen[-1]]]
    print('pads', k, 'first', pos[chosen[0]], 'gaps', gaps, 'code bytes', end, file=sys.stderr)
    return head + pre + '\n'.join(body) + '\n' + post, nst

if __name__ == '__main__':
    kw = eval('dict(' + (sys.argv[2] if len(sys.argv) > 2 else '') + ')')
    s, nst = gen(**kw)
    open(sys.argv[1], 'w').write(s)
    if nst: print(nst)
```

```python
import sys
from asmlib import Asm, assemble_syms
NAME = 'sequential_preLN__gqa_block_cached__glu_gated_geglu__decode'
KN = NAME + '_kernel'

QP   = 0x00000
LAM  = 0x10000
EPOCH = 0x19000
M2   = 0x20000
M1   = 0x40000
M3   = 0x80000
MF   = 0x100000
STAMP = 0x8000000
L_WQ = 0
L_G  = 16384
L_U  = 24576 + 64
L_XN = 33792
L_Q  = 34816
L_MX = 35840
L_LS = 35904
L_FAST = 35968
L_W  = 36096
L_EP = 36864
L_YW = 45568
L_HP = 46592
L_ACT = 47616
L_D  = 47872
L_SP = 56320
LDS_BYTES = 56064
SX, SK, SV, SWQ, SWO, SG, SU, SD, SO, SDBG, SWS = 40, 44, 48, 52, 56, 60, 64, 68, 72, 76, 80
def srd(b): return f's[{b}:{b+3}]'
LOG2E = 0x3fb8aa3b
SPIN = 1 << 16
TAGB = 10
TAGM = 0x3ff
FULL = 'row_mask:0xf bank_mask:0xf'

HEADER = open('cdna_kernels/' + NAME + '.s.ref').read().split('; Override launch')[0]

DOC = """; One persistent launch, 256 workgroups (one per CU) x 8 waves; text written by my own generator script.
;     exact row max / row sum of the workgroup, PV with 16x16x32 MFMA, publish the normalised partial O (M1).
;     R  (sum of 28 partials + h)                                                                   -> d_out
;   owner publishes its log-sum-exp words, which every reader of the slot has received.
"""

def gen(D=6, lead_ss=14, lead_sm=16, lead_end=None, n_end=0, wg='b4', wu='hop1', wd='hop1', thr=8, wint=True, dalt=0, spread=False, Dv=None, smi=6, kshrink=1, vshrink=1, smx=2, spill=0, edelay=0, mfs=True, p25first=True, boost=None, bfrom=24, bto=48, D1=None, n1=24, wqpace=0, dbg_cbrot=0, epi=True, preinv=False, hfirst=False, D0=11, align=None, qlocal=3, clrpos=1, progw=True, dlo=None, dmask=0xaa, dfrom=0, dstep=1, pcs=18, padgap=900, sfirst=True, hprio=2, sprio=0, lpos=0, qdelay=5, pd=(8, 14, 0, 11), pdslow=8, local=True, pretouch=False, touch=True, lamdelay=100, early='g', outsc='',
        klin=False, stamps=False, warm=True, nslots=40, dbgwg=0, dbg_now=False, dbg_notail=False, dbg_sleep=0, dbg_extra=0, dbg_rtt=0, dbg_noclr=False, dbg_noq=False, dbg_nomid=False, dbg_klin=False, dbg_nocomp=False, dbg_tlb=0):
    a = Asm()
    nst = {}
    stubs = []
    SST, HST = (248 if klin else 88), 200
    assert nslots <= (36 if klin else 40)
    def stamp(role, name, vreg):
        if not stamps: return
        if stamps == 'lite' and name not in ('pub', 'out'): return
        idx = nst.setdefault(role, []); idx.append(name)
        a(f's_memrealtime s[90:91]\ns_waitcnt lgkmcnt(0)\nv_writelane_b32 v{vreg}, s90, {len(idx)-1}')
    def stamp_store(vreg):
        if not stamps: return
        if stamps == 'dbg':
            if vreg == SST: return
            a(f's_cmp_lg_u32 s2, {dbgwg}\ns_cbranch_scc1 L_nodbg\ns_cmp_lg_u32 s3, 0\ns_cbranch_scc1 L_nodbg')
            a(f's_mov_b64 exec, -1\nv_subrev_u32 v{vreg}, s94, v{vreg}\nv_lshlrev_b32 v{vreg+1}, 2, v0\nbuffer_store_dword v{vreg}, v{vreg+1}, {srd(SDBG)}, 0 offen\nL_nodbg:')
            return
        a(f's_lshl_b32 s92, s2, 3\ns_add_u32 s92, s92, s3\ns_lshl_b32 s92, s92, 8\ns_add_u32 s92, s92, {STAMP}')
        a(f's_mov_b64 exec, -1\nv_lshlrev_b32 v{vreg+1}, 2, v0\nbuffer_store_dword v{vreg}, v{vreg+1}, {srd(SWS)}, s92 offen')
    def crossg(r, t, op='add'):
        a(f'v_mov_b32 v{t}, v{r}\nv_permlane16_swap_b32 v{t}, v{r}\nv_{op}_f32 v{r}, v{r}, v{t}')
        a(f'v_mov_b32 v{t}, v{r}\nv_permlane32_swap_b32 v{t}, v{r}\nv_{op}_f32 v{r}, v{r}, v{t}')
    def allreduce(r, t, op='add'):
        for sh in (8, 4, 2, 1): a(f'v_{op}_f32_dpp v{r}, v{r}, v{r} row_ror:{sh} {FULL}')
        crossg(r, t, op)
    def rbf(r):
        a(f'v_cvt_pk_bf16_f32 v{r}, v{r}, v{r}\nv_lshlrev_b32 v{r}, 16, v{r}')
    def saddr(dst, terms, const=0, tmp='s10'):
        first = True
        for reg, sh in terms:
            t = dst if first else tmp
            a(f's_lshl_b32 {t}, {reg}, {sh}' if sh else f's_mov_b32 {t}, {reg}')
            if not first: a(f's_add_u32 {dst}, {dst}, {tmp}')
            first = False
        if const: a(f's_add_u32 {dst}, {dst}, {const}')
    def tags():
        a(f's_mul_i32 s96, s33, 1664525\ns_add_u32 s96, s96, 1013904223\ns_and_b32 s34, s96, {TAGM}\ns_bfe_u32 s35, s96, {TAGB << 16 | 10}\ns_bfe_u32 s36, s96, {TAGB << 16 | 20}\ns_lshr_b32 s37, s96, 22')
    def lanetag(dst, idx):
        a(f'v_mul_u32_u24 v{dst}, 10, v{idx}\nv_min_u32 v{dst}, 22, v{dst}\nv_lshrrev_b32_e64 v{dst}, v{dst}, s96')
    def dual_store(ins, name):
        if not local:
            a(ins + ' sc1'); return
        a(f's_cmp_eq_u32 s39, 0\ns_cbranch_scc1 L_{name}_s\n{ins}\nL_{name}_e:')
        stubs.append(f'L_{name}_s:\n{ins} sc1\ns_branch L_{name}_e')

    a('; ================================================================== entry')
    a(f'{KN}:')
    a('s_cmp_ge_u32 s2, 256\ns_cbranch_scc1 L_end')
    if stamps: a('s_memrealtime s[94:95]')
    PTRS = ((SK, 8, 64 << 20), (SX, 0, 1024), (SWQ, 24, 4 << 20), (SWS, 88, 268435456), (SV, 16, 64 << 20), (SWO, 32, 4 << 20), (SG, 48, 512 * 3584),
            (SU, 56, 512 * 3584), (SD, 64, 1792 * 1024), (SO, 72, 1024)) + (((SDBG, 80, 256),) if stamps == 'dbg' else ())
    def srds(which):
        for b, off, n in which: a(f's_load_dwordx2 s[{b}:{b+1}], s[0:1], {off}')
        for b, off, n in which: a(f's_mov_b32 s{b+2}, {n}\ns_mov_b32 s{b+3}, 0x20000')
    a(f's_load_dwordx2 s[{SK}:{SK+1}], s[0:1], 8')
    a('v_lshrrev_b32 v1, 6, v0\nv_and_b32 v0, 63, v0')
    a('v_readfirstlane_b32 s3, v1')
    a(f's_mov_b32 s{SK+2}, {64 << 20}\ns_mov_b32 s{SK+3}, 0x20000')
    a('s_and_b32 s4, s2, 7\ns_lshr_b32 s5, s2, 3')
    if sfirst: a('s_xor_b32 s3, s3, 4')
    a('s_and_b32 s6, s3, 3')
    a('s_cmp_lt_u32 s3, 4\ns_cbranch_scc1 L_H')
    RING = 96
    if sprio: a(f's_setprio {sprio}')
    def slot(k): return RING + 4 * k
    a('v_and_b32 v1, 3, v0\nv_lshlrev_b32 v1, 8, v1\nv_lshrrev_b32 v2, 2, v0\nv_lshl_add_u32 v1, v2, 4, v1')
    a('v_lshlrev_b32 v2, 4, v0')
    if dbg_klin: a('v_mov_b32 v1, v2')
    saddr('s7', (('s4', 23), ('s5', pcs), ('s6', 12)), tmp='s8')
    a('s_mov_b32 s8, s7')
    if dlo: a(f's_getreg_b32 s9, hwreg(HW_REG_XCC_ID)\ns_and_b32 s9, s9, 7\ns_lshr_b32 s9, {dmask}, s9\ns_and_b32 s9, s9, 1\ns_cselect_b64 vcc, -1, 0')
    if stamps: a(f'v_mov_b32 v{SST}, 0')
    a('s_waitcnt lgkmcnt(0)')
    if stamps: a(f'v_writelane_b32 v{SST}, s94, 0'); nst['S'] = ['start']
    st = dict(I=0, free=list(range(nslots)), where={})
    def issue(pace=True):
        n = st['I']
        fl = st['free']
        parked = nslots <= n < nslots + spill
        if not parked:
            k = next(x for x in fl if n < 64 or x >= 8)
            fl.remove(k); st['where'][n] = k
        if boost and pace and bfrom <= n < bto:
            a(f's_waitcnt vmcnt({boost-1})\ns_cbranch_vccnz L_b{n}\ns_waitcnt vmcnt({D-1})\nL_b{n}:')
        elif pace and n >= (D0 or D): a(f's_waitcnt vmcnt({(D1 if (D1 and n < n1) else (Dv if (Dv and n >= 96) else D))-1+(1 if (dalt and n % dalt == 0) else 0)})')
        if dlo and n >= max(dlo, dfrom) and n % dstep == 0 and not (80 - lead_sm <= n - 0 < 80 and not pace and n < 64 + lead_sm):
            a(f's_cbranch_vccnz L_d{n}\ns_waitcnt vmcnt({dlo-1})\nL_d{n}:')
        if stamps is True and n in (7, 16, 24, 33): stamp('S', f'n{n}', SST)
        if n == 64: a('s_mov_b32 s8, s7')
        if parked:
            if n & 3 == 0: a(f's_mul_i32 s9, s6, {spill * 1024}\ns_add_u32 m0, s9, {L_SP + (n - nslots) * 1024}')
            a(f'buffer_load_dwordx4 v1, {srd(SK)}, s8 offen offset:{(n & 3) * 1024} nt lds')
        else: a(f'buffer_load_dwordx4 v[{slot(k)}:{slot(k)+3}], {"v1" if (n < 64 and not klin) else "v2"}, {srd(SK if n < 64 else SV)}, s8 offen offset:{(n & 3) * 1024} nt')
        if n & 3 == 3 and n != 63 and n != 127:
            jump = ((n + 1) * 4096) % (1 << pcs) == 0
            a(f's_add_u32 s8, s8, {0x4000 + (31 << pcs if jump else 0)}')
        st['I'] = n + 1
    def more(k):
        while k > 0 and st['I'] < st['tgt'] and can_issue():
            issue(); k -= 1
    def can_issue():
        n = st['I']
        return n < 128 and any(n < 64 or x >= 8 for x in st['free'])
    if dbg_extra:
        a('s_add_u32 s9, s7, 0x20000')
        for n in range(dbg_extra):
            if n >= D: a(f's_waitcnt vmcnt({D-1})')
            a(f'buffer_load_dwordx4 v[{slot(n % D)}:{slot(n % D)+3}], v2, {srd(SV)}, s9 offen offset:{(n & 3) * 1024} nt')
            if n & 3 == 3: a('s_add_u32 s9, s9, 0x4000')
        a('s_waitcnt vmcnt(0)')
    for n in range(nslots + spill):
        if n == (D0 or D):
            if hfirst:
                a('s_branch L_S0'); srest0 = len(a.L); a('L_S0:')
            srds(PTRS[1:])
            if boost: a('s_and_b32 s9, s5, 7\ns_cmp_eq_u32 s9, 3\ns_cselect_b64 vcc, -1, 0')
        issue()
    a('s_waitcnt lgkmcnt(0)')
    stamp('S', 'pref', SST)
    a('s_barrier')
    a('s_branch L_S')
    if hfirst:
        srest = a.L[srest0:]; del a.L[srest0:]

    a('; ================================================================== H start')
    a('L_H:')
    srds(PTRS[1:])
    if stamps: a(f'v_mov_b32 v{HST}, 0')
    a('s_and_b32 s17, s5, 7\ns_lshr_b32 s18, s5, 3')
    a('s_cmp_lg_u32 s3, 0\ns_cbranch_scc1 L_Hwarm')
    if dbg_noq: a('s_branch L_Hwarm')
    if hprio: a(f's_setprio {hprio}')
    a('v_lshlrev_b32 v2, 4, v0')
    a('v_lshrrev_b32 v1, 3, v0\nv_lshlrev_b32 v1, 13, v1\nv_and_b32 v3, 7, v0\nv_lshl_add_u32 v1, v3, 4, v1')
    if dbg_cbrot: a(f's_add_u32 s17, s17, {dbg_cbrot}\ns_and_b32 s17, s17, 7')
    saddr('s8', (('s18', 20), ('s4', 10), ('s17', 7)))
    a(f's_mov_b32 m0, {L_WQ}')
    a('s_getreg_b32 s38, hwreg(HW_REG_XCC_ID)\ns_and_b32 s38, s38, 15')
    a('s_waitcnt lgkmcnt(0)')
    if stamps: a(f'v_writelane_b32 v{HST}, s94, 0'); nst['H'] = ['start']
    a(f's_load_dword s33, s[{SWS}:{SWS+1}], {EPOCH}')
    a(f'buffer_load_dwordx4 v[4:7], v2, {srd(SX)}, 0 offen')
    for m in range(16):
        a(f'buffer_load_dwordx4 v1, {srd(SWQ)}, s8 offen nt lds')
        if m < 15: a(f's_add_u32 m0, m0, 1024\ns_add_u32 s8, s8, 0x10000')
        if wqpace and m < 15: a(f's_sleep {wqpace}')
    a.cand()
    a('s_mov_b32 s12, 0xffff0000')
    a('s_waitcnt vmcnt(16)')
    for d in range(4): a(f'v_lshlrev_b32 v{8+2*d}, 16, v{4+d}\nv_and_b32 v{9+2*d}, s12, v{4+d}')
    a('v_add_f32 v16, v8, v9\nv_add_f32 v17, v10, v11\nv_add_f32 v18, v12, v13\nv_add_f32 v19, v14, v15\nv_add_f32 v16, v16, v17\nv_add_f32 v18, v18, v19\nv_add_f32 v16, v16, v18')
    allreduce(16, 17)
    a('v_mul_f32 v16, 0x3b000000, v16')
    a('v_sub_f32 v17, v8, v16\nv_mul_f32 v18, v17, v17')
    for e in range(1, 8): a(f'v_sub_f32 v17, v{8+e}, v16\nv_fmac_f32 v18, v17, v17')
    allreduce(18, 17)
    a('v_mul_f32 v18, 0x3b000000, v18'); rbf(18)
    a('v_add_f32 v18, 0x3727c5ac, v18'); rbf(18)
    a('v_sqrt_f32 v18, v18'); rbf(18)
    a('v_rcp_f32 v18, v18'); rbf(16)
    for e in range(8): a(f'v_sub_f32 v{8+e}, v{8+e}, v16')
    for d in range(4): a(f'v_cvt_pk_bf16_f32 v{4+d}, v{8+2*d}, v{9+2*d}')
    for d in range(4): a(f'v_lshlrev_b32 v{8+2*d}, 16, v{4+d}\nv_and_b32 v{9+2*d}, s12, v{4+d}')
    for e in range(8): a(f'v_mul_f32 v{8+e}, v{8+e}, v18')
    for d in range(4): a(f'v_cvt_pk_bf16_f32 v{4+d}, v{8+2*d}, v{9+2*d}')
    a(f'ds_write_b128 v2, v[4:7] offset:{L_XN}')
    a.cand()
    a('v_lshrrev_b32 v3, 4, v0\nv_lshlrev_b32 v16, 4, v3\ns_lshl_b32 s9, s18, 8\nv_add_u32 v16, s9, v16')
    a('v_lshlrev_b32 v17, 10, v3\nv_bfe_u32 v18, v0, 2, 2\nv_lshl_add_u32 v17, v18, 7, v17\nv_and_b32 v18, 3, v0\nv_lshl_add_u32 v17, v18, 3, v17')
    a('s_waitcnt lgkmcnt(0)')
    for s_ in range(4): a(f'ds_read_b128 v[{64+4*s_}:{67+4*s_}], v16 offset:{L_XN + s_*64}')
    tags()
    lanetag(19, 18)
    a(f'v_cmp_eq_u32 vcc, 3, v18\nv_mov_b32 v21, s38\nv_mov_b32 v20, {TAGM}\nv_cndmask_b32 v21, 0, v21, vcc\nv_xor_b32 v19, v19, v21\ns_xor_b32 s13, s37, s38')
    a('s_waitcnt vmcnt(0) lgkmcnt(0)')
    stamp('H', 'wq', HST)
    a.cand()
    order = [(s_, cg) for s_ in range(4) for cg in range(4)]
    def qmfma(q):
        s_, cg = order[q]
        a(f'v_mfma_f32_16x16x32_bf16 v[{24+4*cg}:{27+4*cg}], v[{64+4*s_}:{67+4*s_}], v[{128+4*q}:{131+4*q}], {"0" if s_ == 0 else f"v[{24+4*cg}:{27+4*cg}]"}')
    for q, (s_, cg) in enumerate(order):
        for eh in range(2): a(f'ds_read_b64_tr_b16 v[{128+4*q+2*eh}:{129+4*q+2*eh}], v17 offset:{L_WQ + s_*4096 + eh*512 + cg*32}')
        if q >= 4:
            a(f's_waitcnt lgkmcnt(8)'); qmfma(q - 4)
    for q in range(12, 16):
        a(f's_waitcnt lgkmcnt({2*(15-q)})'); qmfma(q)
    a('v_lshlrev_b32 v3, 2, v0')
    saddr('s9', (('s4', 13), ('s18', 11), ('s17', 8)), QP)
    saddr('s16', (('s4', 13),), QP); a('s_add_u32 s15, s16, 4096')
    for cg in range(1, 4): a(f'v_mov_b32_dpp v24, v{24+4*cg} quad_perm:[0,1,2,3] row_mask:{1 << cg} bank_mask:0xf')
    a(f'v_add_u32 v24, {(TAGM + 1) // 2}, v24\nv_bfi_b32 v24, v20, v19, v24')
    if qlocal: a('; first without device scope (enough if the group shares a die); repeated with device scope after two failed sweeps or on seeing another die')
    a(f'buffer_store_dword v24, v3, {srd(SWS)}, s9 offen {"" if qlocal else "sc1"}')
    a('s_mov_b32 s14, 0')
    stamp('H', 'qpub', HST)
    a.cand()
    def tagcheck(base, n, tmp, waits=True):
        for k in range(n):
            if waits: a(f's_waitcnt vmcnt({n-1-k})')
            r = base + 4*k
            for e in range(4): a(f'v_xor_b32 v{r+e}, s{34+e}, v{r+e}')
            if k == 0: a(f'v_or_b32 v{tmp}, v{r}, v{r+1}\nv_or_b32 v{tmp+1}, v{r+2}, v{r+3}')
            else: a(f'v_or3_b32 v{tmp}, v{tmp}, v{r}, v{r+1}\nv_or3_b32 v{tmp+1}, v{tmp+1}, v{r+2}, v{r+3}')
        a(f'v_bitop3_b32 v{tmp}, v{tmp}, v{tmp+1}, v{VM} bitop3:0xa8\nv_cmp_ne_u32 vcc, 0, v{tmp}')
    VM = 20
    a('L_qpoll:')
    if qlocal:
        a(f's_cmp_lg_u32 s14, {qlocal}\ns_cbranch_scc1 L_qnr\ns_mov_b64 s[22:23], exec\ns_mov_b64 exec, -1\nbuffer_store_dword v24, v3, {srd(SWS)}, s9 offen sc1\ns_mov_b64 exec, s[22:23]\nL_qnr:')
    if qdelay: a(f's_sleep {min(127, 8 * qdelay)}      ; back-off: every failed sweep takes 8 KB out of this CU\'s K/V stream')
    for k in range(8):
        a(f'buffer_load_dwordx4 v[{64+4*k}:{67+4*k}], v2, {srd(SWS)}, {"s16" if k < 4 else "s15"} offen offset:{(k & 3) * 1024} sc1')
    a(f's_add_u32 s14, s14, 1\ns_cmp_gt_u32 s14, {SPIN}\ns_cbranch_scc1 L_qdone')
    for k in range(8):
        r = 64 + 4*k
        a(f's_waitcnt vmcnt({7-k})\nv_xor_b32 v{r}, s34, v{r}\nv_xor_b32 v{r+1}, s35, v{r+1}\nv_xor_b32 v{r+2}, s36, v{r+2}\nv_xor_b32 v{r+3}, s13, v{r+3}')
        if k == 0: a(f'v_or3_b32 v8, v{r}, v{r+1}, v{r+2}\nv_mov_b32 v9, v{r+3}')
        else: a(f'v_or3_b32 v8, v8, v{r}, v{r+1}\nv_or_b32 v8, v8, v{r+2}\nv_or_b32 v9, v9, v{r+3}')
    a(f'v_and_b32 v10, {TAGM & ~15}, v9\nv_bitop3_b32 v8, v8, v10, v20 bitop3:0xa8\nv_cmp_ne_u32 vcc, 0, v8')
    a('s_and_b64 exec, exec, vcc\ns_cbranch_execnz L_qpoll')
    a('L_qdone:')
    a('s_mov_b64 exec, -1\ns_waitcnt vmcnt(0)')
    a(f'v_and_b32 v9, 15, v9\nv_cmp_ne_u32 vcc, 0, v9\ns_cmp_eq_u64 vcc, 0\ns_cselect_b32 s39, 1, 0\nv_mov_b32 v9, s39\nv_mov_b32 v10, 0\nds_write_b32 v10, v9 offset:{L_FAST}')
    if qlocal:
        a(f's_cmp_lg_u32 s39, 0\ns_cbranch_scc1 L_qsame\nbuffer_store_dword v24, v3, {srd(SWS)}, s9 offen sc1\nL_qsame:')
    for k in range(8): a(f'v_and_b32 v{67+4*k}, -16, v{67+4*k}')
    a('v_lshlrev_b32 v3, 3, v0')
    for e in range(8): a(f'v_add_f32 v{64+e}, v{64+e}, v{72+e}')
    for e in range(8): a(f'v_add_f32 v{80+e}, v{80+e}, v{88+e}')
    for e in range(8): a(f'v_add_f32 v{64+e}, v{64+e}, v{80+e}')
    for d in range(4): a(f'v_cvt_pk_bf16_f32 v{4+d}, v{64+2*d}, v{65+2*d}')
    a(f'ds_write2st64_b64 v3, v[4:5], v[6:7] offset0:{L_Q//512} offset1:{L_Q//512+1}')
    a('s_waitcnt lgkmcnt(0)')
    stamp('H', 'qgot', HST)
    if hprio: a('s_setprio 0')
    a('s_branch L_Hb1')
    if hfirst: a.L += srest
    a('L_Hwarm:')
    a('s_waitcnt lgkmcnt(0)')
    if stamps: a(f'v_writelane_b32 v{HST}, s94, 0')
    a(f's_load_dword s33, s[{SWS}:{SWS+1}], {EPOCH}')
    if warm:
        a('s_mov_b64 exec, 0')
        a('s_cmp_eq_u32 s3, 1\ns_cbranch_scc1 @W0\ns_cmp_eq_u32 s3, 2\ns_cbranch_scc1 @W1\ns_branch @W2')
        a('L_warm_end:')
        a('s_mov_b64 exec, -1')
        if stamps is True: a(f's_memrealtime s[90:91]\ns_waitcnt lgkmcnt(0)\nv_writelane_b32 v{HST}, s90, 1')
    a('s_waitcnt lgkmcnt(0)')
    tags()
    a('L_Hb1:')
    a('s_barrier      ; B1')
    a('s_branch L_Hmid')

    smain0 = len(a.L)
    a('; ================================================================== S main')
    a('L_S:')
    a.cand()
    Q, P, ACC = 20, 24, 56
    QM = (20, 16, 88, 92)
    if klin:
        a('v_and_b32 v1, 3, v0\nv_lshlrev_b32 v1, 8, v1\nv_bfe_u32 v4, v0, 2, 2\nv_lshl_add_u32 v1, v4, 6, v1')
        for m in range(4): a(f'ds_read_b128 v[{QM[m]}:{QM[m]+3}], v1 offset:{L_Q + 16*m}')
        a('s_mov_b32 s20, 0x55555555\ns_mov_b32 s21, s20\ns_not_b64 s[22:23], s[20:21]\ns_mov_b32 s24, 0x33333333\ns_mov_b32 s25, s24\ns_not_b64 s[26:27], s[24:25]')
    else:
        a(f'ds_read_b128 v[{Q}:{Q+3}], v1 offset:{L_Q}')
    a(f'v_mov_b32 v12, 0\nds_read_b32 v12, v12 offset:{L_FAST}')
    a('s_mov_b32 s12, 0xffff0000\ns_mov_b32 s13, 0x3db504f3\nv_mov_b32 v3, 0xff800000')
    a(f'v_lshrrev_b32 v14, 4, v0')
    a('s_waitcnt lgkmcnt(0)\nv_readfirstlane_b32 s39, v12')
    stamp('S', 'q', SST)
    lead = nslots + spill
    if spill: a(f's_mul_i32 s9, s6, {spill * 1024}\ns_add_u32 s9, s9, {L_SP}\nv_add_u32 v11, s9, v2')
    for u in range(16):
        a.cand()
        T = [ACC + 4*e for e in range(4)]
        a(f's_waitcnt vmcnt({st["I"] - (4*u+4)})')
        if nslots <= 4*u < nslots + spill:
            for e in range(4):
                k = st['free'].pop(0); st['where'][4*u+e] = k
                a(f'ds_read_b128 v[{slot(k)}:{slot(k)+3}], v11 offset:{(4*u + e - nslots) * 1024}')
            a('s_waitcnt lgkmcnt(0)')
        ks = [slot(st['where'][4*u+e]) for e in range(4)]
        def refill():
            nonlocal lead
            for e in range(4): st['free'].append(st['where'][4*u+e])
            C = 4*u + 4
            lead = max(lead_ss, lead - kshrink)
            if vshrink is None:
                tgt = C + lead if u < 15 else C + lead_sm
                while st['I'] < tgt and can_issue(): issue(pace=(u < 15))
            else:
                st['tgt'] = C + lead
                if spread: more(1)
                else: more(9)
                if u == 15 and not spread:
                    for k in range(smx):
                        if can_issue(): issue(pace=False)
                    lead = st['I'] - C
        if klin:
            Z = [ACC + 4*e for e in range(4)]; Yk = [ACC + 16 + 4*e for e in range(4)]; DA, DB = 240, 244
            def sel(dst, own, other, perm):
                for d in range(4): a(f'v_cndmask_b32_dpp v{dst+d}, v{other+d}, v{own+d}, vcc quad_perm:{perm} {FULL}')
            def km(m):
                a(f'v_mfma_f32_4x4x4_16b_bf16 v[{DA}:{DA+3}], v[{Yk[m]}:{Yk[m]+1}], v[{QM[m]}:{QM[m]+1}], {"0" if m == 0 else f"v[{DA}:{DA+3}]"}')
                a(f'v_mfma_f32_4x4x4_16b_bf16 v[{DB}:{DB+3}], v[{Yk[m]+2}:{Yk[m]+3}], v[{QM[m]+2}:{QM[m]+3}], {"0" if m == 0 else f"v[{DB}:{DB+3}]"}')
            a('s_mov_b64 vcc, s[20:21]'); sel(Z[0], ks[0], ks[1], '[1,0,3,2]'); sel(Z[2], ks[2], ks[3], '[1,0,3,2]')
            a('s_mov_b64 vcc, s[22:23]'); sel(Z[1], ks[1], ks[0], '[1,0,3,2]'); sel(Z[3], ks[3], ks[2], '[1,0,3,2]')
            refill()
            a('s_mov_b64 vcc, s[24:25]'); sel(Yk[0], Z[0], Z[2], '[2,3,0,1]'); sel(Yk[1], Z[1], Z[3], '[2,3,0,1]')
            a('s_mov_b64 vcc, s[26:27]'); km(0); sel(Yk[2], Z[2], Z[0], '[2,3,0,1]'); km(1); sel(Yk[3], Z[3], Z[1], '[2,3,0,1]'); km(2); a('s_nop 0'); km(3)
            for e in range(4): a(f'v_add_f32 v{T[e]}, v{DA+e}, v{DB+e}')
        else:
            for e in range(4): a(f'v_mfma_f32_4x4x4_16b_bf16 v[{T[e]}:{T[e]+3}], v[{ks[e]}:{ks[e]+1}], v[{Q}:{Q+1}], 0')
            for e in range(4): a(f'v_mfma_f32_4x4x4_16b_bf16 v[{T[e]}:{T[e]+3}], v[{ks[e]+2}:{ks[e]+3}], v[{Q+2}:{Q+3}], v[{T[e]}:{T[e]+3}]')
            refill()
            for e in range(4): a(f'v_permlane32_swap_b32 v{T[e]}, v{T[e]+2}\nv_permlane32_swap_b32 v{T[e]+1}, v{T[e]+3}')
            for e in range(4): a(f'v_add_f32 v{T[e]}, v{T[e]}, v{T[e]+2}\nv_add_f32 v{T[e]+1}, v{T[e]+1}, v{T[e]+3}')
            if spread: more(1)
            for e in range(4): a(f'v_permlane16_swap_b32 v{T[e]}, v{T[e]+1}')
            for e in range(4): a(f'v_add_f32 v{T[e]}, v{T[e]}, v{T[e]+1}')
        a.cand()
        for e in range(4): a(f'v_add_f32_dpp v{T[e]+1}, v{T[e]}, v{T[e]} row_ror:4 {FULL}')
        for e in range(4): a(f'v_add_f32_dpp v{T[e]}, v{T[e]+1}, v{T[e]+1} row_ror:8 {FULL}')
        if spread: more(1)
        a(f'v_cvt_pk_bf16_f32 v5, v{T[0]}, v{T[1]}\nv_cvt_pk_bf16_f32 v6, v{T[2]}, v{T[3]}')
        a('v_lshlrev_b32 v7, 16, v5\nv_and_b32 v8, s12, v5\nv_lshlrev_b32 v9, 16, v6\nv_and_b32 v10, s12, v6')
        a('v_mul_f32 v7, s13, v7\nv_mul_f32 v8, s13, v8\nv_mul_f32 v9, s13, v9\nv_mul_f32 v10, s13, v10')
        a(f'v_cvt_pk_bf16_f32 v{P+2*u}, v7, v8\nv_cvt_pk_bf16_f32 v{P+2*u+1}, v9, v10')
        a('v_max3_f32 v3, v3, v7, v8\nv_max3_f32 v3, v3, v9, v10')
        if spread:
            more(9)
            if u == 15:
                for k in range(smx):
                    if can_issue(): issue(pace=False)
    stamp('S', 'kdone', SST)
    a.cand()
    crossg(3, 5, 'max')
    a(f'v_and_b32 v5, 3, v0\nv_lshlrev_b32 v5, 4, v5\ns_lshl_b32 s9, s6, 2\nv_add_u32 v6, s9, v5')
    a(f's_mov_b64 exec, 15\nds_write_b32 v6, v3 offset:{L_MX}\ns_mov_b64 exec, -1\ns_waitcnt lgkmcnt(0)')
    a('s_barrier')
    a(f'ds_read_b128 v[8:11], v5 offset:{L_MX}')
    a(f's_mov_b32 s14, {LOG2E}\nv_mov_b32 v4, 0')
    a('s_waitcnt lgkmcnt(0)')
    a('v_max3_f32 v3, v8, v9, v10\nv_max_f32 v3, v3, v11'); rbf(3)
    a('v_mul_f32 v3, s14, v3')
    for r in range(0, 32, 2):
        a.cand()
        if smi and (r // 2 * smi) // 16 != ((r // 2 + 1) * smi) // 16 and can_issue(): issue()
        a(f'v_lshlrev_b32 v7, 16, v{P+r}\nv_and_b32 v8, s12, v{P+r}\nv_lshlrev_b32 v9, 16, v{P+r+1}\nv_and_b32 v10, s12, v{P+r+1}')
        for t in range(7, 11): a(f'v_fma_f32 v{t}, v{t}, s14, -v3')
        for t in range(7, 11): a(f'v_exp_f32 v{t}, v{t}')
        a(f'v_cvt_pk_bf16_f32 v{P+r}, v7, v8\nv_add_f32 v7, v7, v8\nv_cvt_pk_bf16_f32 v{P+r+1}, v9, v10\nv_add_f32 v9, v9, v10\nv_add_f32 v4, v4, v7\nv_add_f32 v4, v4, v9')
        if r >= 2:
            for q in (3, 2, 1, 0):
                for k in (r - 2, r - 1): a(f'v_mov_b32_dpp v{P+k}, v{P+k} row_newbcast:{q} row_mask:0xf bank_mask:{1 << q}')
                if q: a(f'v_mov_b32 v11, v11')
    for q in (3, 2, 1, 0):
        for k in (30, 31): a(f'v_mov_b32_dpp v{P+k}, v{P+k} row_newbcast:{q} row_mask:0xf bank_mask:{1 << q}')
    crossg(4, 7, 'add')
    a(f's_mov_b64 exec, 15\nds_write_b32 v6, v4 offset:{L_LS}\ns_mov_b64 exec, -1\ns_waitcnt lgkmcnt(0)')
    a('s_barrier')
    stamp('S', 'smdone', SST)
    a(f's_lshl_b32 s9, s6, 4\nv_mov_b32 v13, s9\nds_read_b128 v[8:11], v13 offset:{L_LS}')
    a(f's_lshl_b32 s9, s6, 11\ns_add_u32 s9, s9, {L_EP}\nv_lshl_add_u32 v15, v0, 2, s9')
    a(f'v_and_b32 v17, 3, v0\nv_lshlrev_b32 v16, 9, v17\nv_and_b32 v17, 60, v0\nv_add_u32 v16, v16, v17\ns_lshl_b32 s9, s6, 6\ns_add_u32 s9, s9, {L_EP}\nv_add_u32 v16, s9, v16')
    a(f'v_lshlrev_b32 v17, 2, v0')
    saddr('s15', (('s4', 15), ('s5', 8), ('s6', 13)), M1)
    a('s_mov_b32 s16, 0x05040100\ns_mov_b32 s17, 0x07060302')
    a('s_waitcnt lgkmcnt(0)')
    a('v_add_f32 v8, v8, v9\nv_add_f32 v10, v10, v11\nv_add_f32 v8, v8, v10\nv_rcp_f32 v18, v8')
    AT = RING
    b4_done = False
    if vshrink is not None: lead = st['I'] - 64
    for G in range(8):
        a.cand()
        for p in range(4):
            n = 64 + 8*G + 2*p
            k0, k1 = slot(st['where'][n]), slot(st['where'][n+1])
            a(f's_waitcnt vmcnt({st["I"] - (n+2)})')
            lastp = epi and G == 7 and p == 3
            if lastp: stamp('S', 'lastdata', SST)
            pm = [f'v_perm_b32 v{AT+8*d+p}, v{k1+d}, v{k0+d}, s16\nv_perm_b32 v{AT+8*d+4+p}, v{k1+d}, v{k0+d}, s17' for d in range(4)]
            for d in range(2 if lastp else 4): a(pm[d])
            a.cand()
            st['free'] += [st['where'][n], st['where'][n+1]]
            C = n + 2
            ld_ = lead_end if (lead_end and C >= 128 - n_end) else lead_ss
            if vshrink is not None:
                lead = max(lead_ss, lead - vshrink); ld_ = lead
            while st['I'] < C + ld_ and can_issue(): issue(pace=(ld_ > D + 1))
            if st['I'] == 128 and not b4_done:
                a('s_barrier'); b4_done = True
                stamp('S', 'lastiss', SST)
        if G == 7 and not epi: stamp('S', 'lastdata', SST)
        for dd in range(8):
            a(f'v_mfma_f32_16x16x32_bf16 v[{ACC+4*dd}:{ACC+4*dd+3}], v[{P+4*G}:{P+4*G+3}], v[{AT+4*dd}:{AT+4*dd+3}], {"0" if G == 0 else f"v[{ACC+4*dd}:{ACC+4*dd+3}]"}')
            if epi and G == 7 and dd < 2: a(pm[2 + dd])
            if epi and G == 7 and dd == 6: a(f'ds_write2st64_b32 v15, v{ACC}, v{ACC+4} offset0:0 offset1:1')
    for dd in range(2 if epi else 0, 8, 2): a(f'ds_write2st64_b32 v15, v{ACC+4*dd}, v{ACC+4*dd+4} offset0:{dd} offset1:{dd+1}')
    a('s_waitcnt lgkmcnt(0)')
    a('s_barrier      ; B5: partial outputs of the four waves')
    for w in range(4): a(f'ds_read2st64_b32 v[{4+2*w}:{5+2*w}], v16 offset0:{8*w} offset1:{8*w+1}')
    a('s_waitcnt lgkmcnt(2)\nv_add_f32 v4, v4, v6\nv_add_f32 v5, v5, v7\ns_waitcnt lgkmcnt(0)\nv_add_f32 v8, v8, v10\nv_add_f32 v9, v9, v11')
    a('v_add_f32 v4, v4, v8\nv_add_f32 v5, v5, v9\nv_mul_f32 v4, v4, v18\nv_mul_f32 v5, v5, v18\nv_cvt_pk_bf16_f32 v4, v4, v5\nv_min_u32 v4, -2, v4')
    dual_store(f'buffer_store_dword v4, v17, {srd(SWS)}, s15 offen', 'm1')
    stamp('S', 'pub', SST)
    stamp_store(SST)
    a('s_endpgm')

    if dbg_nocomp:
        keepmn = ('v_writelane', 'v_lshlrev_b32 v17, 2', 'v_mov_b32 v12, 0', 'v_readfirstlane', 'v_lshlrev_b32 v%d' % (SST + 1))
        pat = {1: ('v_',), 2: ('v_mfma',), 3: ('v_perm_b32', 'v_permlane', 'v_add', 'v_cvt', 'v_mul', 'v_fma', 'v_exp', 'v_max', 'v_and', 'v_mov_b32_dpp')}[dbg_nocomp]
        a.L[smain0:] = [l for l in a.L[smain0:] if not (l.startswith(pat) and not l.startswith(keepmn))]
    a('; ================================================================== H mid')
    a('L_Hmid:')
    if dbg_cbrot: a('s_and_b32 s17, s5, 7')
    a.cand()
    W8, WOB, GUB, WDB, A1, DW, Y = 28, 44, 60, 76, 100, 132, 164
    VM = 17
    a('v_lshrrev_b32 v3, 4, v0\nv_and_b32 v4, 15, v0\nv_lshlrev_b32 v5, 4, v3\nv_and_b32 v6, 7, v0')
    a('s_mov_b32 s12, 0xffff0000\ns_lshl_b32 s29, s4, 2\ns_add_u32 s29, s29, s18')
    a(f'v_lshlrev_b32 v7, 1, v0\ns_lshl_b32 s9, s17, 7\nbuffer_load_ushort v40, v7, {srd(SX)}, s9 offen')
    a('v_lshlrev_b32 v25, 2, v0\nv_lshlrev_b32 v19, 4, v0')
    a('v_lshlrev_b32 v20, 8, v4\nv_add_u32 v20, v20, v5\nv_add_u32 v7, 0x1000, v20')
    saddr('s20', (('s29', 13), ('s6', 6)), M1)
    saddr('s21', (('s17', 13), ('s29', 8)), M2)
    saddr('s22', (('s17', 13), ('s6', 11)), M2)
    a(f'v_lshlrev_b32 v23, 4, v4\nv_lshl_add_u32 v23, v3, 2, v23\ns_lshl_b32 s9, s6, 8\nv_add_u32 v23, s9, v23\nv_and_b32 v12, 3, v0')
    AH = 92
    for d in range(8): a(f'v_mov_b32 v{AH+d}, 0x3f803f80')
    lanetag(16, 12)
    a(f'v_mov_b32 v{VM}, {TAGM}')
    a(f's_lshl_b32 s9, s6, 8\ns_add_u32 s9, s9, {L_YW}\nv_add_u32 v26, s9, v25')
    a(f'v_lshlrev_b32 v27, 4, v4\nv_lshl_add_u32 v27, v3, 11, v27')
    saddr('s23', (('s29', 14), ('s17', 8), ('s6', 12)), MF)
    saddr('s24', (('s29', 14), ('s6', 12)), MF)
    saddr('s25', (('s29', 11), ('s17', 8), ('s6', 7)), M3)
    a(f'v_mov_b32 v42, 0\nds_read_b32 v42, v42 offset:{L_FAST}')
    a('s_lshl_b32 s9, s17, 1\ns_sub_u32 s28, s4, s9\ns_add_u32 s28, s28, 14\ns_mul_i32 s9, s28, 37\ns_lshr_b32 s9, s9, 8\ns_mul_i32 s9, s9, 7\ns_sub_u32 s28, s28, s9\ns_lshl_b32 s28, s28, 2\ns_add_u32 s28, s28, s18')
    a(f's_lshl_b32 s15, s17, 3\ns_add_u32 s15, s15, s28')
    a(f'v_and_b32 v12, 1, v0\nv_lshrrev_b32 v36, 1, v0\nv_lshlrev_b32 v36, 11, v36\nv_lshl_add_u32 v36, v12, 4, v36')
    saddr('s84', (('s15', 5),), M3)
    a(f'v_lshl_add_u32 v37, v12, 2, v3\ns_lshl_b32 s9, s28, 5\nv_lshl_add_u32 v38, v37, 2, s9\nv_lshlrev_b32 v37, 1, v37\ns_lshl_b32 s15, s15, 4')
    a.cand()
    a('s_waitcnt vmcnt(0) lgkmcnt(0)\nv_lshlrev_b32 v40, 16, v40\nv_readfirstlane_b32 s39, v42')
    def wo_issue():
        if dbg_now: return
        saddr('s9', (('s29', 17), ('s6', 15), ('s17', 7)))
        a(f's_lshl_b32 s10, s6, 12\ns_add_u32 m0, s10, {L_WQ}')
        for m in range(4):
            a(f'buffer_load_dwordx4 v18, {srd(SWO)}, s9 offen nt lds')
            if m < 3: a('s_add_u32 m0, m0, 1024\ns_add_u32 s9, s9, 0x2000')
    a('; For the group without an F role (h = 7) these offsets lie past the end of the weight buffers: the loads return zeros.')
    def gu_addr():
        a(f'v_lshrrev_b32 v14, 3, v0\nv_mul_u32_u24 v14, 0xe00, v14\nv_lshl_add_u32 v14, v6, 4, v14')
        a(f's_mul_i32 s30, s17, {64*3584}\ns_mul_i32 s10, s6, {16*3584}\ns_add_u32 s30, s30, s10\ns_lshl_b32 s10, s29, 7\ns_add_u32 s30, s30, s10')
        a(f's_cmp_eq_u32 s4, 7\ns_cselect_b32 s30, 0x1000000, s30\ns_add_u32 s31, s30, {8*3584 - 1024}')
        saddr('s32', (('s29', 16), ('s6', 14), ('s17', 7)))
        a(f's_add_u32 s19, s32, {0x2000 - 1024}\ns_lshl_b32 s13, s6, 11\ns_add_u32 s85, s13, {L_G}\ns_add_u32 s87, s13, {L_U}\ns_add_u32 s33, s13, {L_D}')
        if wd == 'p2':
            saddr('s32', (('s29', 16), ('s17', 7), ('s6', 6)))
            a(f's_cmp_gt_u32 s6, 1\ns_cselect_b32 s32, 0x1000000, s32\ns_lshl_b32 s33, s6, 12\ns_add_u32 s33, s33, {L_D}')
            a('v_lshrrev_b32 v41, 2, v0\nv_lshlrev_b32 v41, 10, v41\nv_and_b32 v12, 3, v0\nv_lshl_add_u32 v41, v12, 4, v41')
        a('v_lshrrev_b32 v18, 3, v0\nv_lshlrev_b32 v18, 10, v18\nv_lshl_add_u32 v18, v6, 4, v18')
        a(f'v_lshrrev_b32 v1, 5, v0\nv_lshl_add_u32 v1, v1, 3, v6\ns_lshl_b32 s9, s6, 4\nv_add_u32 v1, s9, v1\nv_lshlrev_b32 v1, 1, v1')
    def gu_issue(when):
        if dbg_now: return 0
        n = 0
        for w_, base, sr in ((wg, 's85', SG), (wu, 's87', SU)):
            if w_ != when: continue
            a(f's_mov_b32 m0, {base}')
            a(f'buffer_load_dwordx4 v14, {srd(sr)}, s30 offen nt lds')
            a(f'buffer_load_dwordx4 v14, {srd(sr)}, s31 offen offset:1024 nt lds')
            n += 2
        return n
    def dn_issue(when):
        if dbg_now or wd != when: return 0
        if wd == 'p2':
            a(f's_mov_b32 m0, s33')
            for m in range(4):
                a(f'buffer_load_dwordx4 v41, {srd(SD)}, s32 offen offset:{1024*m} nt lds')
                if m < 3: a(f's_add_u32 s32, s32, {0x4000 - 1024}')
            return 4
        a(f's_mov_b32 m0, s33')
        a(f'buffer_load_dwordx4 v18, {srd(SD)}, s32 offen nt lds')
        a(f'buffer_load_dwordx4 v18, {srd(SD)}, s19 offen offset:1024 nt lds')
        return 2
    adapt = 'adapt' in (wg, wu, wd)
    gu_late = 'hop1' in (wg, wu) or 'adapt' in (wg, wu)
    def wo_read():
        for cg in range(4):
            for eh in range(2): a(f'ds_read_b64_tr_b16 v[{WOB+4*cg+2*eh}:{WOB+4*cg+2*eh+1}], v22 offset:{L_WQ + eh*512 + cg*32}')
    def gu_read():
        for s_ in range(2):
            for sb in range(2):
                for eh in range(2): a(f'ds_read_b64_tr_b16 v[{GUB+8*sb+4*s_+2*eh}:{GUB+8*sb+4*s_+2*eh+1}], v15 offset:{L_G + s_*1024 + eh*512 + sb*16}')
    def dn_read():
        for cgl in range(2):
            for s_ in range(2):
                for eh in range(2):
                    off = L_D + (s_*2048 + eh*256 if wd == 'p2' else s_*4096 + eh*512) + cgl*32
                    a(f'ds_read_b64_tr_b16 v[{WDB+8*cgl+4*s_+2*eh}:{WDB+8*cgl+4*s_+2*eh+1}], v39 offset:{off}')
    gu_addr()
    a('v_lshlrev_b32 v15, 10, v3\nv_bfe_u32 v13, v0, 2, 2\nv_lshl_add_u32 v15, v13, 7, v15\nv_and_b32 v12, 3, v0\nv_lshl_add_u32 v22, v12, 3, v15\ns_lshl_b32 s9, s6, 6\nv_add_u32 v39, s9, v22\ns_lshl_b32 s9, s6, 12\nv_add_u32 v22, s9, v22')
    a(f'v_and_b32 v12, 1, v0\nv_lshl_add_u32 v15, v12, 3, v15\nv_bfe_u32 v12, v0, 1, 1\nv_mul_u32_u24 v12, {L_U - L_G}, v12\nv_add_u32 v15, v15, v12\nv_lshl_add_u32 v15, v3, 10, v15\ns_lshl_b32 s9, s6, 5\nv_add_u32 v15, s9, v15')
    if wd == 'p2': a('v_lshlrev_b32 v39, 9, v3\nv_lshl_add_u32 v39, v13, 6, v39\nv_and_b32 v12, 3, v0\nv_lshl_add_u32 v39, v12, 3, v39\ns_lshl_b32 s9, s6, 12\nv_add_u32 v39, s9, v39')
    def m1_clear():
        a('; empty the own M1 and MF slots; the log-sum-exp words are published only after these stores are acknowledged')
        a('v_mov_b32 v8, -1\nv_mov_b32 v9, -1\nv_mov_b32 v10, -1\nv_mov_b32 v11, -1\nv_lshlrev_b32 v12, 13, v3\nv_lshl_add_u32 v12, v4, 4, v12')
        saddr('s9', (('s4', 15), ('s5', 8)), M1)
        if not dbg_noclr: dual_store(f'buffer_store_dwordx4 v[8:11], v12, {srd(SWS)}, s9 offen', 'clr')
        if mfs:
            a('s_cmp_eq_u32 s4, 7\ns_cbranch_scc1 L_clrf\ns_add_u32 s9, s23, 8192')
            dual_store(f'buffer_store_dwordx4 v[8:11], v27, {srd(SWS)}, s23 offen', 'clr2')
            dual_store(f'buffer_store_dwordx4 v[8:11], v27, {srd(SWS)}, s9 offen', 'clr3')
            a('L_clrf:')
        a('s_waitcnt vmcnt(0)')
    if clrpos == 1:
        a('s_cmp_lg_u32 s3, 0\ns_cbranch_scc1 L_clre'); m1_clear(); a('L_clre:')
    a('s_barrier      ; B2')
    a('s_barrier      ; B3')
    a.cand()
    if dbg_nomid: a('s_branch L_noearly')
    gu_issue('mid'); dn_issue('mid')
    a('s_cmp_lg_u32 s3, 0\ns_cbranch_scc1 L_nolam')
    if clrpos == 3: m1_clear()
    if touch:
        a(f'buffer_load_dword v{Y+8}, v25, {srd(SWS)}, s25 offen sc1\nbuffer_load_dword v{Y+9}, v25, {srd(SWS)}, s21 offen sc1')
    a("; publish the log2-sum-exp of this workgroup's chunk, collect those of the head it will combine")
    a(f'v_and_b32 v12, 3, v0\nv_lshlrev_b32 v12, 4, v12\nds_read_b128 v[8:11], v12 offset:{L_MX}\nds_read_b128 v[{Y}:{Y+3}], v12 offset:{L_LS}\ns_mov_b32 s14, {LOG2E}')
    saddr('s11', (('s4', 10), ('s5', 5)), LAM)
    saddr('s27', (('s4', 10), ('s18', 3)), LAM)
    a('s_waitcnt lgkmcnt(0)')
    a('v_max3_f32 v8, v8, v9, v10\nv_max_f32 v8, v8, v11'); rbf(8)
    a(f'v_add_f32 v9, v{Y}, v{Y+1}\nv_add_f32 v10, v{Y+2}, v{Y+3}\nv_add_f32 v9, v9, v10\nv_log_f32 v9, v9\nv_mul_f32 v8, s14, v8\nv_add_f32 v8, v8, v9\nv_mov_b32 v9, s96')
    a(f'v_lshlrev_b32 v12, 3, v0\ns_mov_b64 exec, 15')
    dual_store(f'buffer_store_dwordx2 v[8:9], v12, {srd(SWS)}, s11 offen', 'lam')
    a('s_mov_b64 exec, -1\nv_and_b32 v12, 31, v0\nv_lshlrev_b32 v12, 5, v12\ns_mov_b32 s14, 0')
    a.cand()
    a('L_lpoll:')
    a(f's_sleep {lamdelay}')
    a(f'buffer_load_dwordx2 v[10:11], v12, {srd(SWS)}, s27 offen sc1')
    a(f's_add_u32 s14, s14, 1\ns_cmp_gt_u32 s14, {SPIN}\ns_waitcnt vmcnt(0)\ns_cbranch_scc1 L_ldone')
    a('v_cmp_ne_u32 vcc, s96, v11\ns_cbranch_vccnz L_lpoll')
    a('L_ldone:')
    a('v_mov_b32 v8, v10'); allreduce(8, 9, 'max')
    a('v_sub_f32 v10, v10, v8\nv_exp_f32 v10, v10\ns_nop 0\nv_mov_b32 v8, v10'); allreduce(8, 9, 'add')
    a(f'v_rcp_f32 v8, v8\nv_add_f32 v10, v10, v10\nv_mul_f32 v10, v10, v8\ns_mov_b32 exec_hi, 0\nds_write_b32 v25, v10 offset:{L_W}\ns_mov_b64 exec, -1')
    a('L_nolam:')
    stamp('H', 'lam', HST)
    R = Y + 4
    m1_loads = [f'buffer_load_dwordx4 v[{A1+4*t}:{A1+4*t+3}], {("v20", "v7")[t]}, {srd(SWS)}, s20 offen sc1' for t in range(2)]
    m2_loads = [f'buffer_load_dwordx4 v[{Y+4*j}:{Y+4*j+3}], v19, {srd(SWS)}, s22 offen offset:{j*1024} sc1' for j in range(2)]
    mf_loads = [f'buffer_load_dwordx4 v[{A1+4*j}:{A1+4*j+3}], v19, {srd(SWS)}, s24 offen offset:{j*1024} sc1' for j in range(4)]
    m3_loads = [f'buffer_load_dwordx4 v[{R}:{R+3}], v36, {srd(SWS)}, s84 offen sc1']
    if edelay: a(f's_cmp_eq_u32 s3, 0\ns_cbranch_scc1 L_ned\ns_sleep {edelay}\nL_ned:')
    if '1' in early:
        for l in m1_loads: a(l)
    if 'h' in early:
        a('s_cmp_lg_u32 s3, 2\ns_cbranch_scc1 L_noearly4')
        saddr('s9', (('s29', 13), ('s17', 10)), M1)
        a(f'buffer_load_dwordx4 v[{A1}:{A1+3}], v19, {srd(SWS)}, s9 offen sc1')
        a('L_noearly4:')
    a('s_cmp_eq_u32 s4, 7\ns_cbranch_scc1 L_noearly')
    if '2' in early:
        for l in m2_loads: a(l)
    if 'f' in early:
        a('s_cmp_lg_u32 s17, 0\ns_cbranch_scc1 L_noearly2')
        for l in mf_loads: a(l)
        a('L_noearly2:')
    if 'g' in early:
        a('s_cmp_lg_u32 s3, 1\ns_cbranch_scc1 L_noearly3')
        saddr('s9', (('s29', 14), ('s17', 11)), MF)
        for j in range(2): a(f'buffer_load_dwordx4 v[{A1+4*j}:{A1+4*j+3}], v19, {srd(SWS)}, s9 offen offset:{j*1024} sc1')
        a('L_noearly3:')
    if '3' in early:
        a('s_cmp_gt_u32 s28, 7\ns_cbranch_scc1 L_noearly\ns_cmp_lg_u32 s3, 2\ns_cbranch_scc1 L_noearly')
        for l in m3_loads: a(l)
    a('L_noearly:')
    a('s_waitcnt vmcnt(0) lgkmcnt(0)')
    a.cand()
    a('s_barrier      ; B4')
    wo_issue()
    nwf = gu_issue('b4') + dn_issue('b4')
    if adapt: a('s_mov_b32 s86, 0')
    a(f'ds_read_b128 v[{W8}:{W8+3}], v5 offset:{L_W}\nds_read_b128 v[{W8+4}:{W8+7}], v5 offset:{L_W + 64}')
    a('s_barrier      ; B5')
    stamp('H', 'b5', HST)
    if dbg_notail:
        stamp('H', 'out', HST); a('s_branch L_Hend')
    a.cand()
    names = ('p1', 'p2', 'p25', 'p3')
    def poll(name, loads, base, tmp=8, tagged=True, after_first=None):
        n = len(loads); nreg = 4 * n
        a('s_mov_b32 s14, 0')
        dl = pd[names.index(name)]
        if name == 'p25' and local and pdslow: a(f's_cmp_lg_u32 s39, 0\ns_cbranch_scc1 L_{name}_0\ns_sleep {pdslow}\nL_{name}_0:')
        elif dl: a(f's_sleep {dl}')
        if after_first:
            for l in loads: a(l)
            after_first()
            a(f's_branch L_{name}_c')
        a(f'L_{name}:')
        for l in loads: a(l)
        a(f's_add_u32 s14, s14, 1\ns_cmp_gt_u32 s14, {SPIN}\ns_cbranch_scc1 L_{name}_x')
        if tagged:
            prog = progw and not (name == 'p2' and (pretouch or wd == 'p2'))
            a(f'L_{name}_c:' if prog else f's_waitcnt vmcnt(0)\nL_{name}_c:')
            tagcheck(base, n, tmp, waits=prog)
        else:
            a(f'L_{name}_c:')
            for k in range(n):
                r = base + 4*k
                a(f's_waitcnt vmcnt({n-1-k})')
                if k == 0: a(f'v_max_u32 v{tmp}, v{r}, v{r+1}\nv_max_u32 v{tmp+1}, v{r+2}, v{r+3}')
                else: a(f'v_max3_u32 v{tmp}, v{tmp}, v{r}, v{r+1}\nv_max3_u32 v{tmp+1}, v{tmp+1}, v{r+2}, v{r+3}')
            a(f'v_max_u32 v{tmp}, v{tmp}, v{tmp+1}')
            a(f'v_cmp_eq_u32 vcc, -1, v{tmp}')
        if name == 'p1' and adapt:
            a(f's_and_b64 exec, exec, vcc\ns_cbranch_execnz L_p1_more')
            keep = a.L; a.L = []
            a(f'L_p1_more:\ns_cmp_lg_u32 s14, 0\ns_cbranch_scc1 L_p1\ns_bcnt1_i32_b64 s9, exec\ns_cmp_lt_u32 s9, {4 * thr}\ns_cbranch_scc1 L_p1')
            a('s_mov_b64 s[88:89], exec\ns_mov_b64 exec, -1\ns_mov_b32 s86, 1')
            gu_issue('adapt'); dn_issue('adapt')
            a('s_mov_b64 exec, s[88:89]\ns_branch L_p1')
            stubs.append('\n'.join(a.L)); a.L = keep
        else:
            a(f's_and_b64 exec, exec, vcc\ns_cbranch_execnz L_{name}')
        a(f'L_{name}_x:')
        a('s_mov_b64 exec, -1')
        if stamps is True: a(f's_add_u32 s14, s14, 1\nv_writelane_b32 v{HST}, s14, {40 + names.index(name)}')
    def p1_first():
        a(f's_waitcnt vmcnt({nwf + 2})'); wo_read()
    poll('p1', m1_loads, A1, tagged=False, after_first=p1_first)
    a('s_waitcnt vmcnt(0) lgkmcnt(0)')
    stamp('H', 'hop1', HST)
    if preinv:
        a(f's_cmp_lg_u32 s3, 0\ns_cbranch_scc1 L_npi\nv_not_b32 v12, v16\nbuffer_store_dword v12, v25, {srd(SWS)}, s21 offen sc1\nL_npi:')
    fm = [f'v_mul_f32 v8, v{W8}, v{DW}'] + [f'v_fmac_f32 v8, v{W8+r}, v{DW+r}' for r in range(1, 8)]
    for cg in range(4):
        for t in range(2):
            a(f'v_mfma_f32_16x16x32_bf16 v[{DW+8*cg+4*t}:{DW+8*cg+4*t+3}], v[{A1+4*t}:{A1+4*t+3}], v[{WOB+4*cg}:{WOB+4*cg+3}], 0')
            if wint and 2*cg + t >= 6:
                for k in range(2): a(fm.pop(0))
    def late_issue():
        if adapt:
            a('s_cmp_lg_u32 s86, 0\ns_cbranch_scc1 L_ad')
            gu_issue('adapt'); dn_issue('adapt')
            a('L_ad:')
        gu_issue('hop1'); dn_issue('hop1')
    if lpos == 0: late_issue()
    if wint:
        for l in fm: a(l)
    for cg in range(1 if wint else 0, 4):
        a(f'v_pk_mul_f32 v[{DW+8*cg}:{DW+8*cg+1}], v[{W8}:{W8+1}], v[{DW+8*cg}:{DW+8*cg+1}]')
        for r in range(2, 8, 2): a(f'v_pk_fma_f32 v[{DW+8*cg}:{DW+8*cg+1}], v[{W8+r}:{W8+r+1}], v[{DW+8*cg+r}:{DW+8*cg+r+1}], v[{DW+8*cg}:{DW+8*cg+1}]')
    for cg in ((2, 1, 3) if wint else (0, 2, 1, 3)): a(f'v_add_f32 v{8+cg}, v{DW+8*cg}, v{DW+8*cg+1}')
    a('v_permlane32_swap_b32 v8, v10\nv_add_f32 v8, v8, v10\nv_permlane32_swap_b32 v9, v11\nv_add_f32 v9, v9, v11\nv_permlane16_swap_b32 v8, v9\nv_add_f32 v8, v8, v9')
    a('ds_write_b32 v26, v8')
    if lpos == 1: late_issue()
    a('s_waitcnt lgkmcnt(0)')
    a('s_barrier      ; BW')
    a('s_cmp_lg_u32 s3, 0\ns_cbranch_scc1 L_nowpub')
    a(f'ds_read2st64_b32 v[8:9], v25 offset0:{L_YW//256} offset1:{L_YW//256+1}\nds_read2st64_b32 v[10:11], v25 offset0:{L_YW//256+2} offset1:{L_YW//256+3}')
    a(f's_waitcnt lgkmcnt(0)\nv_add_f32 v8, v8, v9\nv_add_f32 v10, v10, v11\nv_add_f32 v8, v8, v10\nv_bfi_b32 v8, v{VM}, v16, v8')
    a(f'buffer_store_dword v8, v25, {srd(SWS)}, s21 offen sc1')
    a('L_nowpub:')
    if lpos == 2: late_issue()
    stamp('H', 'wpub', HST)
    a('s_cmp_eq_u32 s4, 7\ns_cbranch_scc1 L_Hend')
    if not gu_late: gu_read()
    a.cand()
    def p2_first():
        npt = 0
        if local and pretouch:
            for l in mf_loads: a(l)
            npt = 4
        npt += dn_issue('p2')
        if npt or not progw: a(f's_waitcnt vmcnt({npt})')
    poll('p2', m2_loads, Y, after_first=p2_first)
    stamp('H', 'hop2', HST)
    for e in range(4): a(f'v_add_f32 v{Y+e}, v{Y+e}, v{Y+4+e}')
    a(f'v_permlane32_swap_b32 v{Y}, v{Y+2}\nv_permlane32_swap_b32 v{Y+1}, v{Y+3}\nv_add_f32 v{Y}, v{Y}, v{Y+2}\nv_add_f32 v{Y+1}, v{Y+1}, v{Y+3}')
    a(f'v_permlane16_swap_b32 v{Y}, v{Y+1}\nv_add_f32 v8, v{Y}, v{Y+1}')
    a(f'ds_write_b32 v23, v8 offset:{L_HP}\ns_waitcnt lgkmcnt(0)')
    a('s_barrier      ; BF')
    a(f'ds_read2st64_b32 v[8:9], v25 offset0:{L_HP//256} offset1:{L_HP//256+1}\nds_read2st64_b32 v[10:11], v25 offset0:{L_HP//256+2} offset1:{L_HP//256+3}')
    if gu_late: gu_read()
    nx = 8 if gu_late else 0
    a(f's_waitcnt lgkmcnt({nx + 1})\nv_add_f32 v8, v8, v40\nv_add_f32 v8, v8, v9\ns_waitcnt lgkmcnt({nx})\nv_add_f32 v10, v10, v11\nv_add_f32 v21, v8, v10')
    a(f'v_mov_b32_dpp v9, v21 quad_perm:[1,0,3,2] {FULL}\nv_cvt_pk_bf16_f32 v8, v21, v9')
    a(f's_mov_b32 exec_lo, 0xdddddddd\ns_mov_b32 exec_hi, 0xdddddddd')
    for d in range(8): a(f'v_mov_b32_dpp v{AH+d}, v8 row_newbcast:{2*d} {FULL}')
    a('s_mov_b64 exec, -1')
    for s_ in range(2):
        a(f'v_mfma_f32_16x16x32_bf16 v[{DW+8}:{DW+11}], v[{AH+4*s_}:{AH+4*s_+3}], v[{AH+4*s_}:{AH+4*s_+3}], {"0" if s_ == 0 else f"v[{DW+8}:{DW+11}]"}')
        if nx: a(f's_waitcnt lgkmcnt({4 - 4*s_})')
        for sb in range(2):
            a(f'v_mfma_f32_16x16x32_bf16 v[{DW+4*sb}:{DW+4*sb+3}], v[{AH+4*s_}:{AH+4*s_+3}], v[{GUB+8*sb+4*s_}:{GUB+8*sb+4*s_+3}], {"0" if s_ == 0 else f"v[{DW+4*sb}:{DW+4*sb+3}]"}')
    a('s_mov_b32 exec_hi, 0')
    a(f'v_mov_b32_dpp v10, v{DW+8} quad_perm:[0,0,2,3] {FULL}\nv_mov_b32_dpp v11, v{DW+9} quad_perm:[0,0,2,3] {FULL}')
    a('v_min_u32 v10, -2, v10\nv_min_u32 v11, -2, v11' if mfs else f'v_bfi_b32 v10, v{VM}, s36, v10\nv_bfi_b32 v11, v{VM}, s37, v11')
    a(f'v_mov_b32_dpp v{DW}, v{DW+4} quad_perm:[0,1,2,3] row_mask:2 bank_mask:0xf\nv_mov_b32_dpp v{DW+1}, v{DW+5} quad_perm:[0,1,2,3] row_mask:2 bank_mask:0xf')
    a(f'v_min_u32 v8, -2, v{DW}\nv_min_u32 v9, -2, v{DW+1}' if mfs else f'v_bfi_b32 v8, v{VM}, s34, v{DW}\nv_bfi_b32 v9, v{VM}, s35, v{DW+1}')
    if pretouch or wd == 'p2': a('s_waitcnt vmcnt(0)')
    dual_store(f'buffer_store_dwordx4 v[8:11], v27, {srd(SWS)}, s23 offen', 'mf')
    a('s_mov_b64 exec, -1')
    stamp('H', 'f1pub', HST)
    a.cand()
    a('s_mov_b32 s13, 0x3b000000\ns_mov_b32 s16, 0xc0135761\ns_mov_b32 s26, 0xbdd2d3e8')
    if not p25first: dn_read()
    poll('p25', mf_loads, A1, tmp=12, tagged=not mfs, after_first=dn_read if p25first else None)
    a('s_waitcnt vmcnt(0)')
    stamp('H', 'hop25', HST)
    Z = A1
    for e in range(4): a(f'v_add_f32 v{Z+e}, v{Z+e}, v{Z+4+e}\nv_add_f32 v{Z+8+e}, v{Z+8+e}, v{Z+12+e}')
    for e in range(4): a(f'v_permlane32_swap_b32 v{Z+e}, v{Z+8+e}')
    for e in range(4): a(f'v_add_f32 v{Z+e}, v{Z+e}, v{Z+8+e}')
    for e in range(4): a(f'v_mov_b32 v{Z+4+e}, v{Z+e}')
    for e in (3, 2, 0, 1): a(f'v_permlane16_swap_b32 v{Z+e}, v{Z+4+e}')
    for e in (3, 2, 0, 1): a(f'v_add_f32 v{Z+e}, v{Z+e}, v{Z+4+e}')
    a(f'v_mul_f32 v13, s13, v{Z+3}\nv_mul_f32 v14, v13, v13\nv_fma_f32 v12, v{Z+2}, s13, -v14\nv_max_f32 v12, 0, v12\nv_add_f32 v12, 0x3727c5ac, v12\nv_rsq_f32 v12, v12')
    a(f'v_fma_f32 v14, -v13, v{Z+1}, v{Z}\nv_mul_f32 v14, v14, v12')
    a('v_mul_f32 v15, v14, v14\nv_mov_b32 v12, s16\nv_fmac_f32 v12, s26, v15\nv_mul_f32 v12, v12, v14\nv_exp_f32 v12, v12')
    a(f'v_mov_b32_dpp v15, v14 row_ror:8 {FULL}')
    a('v_add_f32 v12, 1.0, v12\nv_rcp_f32 v12, v12\nv_mul_f32 v14, v14, v15\ns_mov_b32 exec_lo, 0xff\ns_mov_b32 exec_hi, 0xff\nv_mul_f32 v14, v14, v12')
    a(f'v_cvt_pk_bf16_f32 v14, v14, v14\nds_write_b16 v1, v14 offset:{L_ACT}\ns_mov_b64 exec, -1\ns_waitcnt lgkmcnt(0)')
    a('s_barrier      ; BA')
    a('s_cmp_gt_u32 s3, 1\ns_cbranch_scc1 L_R')
    a(f'ds_read_b128 v[{Z}:{Z+3}], v5 offset:{L_ACT}\nds_read_b128 v[{Z+4}:{Z+7}], v5 offset:{L_ACT + 64}')
    for s_ in range(2):
        a(f's_waitcnt lgkmcnt({1 - s_})')
        for cgl in range(2):
            a(f'v_mfma_f32_16x16x32_bf16 v[{DW+4*cgl}:{DW+4*cgl+3}], v[{Z+4*s_}:{Z+4*s_+3}], v[{WDB+8*cgl+4*s_}:{WDB+8*cgl+4*s_+3}], {"0" if s_ == 0 else f"v[{DW+4*cgl}:{DW+4*cgl+3}]"}')
    a('s_mov_b32 exec_hi, 0')
    a(f'v_mov_b32_dpp v{DW}, v{DW+4} quad_perm:[0,1,2,3] row_mask:2 bank_mask:0xf\nv_bfi_b32 v8, v{VM}, v16, v{DW}')
    a(f'buffer_store_dword v8, v25, {srd(SWS)}, s25 offen sc1')
    stamp('H', 'fpub', HST)
    a('s_branch L_Hend')
    a('L_R:')
    a('s_cmp_eq_u32 s3, 2\ns_cbranch_scc1 L_R2')
    a(f's_cmp_lg_u32 s2, 0\ns_cbranch_scc1 L_Hend\ns_mov_b64 exec, 1\nv_mov_b32 v9, s96\nv_mov_b32 v10, {EPOCH}\nbuffer_store_dword v9, v10, {srd(SWS)}, 0 offen sc1\ns_branch L_Hend')
    a('L_R2:')
    a('s_cmp_gt_u32 s28, 7\ns_cbranch_scc1 L_Hend')
    a.cand()
    a(f'ds_bpermute_b32 v21, v38, v21')
    for e in range(4): a(f'v_mov_b32 v{R+e}, 0')
    a('s_waitcnt lgkmcnt(0)'); rbf(21)
    a('s_mov_b32 exec_hi, 0x00ffffff')
    poll('p3', m3_loads, R)
    stamp('H', 'hop3', HST)
    a(f'v_permlane32_swap_b32 v{R}, v{R+2}\nv_permlane32_swap_b32 v{R+1}, v{R+3}\nv_add_f32 v{R}, v{R}, v{R+2}\nv_add_f32 v{R+1}, v{R+1}, v{R+3}')
    a(f'v_permlane16_swap_b32 v{R}, v{R+1}\nv_add_f32 v8, v{R}, v{R+1}')
    a(f'v_add_f32_dpp v8, v8, v8 row_ror:8 {FULL}\nv_add_f32_dpp v8, v8, v8 row_ror:4 {FULL}\nv_add_f32_dpp v8, v8, v8 quad_perm:[2,3,0,1] {FULL}')
    for k in range(dbg_sleep): a('s_sleep 125')
    for k in range(abs(dbg_tlb)):
        a(f's_add_u32 s9, s4, {1 + (k % 7 if dbg_tlb > 0 else 0)}\ns_and_b32 s9, s9, 7\ns_lshl_b32 s9, s9, 23\ns_lshl_b32 s10, s2, 10\ns_add_u32 s9, s9, s10\ns_add_u32 s9, s9, {((k // 7 * 2 + (k & 1)) << 21 if dbg_tlb > 0 else 0) + k * 0x40000 % 0x200000 * (dbg_tlb < 0)}\nbuffer_load_dword v9, v37, {srd(SK)}, s9 offen nt\ns_waitcnt vmcnt(0)')
    rbf(8)
    a('v_add_f32 v8, v8, v21\ns_mov_b32 exec_lo, 0x00030003\ns_mov_b32 exec_hi, 0x00030003\nv_cvt_pk_bf16_f32 v8, v8, v8')
    a(f'buffer_store_short v8, v37, {srd(SO)}, s15 offen {outsc}')
    stamp('H', 'out', HST)
    a('L_Hend:')
    stamp_store(HST)
    a('L_end:')
    a('s_endpgm')
    for t in stubs: a(t)

    head = HEADER + DOC + f'; @launch grid=(256,1,1) block=(512,1,1) lds={L_SP + 4096 * spill if spill else LDS_BYTES}\n'
    al = '' if align is None else f'.p2align 12\n.fill {align // 4}, 4, 0xbf800000\n'
    pre = f'.amdgcn_target "amdgcn-amd-amdhsa--gfx950"\n.text\n.globl {KN}\n{al}.p2align 8\n.type {KN},@function\n'
    post = f'''.section .rodata,"a"
.p2align 6
.amdhsa_kernel {KN}
  .amdhsa_next_free_vgpr 256
  .amdhsa_next_free_sgpr 98
  .amdhsa_accum_offset 256
  .amdhsa_group_segment_fixed_size 0
  .amdhsa_kernarg_size 96
  .amdhsa_user_sgpr_count 2
  .amdhsa_user_sgpr_kernarg_segment_ptr 1
  .amdhsa_system_sgpr_workgroup_id_x 1
  .amdhsa_float_denorm_mode_32 3
.end_amdhsa_kernel
'''
    if not warm:
        return head + pre + '\n'.join(a.render(chosen=[])) + '\n' + post, nst
    saveL = list(a.L)
    a.L = [l.replace('@W0', 'L_warm_end').replace('@W1', 'L_warm_end').replace('@W2', 'L_warm_end') for l in saveL]
    syms = assemble_syms(pre + '\n'.join(a.render(None)) + '\n')
    pos = [syms[f'L_cand{n}'] for n in range(a.ncand)]
    end = syms['L_end']
    chosen = []; last = None
    for n in range(a.ncand):
        nxt = pos[n+1] if n + 1 < a.ncand else end
        if last is None or nxt - last > padgap:
            chosen.append(n); last = pos[n]
    k = len(chosen)
    ent = [0, (k + 2) // 3, (2 * k + 2) // 3]
    a.L = [l.replace('@W0', f'L_pad{ent[0]}').replace('@W1', f'L_pad{ent[1]}').replace('@W2', f'L_pad{ent[2]}') for l in saveL]
    body = a.render(chosen)
    gaps = [pos[chosen[i+1]] - pos[chosen[i]] for i in range(k-1)] + [end - pos[chosen[-1]]]
    print('pads', k, 'first', pos[chosen[0]], 'gaps', gaps, 'code bytes', end, file=sys.stderr)
    return head + pre + '\n'.join(body) + '\n' + post, nst

if __name__ == '__main__':
    kw = eval('dict(' + (sys.argv[2] if len(sys.argv) > 2 else '') + ')')
    s, nst = gen(**kw)
    open(sys.argv[1], 'w').write(s)
    if nst: print(nst)
```

```python
import sys
from asmlib import Asm, assemble_syms
NAME = 'sequential_preLN__gqa_block_cached__glu_gated_geglu__decode'
KN = NAME + '_kernel'

QP   = 0x00000
LAM  = 0x10000
EPOCH = 0x19000
M2   = 0x20000
M1   = 0x40000
M3   = 0x80000
MF   = 0x100000
STAMP = 0x8000000
L_WQ = 0
L_G  = 16384
L_U  = 24576 + 64
L_XN = 33792
L_Q  = 34816
L_MX = 35840
L_LS = 35904
L_FAST = 35968
L_W  = 36096
L_EP = 36864
L_YW = 45568
L_HP = 46592
L_ACT = 47616
L_D  = 47872
L_SP = 56320
LDS_BYTES = 56064
SX, SK, SV, SWQ, SWO, SG, SU, SD, SO, SDBG, SWS = 40, 44, 48, 52, 56, 60, 64, 68, 72, 76, 80
def srd(b): return f's[{b}:{b+3}]'
LOG2E = 0x3fb8aa3b
SPIN = 1 << 16
TAGB = 10
TAGM = 0x3ff
FULL = 'row_mask:0xf bank_mask:0xf'

HEADER = open('cdna_kernels/' + NAME + '.s.ref').read().split('; Override launch')[0]

DOC = """; One persistent launch, 256 workgroups (one per CU) x 8 waves; text written by my own generator script.
;     exact row max / row sum of the workgroup, PV with 16x16x32 MFMA, publish the normalised partial O (M1).
;     R  (sum of 28 partials + h)                                                                   -> d_out
;   owner publishes its log-sum-exp words, which every reader of the slot has received.
"""

def gen(D=6, lead_ss=14, lead_sm=16, lead_end=None, n_end=0, wg='b4', wu='hop1', wd='hop1', thr=8, wint=True, p1nat=True, wo='b4', b4lead=0, dalt=0, spread=False, Dv=None, smi=6, kshrink=1, vshrink=1, smx=2, spill=0, edelay=0, mfs=True, p25first=True, boost=None, bfrom=24, bto=48, D1=None, n1=24, wqpace=0, dbg_cbrot=0, epi=True, preinv=False, hfirst=False, D0=11, align=None, qlocal=6, clrpos=1, progw=True, dlo=None, dmask=0xaa, dfrom=0, dstep=1, pcs=18, padgap=900, sfirst=True, hprio=2, sprio=0, lpos=0, qdelay=0, pd=(0, 15, 0, 11), pdslow=0, local=True, pretouch=False, touch=True, lamdelay=0, early='g', outsc='',
        klin=False, stamps=False, warm=True, nslots=40, dbgwg=0, dbg_now=False, dbg_notail=False, dbg_sleep=0, dbg_extra=0, dbg_rtt=0, dbg_noclr=False, dbg_noq=False, dbg_nomid=False, dbg_klin=False, dbg_nocomp=False, dbg_tlb=0):
    a = Asm()
    nst = {}
    stubs = []
    SST, HST = (248 if klin else 88), 200
    assert nslots <= (36 if klin else 40)
    def stamp(role, name, vreg):
        if not stamps: return
        if stamps == 'lite' and name not in ('pub', 'out'): return
        idx = nst.setdefault(role, []); idx.append(name)
        a(f's_memrealtime s[90:91]\ns_waitcnt lgkmcnt(0)\nv_writelane_b32 v{vreg}, s90, {len(idx)-1}')
    def stamp_store(vreg):
        if not stamps: return
        if stamps == 'dbg':
            if vreg == SST: return
            a(f's_cmp_lg_u32 s2, {dbgwg}\ns_cbranch_scc1 L_nodbg\ns_cmp_lg_u32 s3, 0\ns_cbranch_scc1 L_nodbg')
            a(f's_mov_b64 exec, -1\nv_subrev_u32 v{vreg}, s94, v{vreg}\nv_lshlrev_b32 v{vreg+1}, 2, v0\nbuffer_store_dword v{vreg}, v{vreg+1}, {srd(SDBG)}, 0 offen\nL_nodbg:')
            return
        a(f's_lshl_b32 s92, s2, 3\ns_add_u32 s92, s92, s3\ns_lshl_b32 s92, s92, 8\ns_add_u32 s92, s92, {STAMP}')
        a(f's_mov_b64 exec, -1\nv_lshlrev_b32 v{vreg+1}, 2, v0\nbuffer_store_dword v{vreg}, v{vreg+1}, {srd(SWS)}, s92 offen')
    def crossg(r, t, op='add'):
        a(f'v_mov_b32 v{t}, v{r}\nv_permlane16_swap_b32 v{t}, v{r}\nv_{op}_f32 v{r}, v{r}, v{t}')
        a(f'v_mov_b32 v{t}, v{r}\nv_permlane32_swap_b32 v{t}, v{r}\nv_{op}_f32 v{r}, v{r}, v{t}')
    def allreduce(r, t, op='add'):
        for sh in (8, 4, 2, 1): a(f'v_{op}_f32_dpp v{r}, v{r}, v{r} row_ror:{sh} {FULL}')
        crossg(r, t, op)
    def rbf(r):
        a(f'v_cvt_pk_bf16_f32 v{r}, v{r}, v{r}\nv_lshlrev_b32 v{r}, 16, v{r}')
    def saddr(dst, terms, const=0, tmp='s10'):
        first = True
        for reg, sh in terms:
            t = dst if first else tmp
            a(f's_lshl_b32 {t}, {reg}, {sh}' if sh else f's_mov_b32 {t}, {reg}')
            if not first: a(f's_add_u32 {dst}, {dst}, {tmp}')
            first = False
        if const: a(f's_add_u32 {dst}, {dst}, {const}')
    def tags():
        a(f's_mul_i32 s96, s33, 1664525\ns_add_u32 s96, s96, 1013904223\ns_and_b32 s34, s96, {TAGM}\ns_bfe_u32 s35, s96, {TAGB << 16 | 10}\ns_bfe_u32 s36, s96, {TAGB << 16 | 20}\ns_lshr_b32 s37, s96, 22')
    def lanetag(dst, idx):
        a(f'v_mul_u32_u24 v{dst}, 10, v{idx}\nv_min_u32 v{dst}, 22, v{dst}\nv_lshrrev_b32_e64 v{dst}, v{dst}, s96')
    def dual_store(ins, name):
        if not local:
            a(ins + ' sc1'); return
        a(f's_cmp_eq_u32 s39, 0\ns_cbranch_scc1 L_{name}_s\n{ins}\nL_{name}_e:')
        stubs.append(f'L_{name}_s:\n{ins} sc1\ns_branch L_{name}_e')

    a('; ================================================================== entry')
    a(f'{KN}:')
    a('s_cmp_ge_u32 s2, 256\ns_cbranch_scc1 L_end')
    if stamps: a('s_memrealtime s[94:95]')
    PTRS = ((SK, 8, 64 << 20), (SX, 0, 1024), (SWQ, 24, 4 << 20), (SWS, 88, 268435456), (SV, 16, 64 << 20), (SWO, 32, 4 << 20), (SG, 48, 512 * 3584),
            (SU, 56, 512 * 3584), (SD, 64, 1792 * 1024), (SO, 72, 1024)) + (((SDBG, 80, 256),) if stamps == 'dbg' else ())
    def srds(which):
        for b, off, n in which: a(f's_load_dwordx2 s[{b}:{b+1}], s[0:1], {off}')
        for b, off, n in which: a(f's_mov_b32 s{b+2}, {n}\ns_mov_b32 s{b+3}, 0x20000')
    a(f's_load_dwordx2 s[{SK}:{SK+1}], s[0:1], 8')
    a('v_lshrrev_b32 v1, 6, v0\nv_and_b32 v0, 63, v0')
    a('v_readfirstlane_b32 s3, v1')
    a(f's_mov_b32 s{SK+2}, {64 << 20}\ns_mov_b32 s{SK+3}, 0x20000')
    a('s_and_b32 s4, s2, 7\ns_lshr_b32 s5, s2, 3')
    if sfirst: a('s_xor_b32 s3, s3, 4')
    a('s_and_b32 s6, s3, 3')
    a('s_cmp_lt_u32 s3, 4\ns_cbranch_scc1 L_H')
    RING = 96
    if sprio: a(f's_setprio {sprio}')
    def slot(k): return RING + 4 * k
    a('v_and_b32 v1, 3, v0\nv_lshlrev_b32 v1, 8, v1\nv_lshrrev_b32 v2, 2, v0\nv_lshl_add_u32 v1, v2, 4, v1')
    a('v_lshlrev_b32 v2, 4, v0')
    if dbg_klin: a('v_mov_b32 v1, v2')
    saddr('s7', (('s4', 23), ('s5', pcs), ('s6', 12)), tmp='s8')
    a('s_mov_b32 s8, s7')
    if dlo: a(f's_getreg_b32 s9, hwreg(HW_REG_XCC_ID)\ns_and_b32 s9, s9, 7\ns_lshr_b32 s9, {dmask}, s9\ns_and_b32 s9, s9, 1\ns_cselect_b64 vcc, -1, 0')
    if stamps: a(f'v_mov_b32 v{SST}, 0')
    a('s_waitcnt lgkmcnt(0)')
    if stamps: a(f'v_writelane_b32 v{SST}, s94, 0'); nst['S'] = ['start']
    st = dict(I=0, free=list(range(nslots)), where={})
    def issue(pace=True):
        n = st['I']
        fl = st['free']
        parked = nslots <= n < nslots + spill
        if not parked:
            k = next(x for x in fl if n < 64 or x >= 8)
            fl.remove(k); st['where'][n] = k
        if boost and pace and bfrom <= n < bto:
            a(f's_waitcnt vmcnt({boost-1})\ns_cbranch_vccnz L_b{n}\ns_waitcnt vmcnt({D-1})\nL_b{n}:')
        elif pace and n >= (D0 or D): a(f's_waitcnt vmcnt({(D1 if (D1 and n < n1) else (Dv if (Dv and n >= 96) else D))-1+(1 if (dalt and n % dalt == 0) else 0)})')
        if dlo and n >= max(dlo, dfrom) and n % dstep == 0 and not (80 - lead_sm <= n - 0 < 80 and not pace and n < 64 + lead_sm):
            a(f's_cbranch_vccnz L_d{n}\ns_waitcnt vmcnt({dlo-1})\nL_d{n}:')
        if stamps is True and n in (7, 16, 24, 33): stamp('S', f'n{n}', SST)
        if n == 64: a('s_mov_b32 s8, s7')
        if parked:
            if n & 3 == 0: a(f's_mul_i32 s9, s6, {spill * 1024}\ns_add_u32 m0, s9, {L_SP + (n - nslots) * 1024}')
            a(f'buffer_load_dwordx4 v1, {srd(SK)}, s8 offen offset:{(n & 3) * 1024} nt lds')
        else: a(f'buffer_load_dwordx4 v[{slot(k)}:{slot(k)+3}], {"v1" if (n < 64 and not klin) else "v2"}, {srd(SK if n < 64 else SV)}, s8 offen offset:{(n & 3) * 1024} nt')
        if n & 3 == 3 and n != 63 and n != 127:
            jump = ((n + 1) * 4096) % (1 << pcs) == 0
            a(f's_add_u32 s8, s8, {0x4000 + (31 << pcs if jump else 0)}')
        st['I'] = n + 1
    def more(k):
        while k > 0 and st['I'] < st['tgt'] and can_issue():
            issue(); k -= 1
    def can_issue():
        n = st['I']
        return n < 128 and any(n < 64 or x >= 8 for x in st['free'])
    if dbg_extra:
        a('s_add_u32 s9, s7, 0x20000')
        for n in range(dbg_extra):
            if n >= D: a(f's_waitcnt vmcnt({D-1})')
            a(f'buffer_load_dwordx4 v[{slot(n % D)}:{slot(n % D)+3}], v2, {srd(SV)}, s9 offen offset:{(n & 3) * 1024} nt')
            if n & 3 == 3: a('s_add_u32 s9, s9, 0x4000')
        a('s_waitcnt vmcnt(0)')
    for n in range(nslots + spill):
        if n == (D0 or D):
            if hfirst:
                a('s_branch L_S0'); srest0 = len(a.L); a('L_S0:')
            srds(PTRS[1:])
            if boost: a('s_and_b32 s9, s5, 7\ns_cmp_eq_u32 s9, 3\ns_cselect_b64 vcc, -1, 0')
        issue()
    a('s_waitcnt lgkmcnt(0)')
    stamp('S', 'pref', SST)
    a('s_barrier')
    a('s_branch L_S')
    if hfirst:
        srest = a.L[srest0:]; del a.L[srest0:]

    a('; ================================================================== H start')
    a('L_H:')
    srds(PTRS[1:])
    if stamps: a(f'v_mov_b32 v{HST}, 0')
    a('s_and_b32 s17, s5, 7\ns_lshr_b32 s18, s5, 3')
    a('s_cmp_lg_u32 s3, 0\ns_cbranch_scc1 L_Hwarm')
    if dbg_noq: a('s_branch L_Hwarm')
    if hprio: a(f's_setprio {hprio}')
    a('v_lshlrev_b32 v2, 4, v0')
    a('v_lshrrev_b32 v1, 3, v0\nv_lshlrev_b32 v1, 13, v1\nv_and_b32 v3, 7, v0\nv_lshl_add_u32 v1, v3, 4, v1')
    if dbg_cbrot: a(f's_add_u32 s17, s17, {dbg_cbrot}\ns_and_b32 s17, s17, 7')
    saddr('s8', (('s18', 20), ('s4', 10), ('s17', 7)))
    a(f's_mov_b32 m0, {L_WQ}')
    a('s_getreg_b32 s38, hwreg(HW_REG_XCC_ID)\ns_and_b32 s38, s38, 15')
    a('s_waitcnt lgkmcnt(0)')
    if stamps: a(f'v_writelane_b32 v{HST}, s94, 0'); nst['H'] = ['start']
    a(f's_load_dword s33, s[{SWS}:{SWS+1}], {EPOCH}')
    a(f'buffer_load_dwordx4 v[4:7], v2, {srd(SX)}, 0 offen')
    for m in range(16):
        a(f'buffer_load_dwordx4 v1, {srd(SWQ)}, s8 offen nt lds')
        if m < 15: a(f's_add_u32 m0, m0, 1024\ns_add_u32 s8, s8, 0x10000')
        if wqpace and m < 15: a(f's_sleep {wqpace}')
    a.cand()
    a('s_mov_b32 s12, 0xffff0000')
    a('s_waitcnt vmcnt(16)')
    for d in range(4): a(f'v_lshlrev_b32 v{8+2*d}, 16, v{4+d}\nv_and_b32 v{9+2*d}, s12, v{4+d}')
    a('v_add_f32 v16, v8, v9\nv_add_f32 v17, v10, v11\nv_add_f32 v18, v12, v13\nv_add_f32 v19, v14, v15\nv_add_f32 v16, v16, v17\nv_add_f32 v18, v18, v19\nv_add_f32 v16, v16, v18')
    allreduce(16, 17)
    a('v_mul_f32 v16, 0x3b000000, v16')
    a('v_sub_f32 v17, v8, v16\nv_mul_f32 v18, v17, v17')
    for e in range(1, 8): a(f'v_sub_f32 v17, v{8+e}, v16\nv_fmac_f32 v18, v17, v17')
    allreduce(18, 17)
    a('v_mul_f32 v18, 0x3b000000, v18'); rbf(18)
    a('v_add_f32 v18, 0x3727c5ac, v18'); rbf(18)
    a('v_sqrt_f32 v18, v18'); rbf(18)
    a('v_rcp_f32 v18, v18'); rbf(16)
    for e in range(8): a(f'v_sub_f32 v{8+e}, v{8+e}, v16')
    for d in range(4): a(f'v_cvt_pk_bf16_f32 v{4+d}, v{8+2*d}, v{9+2*d}')
    for d in range(4): a(f'v_lshlrev_b32 v{8+2*d}, 16, v{4+d}\nv_and_b32 v{9+2*d}, s12, v{4+d}')
    for e in range(8): a(f'v_mul_f32 v{8+e}, v{8+e}, v18')
    for d in range(4): a(f'v_cvt_pk_bf16_f32 v{4+d}, v{8+2*d}, v{9+2*d}')
    a(f'ds_write_b128 v2, v[4:7] offset:{L_XN}')
    a.cand()
    a('v_lshrrev_b32 v3, 4, v0\nv_lshlrev_b32 v16, 4, v3\ns_lshl_b32 s9, s18, 8\nv_add_u32 v16, s9, v16')
    a('v_lshlrev_b32 v17, 10, v3\nv_bfe_u32 v18, v0, 2, 2\nv_lshl_add_u32 v17, v18, 7, v17\nv_and_b32 v18, 3, v0\nv_lshl_add_u32 v17, v18, 3, v17')
    a('s_waitcnt lgkmcnt(0)')
    for s_ in range(4): a(f'ds_read_b128 v[{64+4*s_}:{67+4*s_}], v16 offset:{L_XN + s_*64}')
    tags()
    lanetag(19, 18)
    a(f'v_cmp_eq_u32 vcc, 3, v18\nv_mov_b32 v21, s38\nv_mov_b32 v20, {TAGM}\nv_cndmask_b32 v21, 0, v21, vcc\nv_xor_b32 v19, v19, v21\ns_xor_b32 s13, s37, s38')
    a('s_waitcnt vmcnt(0) lgkmcnt(0)')
    stamp('H', 'wq', HST)
    a.cand()
    order = [(s_, cg) for s_ in range(4) for cg in range(4)]
    def qmfma(q):
        s_, cg = order[q]
        a(f'v_mfma_f32_16x16x32_bf16 v[{24+4*cg}:{27+4*cg}], v[{64+4*s_}:{67+4*s_}], v[{128+4*q}:{131+4*q}], {"0" if s_ == 0 else f"v[{24+4*cg}:{27+4*cg}]"}')
    for q, (s_, cg) in enumerate(order):
        for eh in range(2): a(f'ds_read_b64_tr_b16 v[{128+4*q+2*eh}:{129+4*q+2*eh}], v17 offset:{L_WQ + s_*4096 + eh*512 + cg*32}')
        if q >= 4:
            a(f's_waitcnt lgkmcnt(8)'); qmfma(q - 4)
    for q in range(12, 16):
        a(f's_waitcnt lgkmcnt({2*(15-q)})'); qmfma(q)
    a('v_lshlrev_b32 v3, 2, v0')
    saddr('s9', (('s4', 13), ('s18', 11), ('s17', 8)), QP)
    saddr('s16', (('s4', 13),), QP); a('s_add_u32 s15, s16, 4096')
    for cg in range(1, 4): a(f'v_mov_b32_dpp v24, v{24+4*cg} quad_perm:[0,1,2,3] row_mask:{1 << cg} bank_mask:0xf')
    a(f'v_add_u32 v24, {(TAGM + 1) // 2}, v24\nv_bfi_b32 v24, v20, v19, v24')
    if qlocal: a('; first without device scope (enough if the group shares a die); repeated with device scope after a few failed sweeps or on seeing another die')
    a(f'buffer_store_dword v24, v3, {srd(SWS)}, s9 offen {"" if qlocal else "sc1"}')
    a('s_mov_b32 s14, 0')
    stamp('H', 'qpub', HST)
    a.cand()
    def tagcheck(base, n, tmp, waits=True):
        for k in range(n):
            if waits: a(f's_waitcnt vmcnt({n-1-k})')
            r = base + 4*k
            for e in range(4): a(f'v_xor_b32 v{r+e}, s{34+e}, v{r+e}')
            if k == 0: a(f'v_or_b32 v{tmp}, v{r}, v{r+1}\nv_or_b32 v{tmp+1}, v{r+2}, v{r+3}')
            else: a(f'v_or3_b32 v{tmp}, v{tmp}, v{r}, v{r+1}\nv_or3_b32 v{tmp+1}, v{tmp+1}, v{r+2}, v{r+3}')
        a(f'v_bitop3_b32 v{tmp}, v{tmp}, v{tmp+1}, v{VM} bitop3:0xa8\nv_cmp_ne_u32 vcc, 0, v{tmp}')
    VM = 20
    a('L_qpoll:')
    if qlocal:
        a(f's_cmp_lg_u32 s14, {qlocal}\ns_cbranch_scc1 L_qnr\ns_mov_b64 s[22:23], exec\ns_mov_b64 exec, -1\nbuffer_store_dword v24, v3, {srd(SWS)}, s9 offen sc1\ns_mov_b64 exec, s[22:23]\nL_qnr:')
    if qdelay: a(f's_sleep {min(127, 8 * qdelay)}      ; back-off: every failed sweep takes 8 KB out of this CU\'s K/V stream')
    for k in range(8):
        a(f'buffer_load_dwordx4 v[{64+4*k}:{67+4*k}], v2, {srd(SWS)}, {"s16" if k < 4 else "s15"} offen offset:{(k & 3) * 1024} sc1')
    a(f's_add_u32 s14, s14, 1\ns_cmp_gt_u32 s14, {SPIN}\ns_cbranch_scc1 L_qdone')
    for k in range(8):
        r = 64 + 4*k
        a(f's_waitcnt vmcnt({7-k})\nv_xor_b32 v{r}, s34, v{r}\nv_xor_b32 v{r+1}, s35, v{r+1}\nv_xor_b32 v{r+2}, s36, v{r+2}\nv_xor_b32 v{r+3}, s13, v{r+3}')
        if k == 0: a(f'v_or3_b32 v8, v{r}, v{r+1}, v{r+2}\nv_mov_b32 v9, v{r+3}')
        else: a(f'v_or3_b32 v8, v8, v{r}, v{r+1}\nv_or_b32 v8, v8, v{r+2}\nv_or_b32 v9, v9, v{r+3}')
    a(f'v_and_b32 v10, {TAGM & ~15}, v9\nv_bitop3_b32 v8, v8, v10, v20 bitop3:0xa8\nv_cmp_ne_u32 vcc, 0, v8')
    a('s_and_b64 exec, exec, vcc\ns_cbranch_execnz L_qpoll')
    a('L_qdone:')
    a('s_mov_b64 exec, -1\ns_waitcnt vmcnt(0)')
    a(f'v_and_b32 v9, 15, v9\nv_cmp_ne_u32 vcc, 0, v9\ns_cmp_eq_u64 vcc, 0\ns_cselect_b32 s39, 1, 0\nv_mov_b32 v9, s39\nv_mov_b32 v10, 0\nds_write_b32 v10, v9 offset:{L_FAST}')
    if qlocal:
        a(f's_cmp_lg_u32 s39, 0\ns_cbranch_scc1 L_qsame\nbuffer_store_dword v24, v3, {srd(SWS)}, s9 offen sc1\nL_qsame:')
    for k in range(8): a(f'v_and_b32 v{67+4*k}, -16, v{67+4*k}')
    a('v_lshlrev_b32 v3, 3, v0')
    for e in range(8): a(f'v_add_f32 v{64+e}, v{64+e}, v{72+e}')
    for e in range(8): a(f'v_add_f32 v{80+e}, v{80+e}, v{88+e}')
    for e in range(8): a(f'v_add_f32 v{64+e}, v{64+e}, v{80+e}')
    for d in range(4): a(f'v_cvt_pk_bf16_f32 v{4+d}, v{64+2*d}, v{65+2*d}')
    a(f'ds_write2st64_b64 v3, v[4:5], v[6:7] offset0:{L_Q//512} offset1:{L_Q//512+1}')
    a('s_waitcnt lgkmcnt(0)')
    stamp('H', 'qgot', HST)
    if hprio: a('s_setprio 0')
    a('s_branch L_Hb1')
    if hfirst: a.L += srest
    a('L_Hwarm:')
    a('s_waitcnt lgkmcnt(0)')
    if stamps: a(f'v_writelane_b32 v{HST}, s94, 0')
    a(f's_load_dword s33, s[{SWS}:{SWS+1}], {EPOCH}')
    if warm:
        a('s_mov_b64 exec, 0')
        a('s_cmp_eq_u32 s3, 1\ns_cbranch_scc1 @W0\ns_cmp_eq_u32 s3, 2\ns_cbranch_scc1 @W1\ns_branch @W2')
        a('L_warm_end:')
        a('s_mov_b64 exec, -1')
        if stamps is True: a(f's_memrealtime s[90:91]\ns_waitcnt lgkmcnt(0)\nv_writelane_b32 v{HST}, s90, 1')
    a('s_waitcnt lgkmcnt(0)')
    tags()
    a('L_Hb1:')
    a('s_barrier      ; B1')
    a('s_branch L_Hmid')

    smain0 = len(a.L)
    a('; ================================================================== S main')
    a('L_S:')
    a.cand()
    Q, P, ACC = 20, 24, 56
    QM = (20, 16, 88, 92)
    if klin:
        a('v_and_b32 v1, 3, v0\nv_lshlrev_b32 v1, 8, v1\nv_bfe_u32 v4, v0, 2, 2\nv_lshl_add_u32 v1, v4, 6, v1')
        for m in range(4): a(f'ds_read_b128 v[{QM[m]}:{QM[m]+3}], v1 offset:{L_Q + 16*m}')
        a('s_mov_b32 s20, 0x55555555\ns_mov_b32 s21, s20\ns_not_b64 s[22:23], s[20:21]\ns_mov_b32 s24, 0x33333333\ns_mov_b32 s25, s24\ns_not_b64 s[26:27], s[24:25]')
    else:
        a(f'ds_read_b128 v[{Q}:{Q+3}], v1 offset:{L_Q}')
    a(f'v_mov_b32 v12, 0\nds_read_b32 v12, v12 offset:{L_FAST}')
    a('s_mov_b32 s12, 0xffff0000\ns_mov_b32 s13, 0x3db504f3\nv_mov_b32 v3, 0xff800000')
    a(f'v_lshrrev_b32 v14, 4, v0')
    a('s_waitcnt lgkmcnt(0)\nv_readfirstlane_b32 s39, v12')
    stamp('S', 'q', SST)
    lead = nslots + spill
    if spill: a(f's_mul_i32 s9, s6, {spill * 1024}\ns_add_u32 s9, s9, {L_SP}\nv_add_u32 v11, s9, v2')
    for u in range(16):
        a.cand()
        T = [ACC + 4*e for e in range(4)]
        a(f's_waitcnt vmcnt({st["I"] - (4*u+4)})')
        if nslots <= 4*u < nslots + spill:
            for e in range(4):
                k = st['free'].pop(0); st['where'][4*u+e] = k
                a(f'ds_read_b128 v[{slot(k)}:{slot(k)+3}], v11 offset:{(4*u + e - nslots) * 1024}')
            a('s_waitcnt lgkmcnt(0)')
        ks = [slot(st['where'][4*u+e]) for e in range(4)]
        def refill():
            nonlocal lead
            for e in range(4): st['free'].append(st['where'][4*u+e])
            C = 4*u + 4
            lead = max(lead_ss, lead - kshrink)
            if vshrink is None:
                tgt = C + lead if u < 15 else C + lead_sm
                while st['I'] < tgt and can_issue(): issue(pace=(u < 15))
            else:
                st['tgt'] = C + lead
                if spread: more(1)
                else: more(9)
                if u == 15 and not spread:
                    for k in range(smx):
                        if can_issue(): issue(pace=False)
                    lead = st['I'] - C
        if klin:
            Z = [ACC + 4*e for e in range(4)]; Yk = [ACC + 16 + 4*e for e in range(4)]; DA, DB = 240, 244
            def sel(dst, own, other, perm):
                for d in range(4): a(f'v_cndmask_b32_dpp v{dst+d}, v{other+d}, v{own+d}, vcc quad_perm:{perm} {FULL}')
            def km(m):
                a(f'v_mfma_f32_4x4x4_16b_bf16 v[{DA}:{DA+3}], v[{Yk[m]}:{Yk[m]+1}], v[{QM[m]}:{QM[m]+1}], {"0" if m == 0 else f"v[{DA}:{DA+3}]"}')
                a(f'v_mfma_f32_4x4x4_16b_bf16 v[{DB}:{DB+3}], v[{Yk[m]+2}:{Yk[m]+3}], v[{QM[m]+2}:{QM[m]+3}], {"0" if m == 0 else f"v[{DB}:{DB+3}]"}')
            a('s_mov_b64 vcc, s[20:21]'); sel(Z[0], ks[0], ks[1], '[1,0,3,2]'); sel(Z[2], ks[2], ks[3], '[1,0,3,2]')
            a('s_mov_b64 vcc, s[22:23]'); sel(Z[1], ks[1], ks[0], '[1,0,3,2]'); sel(Z[3], ks[3], ks[2], '[1,0,3,2]')
            refill()
            a('s_mov_b64 vcc, s[24:25]'); sel(Yk[0], Z[0], Z[2], '[2,3,0,1]'); sel(Yk[1], Z[1], Z[3], '[2,3,0,1]')
            a('s_mov_b64 vcc, s[26:27]'); km(0); sel(Yk[2], Z[2], Z[0], '[2,3,0,1]'); km(1); sel(Yk[3], Z[3], Z[1], '[2,3,0,1]'); km(2); a('s_nop 0'); km(3)
            for e in range(4): a(f'v_add_f32 v{T[e]}, v{DA+e}, v{DB+e}')
        else:
            for e in range(4): a(f'v_mfma_f32_4x4x4_16b_bf16 v[{T[e]}:{T[e]+3}], v[{ks[e]}:{ks[e]+1}], v[{Q}:{Q+1}], 0')
            for e in range(4): a(f'v_mfma_f32_4x4x4_16b_bf16 v[{T[e]}:{T[e]+3}], v[{ks[e]+2}:{ks[e]+3}], v[{Q+2}:{Q+3}], v[{T[e]}:{T[e]+3}]')
            refill()
            for e in range(4): a(f'v_permlane32_swap_b32 v{T[e]}, v{T[e]+2}\nv_permlane32_swap_b32 v{T[e]+1}, v{T[e]+3}')
            for e in range(4): a(f'v_add_f32 v{T[e]}, v{T[e]}, v{T[e]+2}\nv_add_f32 v{T[e]+1}, v{T[e]+1}, v{T[e]+3}')
            if spread: more(1)
            for e in range(4): a(f'v_permlane16_swap_b32 v{T[e]}, v{T[e]+1}')
            for e in range(4): a(f'v_add_f32 v{T[e]}, v{T[e]}, v{T[e]+1}')
        a.cand()
        for e in range(4): a(f'v_add_f32_dpp v{T[e]+1}, v{T[e]}, v{T[e]} row_ror:4 {FULL}')
        for e in range(4): a(f'v_add_f32_dpp v{T[e]}, v{T[e]+1}, v{T[e]+1} row_ror:8 {FULL}')
        if spread: more(1)
        a(f'v_cvt_pk_bf16_f32 v5, v{T[0]}, v{T[1]}\nv_cvt_pk_bf16_f32 v6, v{T[2]}, v{T[3]}')
        a('v_lshlrev_b32 v7, 16, v5\nv_and_b32 v8, s12, v5\nv_lshlrev_b32 v9, 16, v6\nv_and_b32 v10, s12, v6')
        a('v_mul_f32 v7, s13, v7\nv_mul_f32 v8, s13, v8\nv_mul_f32 v9, s13, v9\nv_mul_f32 v10, s13, v10')
        a(f'v_cvt_pk_bf16_f32 v{P+2*u}, v7, v8\nv_cvt_pk_bf16_f32 v{P+2*u+1}, v9, v10')
        a('v_max3_f32 v3, v3, v7, v8\nv_max3_f32 v3, v3, v9, v10')
        if spread:
            more(9)
            if u == 15:
                for k in range(smx):
                    if can_issue(): issue(pace=False)
    stamp('S', 'kdone', SST)
    a.cand()
    crossg(3, 5, 'max')
    a(f'v_and_b32 v5, 3, v0\nv_lshlrev_b32 v5, 4, v5\ns_lshl_b32 s9, s6, 2\nv_add_u32 v6, s9, v5')
    a(f's_mov_b64 exec, 15\nds_write_b32 v6, v3 offset:{L_MX}\ns_mov_b64 exec, -1\ns_waitcnt lgkmcnt(0)')
    a('s_barrier')
    a(f'ds_read_b128 v[8:11], v5 offset:{L_MX}')
    a(f's_mov_b32 s14, {LOG2E}\nv_mov_b32 v4, 0')
    a('s_waitcnt lgkmcnt(0)')
    a('v_max3_f32 v3, v8, v9, v10\nv_max_f32 v3, v3, v11'); rbf(3)
    a('v_mul_f32 v3, s14, v3')
    for r in range(0, 32, 2):
        a.cand()
        if smi and (r // 2 * smi) // 16 != ((r // 2 + 1) * smi) // 16 and can_issue(): issue()
        a(f'v_lshlrev_b32 v7, 16, v{P+r}\nv_and_b32 v8, s12, v{P+r}\nv_lshlrev_b32 v9, 16, v{P+r+1}\nv_and_b32 v10, s12, v{P+r+1}')
        for t in range(7, 11): a(f'v_fma_f32 v{t}, v{t}, s14, -v3')
        for t in range(7, 11): a(f'v_exp_f32 v{t}, v{t}')
        a(f'v_cvt_pk_bf16_f32 v{P+r}, v7, v8\nv_add_f32 v7, v7, v8\nv_cvt_pk_bf16_f32 v{P+r+1}, v9, v10\nv_add_f32 v9, v9, v10\nv_add_f32 v4, v4, v7\nv_add_f32 v4, v4, v9')
        if r >= 2:
            for q in (3, 2, 1, 0):
                for k in (r - 2, r - 1): a(f'v_mov_b32_dpp v{P+k}, v{P+k} row_newbcast:{q} row_mask:0xf bank_mask:{1 << q}')
                if q: a(f'v_mov_b32 v11, v11')
    for q in (3, 2, 1, 0):
        for k in (30, 31): a(f'v_mov_b32_dpp v{P+k}, v{P+k} row_newbcast:{q} row_mask:0xf bank_mask:{1 << q}')
    crossg(4, 7, 'add')
    a(f's_mov_b64 exec, 15\nds_write_b32 v6, v4 offset:{L_LS}\ns_mov_b64 exec, -1\ns_waitcnt lgkmcnt(0)')
    a('s_barrier')
    stamp('S', 'smdone', SST)
    a(f's_lshl_b32 s9, s6, 4\nv_mov_b32 v13, s9\nds_read_b128 v[8:11], v13 offset:{L_LS}')
    a(f's_lshl_b32 s9, s6, 11\ns_add_u32 s9, s9, {L_EP}\nv_lshl_add_u32 v15, v0, 2, s9')
    a(f'v_and_b32 v17, 3, v0\nv_lshlrev_b32 v16, 9, v17\nv_and_b32 v17, 60, v0\nv_add_u32 v16, v16, v17\ns_lshl_b32 s9, s6, 6\ns_add_u32 s9, s9, {L_EP}\nv_add_u32 v16, s9, v16')
    a(f'v_lshlrev_b32 v17, 2, v0')
    saddr('s15', (('s4', 15), ('s5', 8), ('s6', 13)), M1)
    a('s_mov_b32 s16, 0x05040100\ns_mov_b32 s17, 0x07060302')
    a('s_waitcnt lgkmcnt(0)')
    a('v_add_f32 v8, v8, v9\nv_add_f32 v10, v10, v11\nv_add_f32 v8, v8, v10\nv_rcp_f32 v18, v8')
    AT = RING
    b4_done = False
    if vshrink is not None: lead = st['I'] - 64
    for G in range(8):
        a.cand()
        for p in range(4):
            n = 64 + 8*G + 2*p
            k0, k1 = slot(st['where'][n]), slot(st['where'][n+1])
            a(f's_waitcnt vmcnt({st["I"] - (n+2)})')
            lastp = epi and G == 7 and p == 3
            if lastp: stamp('S', 'lastdata', SST)
            pm = [f'v_perm_b32 v{AT+8*d+p}, v{k1+d}, v{k0+d}, s16\nv_perm_b32 v{AT+8*d+4+p}, v{k1+d}, v{k0+d}, s17' for d in range(4)]
            for d in range(2 if lastp else 4): a(pm[d])
            a.cand()
            st['free'] += [st['where'][n], st['where'][n+1]]
            C = n + 2
            ld_ = lead_end if (lead_end and C >= 128 - n_end) else lead_ss
            if vshrink is not None:
                lead = max(lead_ss, lead - vshrink); ld_ = lead
            while st['I'] < C + ld_ and can_issue(): issue(pace=(ld_ > D + 1))
            if st['I'] == 128 and not b4_done and C >= b4lead:
                a('s_barrier'); b4_done = True
                stamp('S', 'lastiss', SST)
        if G == 7 and not epi: stamp('S', 'lastdata', SST)
        for dd in range(8):
            a(f'v_mfma_f32_16x16x32_bf16 v[{ACC+4*dd}:{ACC+4*dd+3}], v[{P+4*G}:{P+4*G+3}], v[{AT+4*dd}:{AT+4*dd+3}], {"0" if G == 0 else f"v[{ACC+4*dd}:{ACC+4*dd+3}]"}')
            if epi and G == 7 and dd < 2: a(pm[2 + dd])
            if epi and G == 7 and dd == 6: a(f'ds_write2st64_b32 v15, v{ACC}, v{ACC+4} offset0:0 offset1:1')
    for dd in range(2 if epi else 0, 8, 2): a(f'ds_write2st64_b32 v15, v{ACC+4*dd}, v{ACC+4*dd+4} offset0:{dd} offset1:{dd+1}')
    a('s_waitcnt lgkmcnt(0)')
    a('s_barrier      ; B5: partial outputs of the four waves')
    for w in range(4): a(f'ds_read2st64_b32 v[{4+2*w}:{5+2*w}], v16 offset0:{8*w} offset1:{8*w+1}')
    a('s_waitcnt lgkmcnt(2)\nv_add_f32 v4, v4, v6\nv_add_f32 v5, v5, v7\ns_waitcnt lgkmcnt(0)\nv_add_f32 v8, v8, v10\nv_add_f32 v9, v9, v11')
    a('v_add_f32 v4, v4, v8\nv_add_f32 v5, v5, v9\nv_mul_f32 v4, v4, v18\nv_mul_f32 v5, v5, v18\nv_cvt_pk_bf16_f32 v4, v4, v5\nv_min_u32 v4, -2, v4')
    dual_store(f'buffer_store_dword v4, v17, {srd(SWS)}, s15 offen', 'm1')
    stamp('S', 'pub', SST)
    stamp_store(SST)
    a('s_endpgm')

    if dbg_nocomp:
        keepmn = ('v_writelane', 'v_lshlrev_b32 v17, 2', 'v_mov_b32 v12, 0', 'v_readfirstlane', 'v_lshlrev_b32 v%d' % (SST + 1))
        pat = {1: ('v_',), 2: ('v_mfma',), 3: ('v_perm_b32', 'v_permlane', 'v_add', 'v_cvt', 'v_mul', 'v_fma', 'v_exp', 'v_max', 'v_and', 'v_mov_b32_dpp')}[dbg_nocomp]
        a.L[smain0:] = [l for l in a.L[smain0:] if not (l.startswith(pat) and not l.startswith(keepmn))]
    a('; ================================================================== H mid')
    a('L_Hmid:')
    if dbg_cbrot: a('s_and_b32 s17, s5, 7')
    a.cand()
    W8, WOB, GUB, WDB, A1, DW, Y = 28, 44, 60, 76, 100, 132, 164
    VM = 17
    a('v_lshrrev_b32 v3, 4, v0\nv_and_b32 v4, 15, v0\nv_lshlrev_b32 v5, 4, v3\nv_and_b32 v6, 7, v0')
    a('s_mov_b32 s12, 0xffff0000\ns_lshl_b32 s29, s4, 2\ns_add_u32 s29, s29, s18')
    a(f'v_lshlrev_b32 v7, 1, v0\ns_lshl_b32 s9, s17, 7\nbuffer_load_ushort v40, v7, {srd(SX)}, s9 offen')
    a('v_lshlrev_b32 v25, 2, v0\nv_lshlrev_b32 v19, 4, v0')
    a('v_lshlrev_b32 v20, 8, v4\nv_add_u32 v20, v20, v5\nv_add_u32 v7, 0x1000, v20')
    saddr('s20', (('s29', 13), ('s6', 6)), M1)
    saddr('s21', (('s17', 13), ('s29', 8)), M2)
    saddr('s22', (('s17', 13), ('s6', 11)), M2)
    a(f'v_lshlrev_b32 v23, 4, v4\nv_lshl_add_u32 v23, v3, 2, v23\ns_lshl_b32 s9, s6, 8\nv_add_u32 v23, s9, v23\nv_and_b32 v12, 3, v0')
    AH = 92
    for d in range(8): a(f'v_mov_b32 v{AH+d}, 0x3f803f80')
    lanetag(16, 12)
    a(f'v_mov_b32 v{VM}, {TAGM}')
    a(f's_lshl_b32 s9, s6, 8\ns_add_u32 s9, s9, {L_YW}\nv_add_u32 v26, s9, v25')
    a(f'v_lshlrev_b32 v27, 4, v4\nv_lshl_add_u32 v27, v3, 11, v27')
    saddr('s23', (('s29', 14), ('s17', 8), ('s6', 12)), MF)
    saddr('s24', (('s29', 14), ('s6', 12)), MF)
    saddr('s25', (('s29', 11), ('s17', 8), ('s6', 7)), M3)
    a(f'v_mov_b32 v42, 0\nds_read_b32 v42, v42 offset:{L_FAST}')
    a('s_lshl_b32 s9, s17, 1\ns_sub_u32 s28, s4, s9\ns_add_u32 s28, s28, 14\ns_mul_i32 s9, s28, 37\ns_lshr_b32 s9, s9, 8\ns_mul_i32 s9, s9, 7\ns_sub_u32 s28, s28, s9\ns_lshl_b32 s28, s28, 2\ns_add_u32 s28, s28, s18')
    a(f's_lshl_b32 s15, s17, 3\ns_add_u32 s15, s15, s28')
    a(f'v_and_b32 v12, 1, v0\nv_lshrrev_b32 v36, 1, v0\nv_lshlrev_b32 v36, 11, v36\nv_lshl_add_u32 v36, v12, 4, v36')
    saddr('s84', (('s15', 5),), M3)
    a(f'v_lshl_add_u32 v37, v12, 2, v3\ns_lshl_b32 s9, s28, 5\nv_lshl_add_u32 v38, v37, 2, s9\nv_lshlrev_b32 v37, 1, v37\ns_lshl_b32 s15, s15, 4')
    a.cand()
    a('s_waitcnt vmcnt(0) lgkmcnt(0)\nv_lshlrev_b32 v40, 16, v40\nv_readfirstlane_b32 s39, v42')
    def wo_issue():
        if dbg_now: return
        saddr('s9', (('s29', 17), ('s6', 15), ('s17', 7)))
        a(f's_lshl_b32 s10, s6, 12\ns_add_u32 m0, s10, {L_WQ}')
        for m in range(4):
            a(f'buffer_load_dwordx4 v18, {srd(SWO)}, s9 offen nt lds')
            if m < 3: a('s_add_u32 m0, m0, 1024\ns_add_u32 s9, s9, 0x2000')
    a('; For the group without an F role (h = 7) these offsets lie past the end of the weight buffers: the loads return zeros.')
    def gu_addr():
        a(f'v_lshrrev_b32 v14, 3, v0\nv_mul_u32_u24 v14, 0xe00, v14\nv_lshl_add_u32 v14, v6, 4, v14')
        a(f's_mul_i32 s30, s17, {64*3584}\ns_mul_i32 s10, s6, {16*3584}\ns_add_u32 s30, s30, s10\ns_lshl_b32 s10, s29, 7\ns_add_u32 s30, s30, s10')
        a(f's_cmp_eq_u32 s4, 7\ns_cselect_b32 s30, 0x1000000, s30\ns_add_u32 s31, s30, {8*3584 - 1024}')
        saddr('s32', (('s29', 16), ('s6', 14), ('s17', 7)))
        a(f's_add_u32 s19, s32, {0x2000 - 1024}\ns_lshl_b32 s13, s6, 11\ns_add_u32 s85, s13, {L_G}\ns_add_u32 s87, s13, {L_U}\ns_add_u32 s33, s13, {L_D}')
        if wd == 'p2':
            saddr('s32', (('s29', 16), ('s17', 7), ('s6', 6)))
            a(f's_cmp_gt_u32 s6, 1\ns_cselect_b32 s32, 0x1000000, s32\ns_lshl_b32 s33, s6, 12\ns_add_u32 s33, s33, {L_D}')
            a('v_lshrrev_b32 v41, 2, v0\nv_lshlrev_b32 v41, 10, v41\nv_and_b32 v12, 3, v0\nv_lshl_add_u32 v41, v12, 4, v41')
        a('v_lshrrev_b32 v18, 3, v0\nv_lshlrev_b32 v18, 10, v18\nv_lshl_add_u32 v18, v6, 4, v18')
        a(f'v_lshrrev_b32 v1, 5, v0\nv_lshl_add_u32 v1, v1, 3, v6\ns_lshl_b32 s9, s6, 4\nv_add_u32 v1, s9, v1\nv_lshlrev_b32 v1, 1, v1')
    def gu_issue(when):
        if dbg_now: return 0
        n = 0
        for w_, base, sr in ((wg, 's85', SG), (wu, 's87', SU)):
            if w_ != when: continue
            a(f's_mov_b32 m0, {base}')
            a(f'buffer_load_dwordx4 v14, {srd(sr)}, s30 offen nt lds')
            a(f'buffer_load_dwordx4 v14, {srd(sr)}, s31 offen offset:1024 nt lds')
            n += 2
        return n
    def dn_issue(when):
        if dbg_now or wd != when: return 0
        if wd == 'p2':
            a(f's_mov_b32 m0, s33')
            for m in range(4):
                a(f'buffer_load_dwordx4 v41, {srd(SD)}, s32 offen offset:{1024*m} nt lds')
                if m < 3: a(f's_add_u32 s32, s32, {0x4000 - 1024}')
            return 4
        a(f's_mov_b32 m0, s33')
        a(f'buffer_load_dwordx4 v18, {srd(SD)}, s32 offen nt lds')
        a(f'buffer_load_dwordx4 v18, {srd(SD)}, s19 offen offset:1024 nt lds')
        return 2
    adapt = 'adapt' in (wg, wu, wd)
    gu_late = 'hop1' in (wg, wu) or 'adapt' in (wg, wu)
    def wo_read():
        for cg in range(4):
            for eh in range(2): a(f'ds_read_b64_tr_b16 v[{WOB+4*cg+2*eh}:{WOB+4*cg+2*eh+1}], v22 offset:{L_WQ + eh*512 + cg*32}')
    def gu_read():
        for s_ in range(2):
            for sb in range(2):
                for eh in range(2): a(f'ds_read_b64_tr_b16 v[{GUB+8*sb+4*s_+2*eh}:{GUB+8*sb+4*s_+2*eh+1}], v15 offset:{L_G + s_*1024 + eh*512 + sb*16}')
    def dn_read():
        for cgl in range(2):
            for s_ in range(2):
                for eh in range(2):
                    off = L_D + (s_*2048 + eh*256 if wd == 'p2' else s_*4096 + eh*512) + cgl*32
                    a(f'ds_read_b64_tr_b16 v[{WDB+8*cgl+4*s_+2*eh}:{WDB+8*cgl+4*s_+2*eh+1}], v39 offset:{off}')
    gu_addr()
    a('v_lshlrev_b32 v15, 10, v3\nv_bfe_u32 v13, v0, 2, 2\nv_lshl_add_u32 v15, v13, 7, v15\nv_and_b32 v12, 3, v0\nv_lshl_add_u32 v22, v12, 3, v15\ns_lshl_b32 s9, s6, 6\nv_add_u32 v39, s9, v22\ns_lshl_b32 s9, s6, 12\nv_add_u32 v22, s9, v22')
    a(f'v_and_b32 v12, 1, v0\nv_lshl_add_u32 v15, v12, 3, v15\nv_bfe_u32 v12, v0, 1, 1\nv_mul_u32_u24 v12, {L_U - L_G}, v12\nv_add_u32 v15, v15, v12\nv_lshl_add_u32 v15, v3, 10, v15\ns_lshl_b32 s9, s6, 5\nv_add_u32 v15, s9, v15')
    if wd == 'p2': a('v_lshlrev_b32 v39, 9, v3\nv_lshl_add_u32 v39, v13, 6, v39\nv_and_b32 v12, 3, v0\nv_lshl_add_u32 v39, v12, 3, v39\ns_lshl_b32 s9, s6, 12\nv_add_u32 v39, s9, v39')
    def m1_clear():
        a('; empty the own M1 and MF slots; the log-sum-exp words are published only after these stores are acknowledged')
        a('v_mov_b32 v8, -1\nv_mov_b32 v9, -1\nv_mov_b32 v10, -1\nv_mov_b32 v11, -1\nv_lshlrev_b32 v12, 13, v3\nv_lshl_add_u32 v12, v4, 4, v12')
        saddr('s9', (('s4', 15), ('s5', 8)), M1)
        if not dbg_noclr: dual_store(f'buffer_store_dwordx4 v[8:11], v12, {srd(SWS)}, s9 offen', 'clr')
        if mfs:
            a('s_cmp_eq_u32 s4, 7\ns_cbranch_scc1 L_clrf\ns_add_u32 s9, s23, 8192')
            dual_store(f'buffer_store_dwordx4 v[8:11], v27, {srd(SWS)}, s23 offen', 'clr2')
            dual_store(f'buffer_store_dwordx4 v[8:11], v27, {srd(SWS)}, s9 offen', 'clr3')
            a('L_clrf:')
        a('s_waitcnt vmcnt(0)')
    if clrpos == 1:
        a('s_cmp_lg_u32 s3, 0\ns_cbranch_scc1 L_clre'); m1_clear(); a('L_clre:')
    a('s_barrier      ; B2')
    a('s_barrier      ; B3')
    a.cand()
    if dbg_nomid: a('s_branch L_noearly')
    gu_issue('mid'); dn_issue('mid')
    a('s_cmp_lg_u32 s3, 0\ns_cbranch_scc1 L_nolam')
    if clrpos == 3: m1_clear()
    if touch:
        a('; read the own M2 / M3 slots once, so that the lines sit in the memory-side cache when they are written')
        a(f'buffer_load_dword v{Y+8}, v25, {srd(SWS)}, s25 offen sc1\nbuffer_load_dword v{Y+9}, v25, {srd(SWS)}, s21 offen sc1')
    a("; publish the log2-sum-exp of this workgroup's chunk, collect those of the head it will combine")
    a(f'v_and_b32 v12, 3, v0\nv_lshlrev_b32 v12, 4, v12\nds_read_b128 v[8:11], v12 offset:{L_MX}\nds_read_b128 v[{Y}:{Y+3}], v12 offset:{L_LS}\ns_mov_b32 s14, {LOG2E}')
    saddr('s11', (('s4', 10), ('s5', 5)), LAM)
    saddr('s27', (('s4', 10), ('s18', 3)), LAM)
    a('s_waitcnt lgkmcnt(0)')
    a('v_max3_f32 v8, v8, v9, v10\nv_max_f32 v8, v8, v11'); rbf(8)
    a(f'v_add_f32 v9, v{Y}, v{Y+1}\nv_add_f32 v10, v{Y+2}, v{Y+3}\nv_add_f32 v9, v9, v10\nv_log_f32 v9, v9\nv_mul_f32 v8, s14, v8\nv_add_f32 v8, v8, v9\nv_mov_b32 v9, s96')
    a(f'v_lshlrev_b32 v12, 3, v0\ns_mov_b64 exec, 15')
    dual_store(f'buffer_store_dwordx2 v[8:9], v12, {srd(SWS)}, s11 offen', 'lam')
    a('s_mov_b64 exec, -1\nv_and_b32 v12, 31, v0\nv_lshlrev_b32 v12, 5, v12\ns_mov_b32 s14, 0')
    a.cand()
    a('L_lpoll:')
    if lamdelay: a(f's_sleep {lamdelay}')
    a(f'buffer_load_dwordx2 v[10:11], v12, {srd(SWS)}, s27 offen sc1')
    a(f's_add_u32 s14, s14, 1\ns_cmp_gt_u32 s14, {SPIN}\ns_waitcnt vmcnt(0)\ns_cbranch_scc1 L_ldone')
    a('v_cmp_ne_u32 vcc, s96, v11\ns_cbranch_vccnz L_lpoll')
    a('L_ldone:')
    a('v_mov_b32 v8, v10'); allreduce(8, 9, 'max')
    a('v_sub_f32 v10, v10, v8\nv_exp_f32 v10, v10\ns_nop 0\nv_mov_b32 v8, v10'); allreduce(8, 9, 'add')
    a(f'v_rcp_f32 v8, v8\nv_add_f32 v10, v10, v10\nv_mul_f32 v10, v10, v8\ns_mov_b32 exec_hi, 0\nds_write_b32 v25, v10 offset:{L_W}\ns_mov_b64 exec, -1')
    a('L_nolam:')
    stamp('H', 'lam', HST)
    R = Y + 4
    m1_loads = [f'buffer_load_dwordx4 v[{A1+4*t}:{A1+4*t+3}], {("v20", "v7")[t]}, {srd(SWS)}, s20 offen sc1' for t in range(2)]
    m2_loads = [f'buffer_load_dwordx4 v[{Y+4*j}:{Y+4*j+3}], v19, {srd(SWS)}, s22 offen offset:{j*1024} sc1' for j in range(2)]
    mf_loads = [f'buffer_load_dwordx4 v[{A1+4*j}:{A1+4*j+3}], v19, {srd(SWS)}, s24 offen offset:{j*1024} sc1' for j in range(4)]
    m3_loads = [f'buffer_load_dwordx4 v[{R}:{R+3}], v36, {srd(SWS)}, s84 offen sc1']
    if edelay: a(f's_cmp_eq_u32 s3, 0\ns_cbranch_scc1 L_ned\ns_sleep {edelay}\nL_ned:')
    if '1' in early:
        for l in m1_loads: a(l)
    if 'h' in early:
        a('s_cmp_lg_u32 s3, 2\ns_cbranch_scc1 L_noearly4')
        saddr('s9', (('s29', 13), ('s17', 10)), M1)
        a(f'buffer_load_dwordx4 v[{A1}:{A1+3}], v19, {srd(SWS)}, s9 offen sc1')
        a('L_noearly4:')
    a('s_cmp_eq_u32 s4, 7\ns_cbranch_scc1 L_noearly')
    if '2' in early:
        for l in m2_loads: a(l)
    if 'f' in early:
        a('s_cmp_lg_u32 s17, 0\ns_cbranch_scc1 L_noearly2')
        for l in mf_loads: a(l)
        a('L_noearly2:')
    if 'g' in early:
        a('s_cmp_lg_u32 s3, 1\ns_cbranch_scc1 L_noearly3')
        saddr('s9', (('s29', 14), ('s17', 11)), MF)
        for j in range(2): a(f'buffer_load_dwordx4 v[{A1+4*j}:{A1+4*j+3}], v19, {srd(SWS)}, s9 offen offset:{j*1024} sc1')
        a('L_noearly3:')
    if '3' in early:
        a('s_cmp_gt_u32 s28, 7\ns_cbranch_scc1 L_noearly\ns_cmp_lg_u32 s3, 2\ns_cbranch_scc1 L_noearly')
        for l in m3_loads: a(l)
    a('L_noearly:')
    a('s_waitcnt vmcnt(0) lgkmcnt(0)')
    a.cand()
    a('s_barrier      ; B4')
    if wo == 'b4': wo_issue()
    nwf = gu_issue('b4') + dn_issue('b4')
    if adapt: a('s_mov_b32 s86, 0')
    a(f'ds_read_b128 v[{W8}:{W8+3}], v5 offset:{L_W}\nds_read_b128 v[{W8+4}:{W8+7}], v5 offset:{L_W + 64}')
    a('s_barrier      ; B5')
    stamp('H', 'b5', HST)
    if wo == 'b5':
        assert nwf == 0
        wo_issue()
    nwf += gu_issue('b5') + dn_issue('b5')
    if dbg_notail:
        stamp('H', 'out', HST); a('s_branch L_Hend')
    a.cand()
    names = ('p1', 'p2', 'p25', 'p3')
    def poll(name, loads, base, tmp=8, tagged=True, after_first=None):
        n = len(loads); nreg = 4 * n
        a('s_mov_b32 s14, 0')
        dl = pd[names.index(name)]
        if name == 'p25' and local and pdslow: a(f's_cmp_lg_u32 s39, 0\ns_cbranch_scc1 L_{name}_0\ns_sleep {pdslow}\nL_{name}_0:')
        elif dl: a(f's_sleep {dl}')
        if after_first:
            for l in loads: a(l)
            after_first()
            a(f's_branch L_{name}_c')
        a(f'L_{name}:')
        for l in loads: a(l)
        a(f's_add_u32 s14, s14, 1\ns_cmp_gt_u32 s14, {SPIN}\ns_cbranch_scc1 L_{name}_x')
        if tagged:
            prog = progw and not (name == 'p2' and (pretouch or wd == 'p2'))
            a(f'L_{name}_c:' if prog else f's_waitcnt vmcnt(0)\nL_{name}_c:')
            tagcheck(base, n, tmp, waits=prog)
        else:
            a(f'L_{name}_c:')
            for k in range(n):
                r = base + 4*k
                a(f's_waitcnt vmcnt({n-1-k})')
                if k == 0: a(f'v_max_u32 v{tmp}, v{r}, v{r+1}\nv_max_u32 v{tmp+1}, v{r+2}, v{r+3}')
                else: a(f'v_max3_u32 v{tmp}, v{tmp}, v{r}, v{r+1}\nv_max3_u32 v{tmp+1}, v{tmp+1}, v{r+2}, v{r+3}')
            a(f'v_max_u32 v{tmp}, v{tmp}, v{tmp+1}')
            a(f'v_cmp_eq_u32 vcc, -1, v{tmp}')
        if name == 'p1' and adapt:
            a(f's_and_b64 exec, exec, vcc\ns_cbranch_execnz L_p1_more')
            keep = a.L; a.L = []
            a(f'L_p1_more:\ns_cmp_lg_u32 s14, 0\ns_cbranch_scc1 L_p1\ns_bcnt1_i32_b64 s9, exec\ns_cmp_lt_u32 s9, {4 * thr}\ns_cbranch_scc1 L_p1')
            a('s_mov_b64 s[88:89], exec\ns_mov_b64 exec, -1\ns_mov_b32 s86, 1')
            gu_issue('adapt'); dn_issue('adapt')
            a('s_mov_b64 exec, s[88:89]\ns_branch L_p1')
            stubs.append('\n'.join(a.L)); a.L = keep
        else:
            a(f's_and_b64 exec, exec, vcc\ns_cbranch_execnz L_{name}')
        a(f'L_{name}_x:')
        a('s_mov_b64 exec, -1')
        if stamps is True: a(f's_add_u32 s14, s14, 1\nv_writelane_b32 v{HST}, s14, {40 + names.index(name)}')
    def p1_first():
        a(f's_waitcnt vmcnt({nwf + 2})'); wo_read()
    if p1nat:
        a(f's_waitcnt vmcnt({nwf})'); wo_read()
    poll('p1', m1_loads, A1, tagged=False, after_first=None if p1nat else p1_first)
    a('s_waitcnt vmcnt(0) lgkmcnt(0)')
    stamp('H', 'hop1', HST)
    if preinv:
        a(f's_cmp_lg_u32 s3, 0\ns_cbranch_scc1 L_npi\nv_not_b32 v12, v16\nbuffer_store_dword v12, v25, {srd(SWS)}, s21 offen sc1\nL_npi:')
    fm = [f'v_mul_f32 v8, v{W8}, v{DW}'] + [f'v_fmac_f32 v8, v{W8+r}, v{DW+r}' for r in range(1, 8)]
    for cg in range(4):
        for t in range(2):
            a(f'v_mfma_f32_16x16x32_bf16 v[{DW+8*cg+4*t}:{DW+8*cg+4*t+3}], v[{A1+4*t}:{A1+4*t+3}], v[{WOB+4*cg}:{WOB+4*cg+3}], 0')
            if wint and 2*cg + t >= 6:
                for k in range(2): a(fm.pop(0))
    def late_issue():
        if adapt:
            a('s_cmp_lg_u32 s86, 0\ns_cbranch_scc1 L_ad')
            gu_issue('adapt'); dn_issue('adapt')
            a('L_ad:')
        gu_issue('hop1'); dn_issue('hop1')
    if lpos == 0: late_issue()
    if wint:
        for l in fm: a(l)
    for cg in range(1 if wint else 0, 4):
        a(f'v_pk_mul_f32 v[{DW+8*cg}:{DW+8*cg+1}], v[{W8}:{W8+1}], v[{DW+8*cg}:{DW+8*cg+1}]')
        for r in range(2, 8, 2): a(f'v_pk_fma_f32 v[{DW+8*cg}:{DW+8*cg+1}], v[{W8+r}:{W8+r+1}], v[{DW+8*cg+r}:{DW+8*cg+r+1}], v[{DW+8*cg}:{DW+8*cg+1}]')
    for cg in ((2, 1, 3) if wint else (0, 2, 1, 3)): a(f'v_add_f32 v{8+cg}, v{DW+8*cg}, v{DW+8*cg+1}')
    a('v_permlane32_swap_b32 v8, v10\nv_add_f32 v8, v8, v10\nv_permlane32_swap_b32 v9, v11\nv_add_f32 v9, v9, v11\nv_permlane16_swap_b32 v8, v9\nv_add_f32 v8, v8, v9')
    a('ds_write_b32 v26, v8')
    if lpos == 1: late_issue()
    a('s_waitcnt lgkmcnt(0)')
    a('s_barrier      ; BW')
    a('s_cmp_lg_u32 s3, 0\ns_cbranch_scc1 L_nowpub')
    a(f'ds_read2st64_b32 v[8:9], v25 offset0:{L_YW//256} offset1:{L_YW//256+1}\nds_read2st64_b32 v[10:11], v25 offset0:{L_YW//256+2} offset1:{L_YW//256+3}')
    a(f's_waitcnt lgkmcnt(0)\nv_add_f32 v8, v8, v9\nv_add_f32 v10, v10, v11\nv_add_f32 v8, v8, v10\nv_bfi_b32 v8, v{VM}, v16, v8')
    a(f'buffer_store_dword v8, v25, {srd(SWS)}, s21 offen sc1')
    a('L_nowpub:')
    if lpos == 2: late_issue()
    stamp('H', 'wpub', HST)
    a('s_cmp_eq_u32 s4, 7\ns_cbranch_scc1 L_Hend')
    if not gu_late: gu_read()
    a.cand()
    def p2_first():
        npt = 0
        if local and pretouch:
            for l in mf_loads: a(l)
            npt = 4
        npt += dn_issue('p2')
        if npt or not progw: a(f's_waitcnt vmcnt({npt})')
    poll('p2', m2_loads, Y, after_first=p2_first)
    stamp('H', 'hop2', HST)
    for e in range(4): a(f'v_add_f32 v{Y+e}, v{Y+e}, v{Y+4+e}')
    a(f'v_permlane32_swap_b32 v{Y}, v{Y+2}\nv_permlane32_swap_b32 v{Y+1}, v{Y+3}\nv_add_f32 v{Y}, v{Y}, v{Y+2}\nv_add_f32 v{Y+1}, v{Y+1}, v{Y+3}')
    a(f'v_permlane16_swap_b32 v{Y}, v{Y+1}\nv_add_f32 v8, v{Y}, v{Y+1}')
    a(f'ds_write_b32 v23, v8 offset:{L_HP}\ns_waitcnt lgkmcnt(0)')
    a('s_barrier      ; BF')
    a(f'ds_read2st64_b32 v[8:9], v25 offset0:{L_HP//256} offset1:{L_HP//256+1}\nds_read2st64_b32 v[10:11], v25 offset0:{L_HP//256+2} offset1:{L_HP//256+3}')
    if gu_late: gu_read()
    nx = 8 if gu_late else 0
    a(f's_waitcnt lgkmcnt({nx + 1})\nv_add_f32 v8, v8, v40\nv_add_f32 v8, v8, v9\ns_waitcnt lgkmcnt({nx})\nv_add_f32 v10, v10, v11\nv_add_f32 v21, v8, v10')
    a(f'v_mov_b32_dpp v9, v21 quad_perm:[1,0,3,2] {FULL}\nv_cvt_pk_bf16_f32 v8, v21, v9')
    a(f's_mov_b32 exec_lo, 0xdddddddd\ns_mov_b32 exec_hi, 0xdddddddd')
    for d in range(8): a(f'v_mov_b32_dpp v{AH+d}, v8 row_newbcast:{2*d} {FULL}')
    a('s_mov_b64 exec, -1')
    for s_ in range(2):
        a(f'v_mfma_f32_16x16x32_bf16 v[{DW+8}:{DW+11}], v[{AH+4*s_}:{AH+4*s_+3}], v[{AH+4*s_}:{AH+4*s_+3}], {"0" if s_ == 0 else f"v[{DW+8}:{DW+11}]"}')
        if nx: a(f's_waitcnt lgkmcnt({4 - 4*s_})')
        for sb in range(2):
            a(f'v_mfma_f32_16x16x32_bf16 v[{DW+4*sb}:{DW+4*sb+3}], v[{AH+4*s_}:{AH+4*s_+3}], v[{GUB+8*sb+4*s_}:{GUB+8*sb+4*s_+3}], {"0" if s_ == 0 else f"v[{DW+4*sb}:{DW+4*sb+3}]"}')
    a('s_mov_b32 exec_hi, 0')
    a(f'v_mov_b32_dpp v10, v{DW+8} quad_perm:[0,0,2,3] {FULL}\nv_mov_b32_dpp v11, v{DW+9} quad_perm:[0,0,2,3] {FULL}')
    a('v_min_u32 v10, -2, v10\nv_min_u32 v11, -2, v11' if mfs else f'v_bfi_b32 v10, v{VM}, s36, v10\nv_bfi_b32 v11, v{VM}, s37, v11')
    a(f'v_mov_b32_dpp v{DW}, v{DW+4} quad_perm:[0,1,2,3] row_mask:2 bank_mask:0xf\nv_mov_b32_dpp v{DW+1}, v{DW+5} quad_perm:[0,1,2,3] row_mask:2 bank_mask:0xf')
    a(f'v_min_u32 v8, -2, v{DW}\nv_min_u32 v9, -2, v{DW+1}' if mfs else f'v_bfi_b32 v8, v{VM}, s34, v{DW}\nv_bfi_b32 v9, v{VM}, s35, v{DW+1}')
    if pretouch or wd == 'p2': a('s_waitcnt vmcnt(0)')
    dual_store(f'buffer_store_dwordx4 v[8:11], v27, {srd(SWS)}, s23 offen', 'mf')
    a('s_mov_b64 exec, -1')
    stamp('H', 'f1pub', HST)
    a.cand()
    a('s_mov_b32 s13, 0x3b000000\ns_mov_b32 s16, 0xc0135761\ns_mov_b32 s26, 0xbdd2d3e8')
    if not p25first: dn_read()
    poll('p25', mf_loads, A1, tmp=12, tagged=not mfs, after_first=dn_read if p25first else None)
    a('s_waitcnt vmcnt(0)')
    stamp('H', 'hop25', HST)
    Z = A1
    for e in range(4): a(f'v_add_f32 v{Z+e}, v{Z+e}, v{Z+4+e}\nv_add_f32 v{Z+8+e}, v{Z+8+e}, v{Z+12+e}')
    for e in range(4): a(f'v_permlane32_swap_b32 v{Z+e}, v{Z+8+e}')
    for e in range(4): a(f'v_add_f32 v{Z+e}, v{Z+e}, v{Z+8+e}')
    for e in range(4): a(f'v_mov_b32 v{Z+4+e}, v{Z+e}')
    for e in (3, 2, 0, 1): a(f'v_permlane16_swap_b32 v{Z+e}, v{Z+4+e}')
    for e in (3, 2, 0, 1): a(f'v_add_f32 v{Z+e}, v{Z+e}, v{Z+4+e}')
    a(f'v_mul_f32 v13, s13, v{Z+3}\nv_mul_f32 v14, v13, v13\nv_fma_f32 v12, v{Z+2}, s13, -v14\nv_max_f32 v12, 0, v12\nv_add_f32 v12, 0x3727c5ac, v12\nv_rsq_f32 v12, v12')
    a(f'v_fma_f32 v14, -v13, v{Z+1}, v{Z}\nv_mul_f32 v14, v14, v12')
    a('v_mul_f32 v15, v14, v14\nv_mov_b32 v12, s16\nv_fmac_f32 v12, s26, v15\nv_mul_f32 v12, v12, v14\nv_exp_f32 v12, v12')
    a(f'v_mov_b32_dpp v15, v14 row_ror:8 {FULL}')
    a('v_add_f32 v12, 1.0, v12\nv_rcp_f32 v12, v12\nv_mul_f32 v14, v14, v15\ns_mov_b32 exec_lo, 0xff\ns_mov_b32 exec_hi, 0xff\nv_mul_f32 v14, v14, v12')
    a(f'v_cvt_pk_bf16_f32 v14, v14, v14\nds_write_b16 v1, v14 offset:{L_ACT}\ns_mov_b64 exec, -1\ns_waitcnt lgkmcnt(0)')
    a('s_barrier      ; BA')
    a('s_cmp_gt_u32 s3, 1\ns_cbranch_scc1 L_R')
    a(f'ds_read_b128 v[{Z}:{Z+3}], v5 offset:{L_ACT}\nds_read_b128 v[{Z+4}:{Z+7}], v5 offset:{L_ACT + 64}')
    for s_ in range(2):
        a(f's_waitcnt lgkmcnt({1 - s_})')
        for cgl in range(2):
            a(f'v_mfma_f32_16x16x32_bf16 v[{DW+4*cgl}:{DW+4*cgl+3}], v[{Z+4*s_}:{Z+4*s_+3}], v[{WDB+8*cgl+4*s_}:{WDB+8*cgl+4*s_+3}], {"0" if s_ == 0 else f"v[{DW+4*cgl}:{DW+4*cgl+3}]"}')
    a('s_mov_b32 exec_hi, 0')
    a(f'v_mov_b32_dpp v{DW}, v{DW+4} quad_perm:[0,1,2,3] row_mask:2 bank_mask:0xf\nv_bfi_b32 v8, v{VM}, v16, v{DW}')
    a(f'buffer_store_dword v8, v25, {srd(SWS)}, s25 offen sc1')
    stamp('H', 'fpub', HST)
    a('s_branch L_Hend')
    a('L_R:')
    a('s_cmp_eq_u32 s3, 2\ns_cbranch_scc1 L_R2')
    a(f's_cmp_lg_u32 s2, 0\ns_cbranch_scc1 L_Hend\ns_mov_b64 exec, 1\nv_mov_b32 v9, s96\nv_mov_b32 v10, {EPOCH}\nbuffer_store_dword v9, v10, {srd(SWS)}, 0 offen sc1\ns_branch L_Hend')
    a('L_R2:')
    a('s_cmp_gt_u32 s28, 7\ns_cbranch_scc1 L_Hend')
    a.cand()
    a(f'ds_bpermute_b32 v21, v38, v21')
    for e in range(4): a(f'v_mov_b32 v{R+e}, 0')
    a('s_waitcnt lgkmcnt(0)'); rbf(21)
    a('s_mov_b32 exec_hi, 0x00ffffff')
    poll('p3', m3_loads, R)
    stamp('H', 'hop3', HST)
    a(f'v_permlane32_swap_b32 v{R}, v{R+2}\nv_permlane32_swap_b32 v{R+1}, v{R+3}\nv_add_f32 v{R}, v{R}, v{R+2}\nv_add_f32 v{R+1}, v{R+1}, v{R+3}')
    a(f'v_permlane16_swap_b32 v{R}, v{R+1}\nv_add_f32 v8, v{R}, v{R+1}')
    a(f'v_add_f32_dpp v8, v8, v8 row_ror:8 {FULL}\nv_add_f32_dpp v8, v8, v8 row_ror:4 {FULL}\nv_add_f32_dpp v8, v8, v8 quad_perm:[2,3,0,1] {FULL}')
    for k in range(dbg_sleep): a('s_sleep 125')
    for k in range(abs(dbg_tlb)):
        a(f's_add_u32 s9, s4, {1 + (k % 7 if dbg_tlb > 0 else 0)}\ns_and_b32 s9, s9, 7\ns_lshl_b32 s9, s9, 23\ns_lshl_b32 s10, s2, 10\ns_add_u32 s9, s9, s10\ns_add_u32 s9, s9, {((k // 7 * 2 + (k & 1)) << 21 if dbg_tlb > 0 else 0) + k * 0x40000 % 0x200000 * (dbg_tlb < 0)}\nbuffer_load_dword v9, v37, {srd(SK)}, s9 offen nt\ns_waitcnt vmcnt(0)')
    rbf(8)
    a('v_add_f32 v8, v8, v21\ns_mov_b32 exec_lo, 0x00030003\ns_mov_b32 exec_hi, 0x00030003\nv_cvt_pk_bf16_f32 v8, v8, v8')
    a(f'buffer_store_short v8, v37, {srd(SO)}, s15 offen {outsc}')
    stamp('H', 'out', HST)
    a('L_Hend:')
    stamp_store(HST)
    a('L_end:')
    a('s_endpgm')
    for t in stubs: a(t)

    head = HEADER + DOC + f'; @launch grid=(256,1,1) block=(512,1,1) lds={L_SP + 4096 * spill if spill else LDS_BYTES}\n'
    al = '' if align is None else f'.p2align 12\n.fill {align // 4}, 4, 0xbf800000\n'
    pre = f'.amdgcn_target "amdgcn-amd-amdhsa--gfx950"\n.text\n.globl {KN}\n{al}.p2align 8\n.type {KN},@function\n'
    post = f'''.section .rodata,"a"
.p2align 6
.amdhsa_kernel {KN}
  .amdhsa_next_free_vgpr 256
  .amdhsa_next_free_sgpr 98
  .amdhsa_accum_offset 256
  .amdhsa_group_segment_fixed_size 0
  .amdhsa_kernarg_size 96
  .amdhsa_user_sgpr_count 2
  .amdhsa_user_sgpr_kernarg_segment_ptr 1
  .amdhsa_system_sgpr_workgroup_id_x 1
  .amdhsa_float_denorm_mode_32 3
.end_amdhsa_kernel
'''
    if not warm:
        return head + pre + '\n'.join(a.render(chosen=[])) + '\n' + post, nst
    saveL = list(a.L)
    a.L = [l.replace('@W0', 'L_warm_end').replace('@W1', 'L_warm_end').replace('@W2', 'L_warm_end') for l in saveL]
    syms = assemble_syms(pre + '\n'.join(a.render(None)) + '\n')
    pos = [syms[f'L_cand{n}'] for n in range(a.ncand)]
    end = syms['L_end']
    chosen = []; last = None
    for n in range(a.ncand):
        nxt = pos[n+1] if n + 1 < a.ncand else end
        if last is None or nxt - last > padgap:
            chosen.append(n); last = pos[n]
    k = len(chosen)
    ent = [0, (k + 2) // 3, (2 * k + 2) // 3]
    a.L = [l.replace('@W0', f'L_pad{ent[0]}').replace('@W1', f'L_pad{ent[1]}').replace('@W2', f'L_pad{ent[2]}') for l in saveL]
    body = a.render(chosen)
    gaps = [pos[chosen[i+1]] - pos[chosen[i]] for i in range(k-1)] + [end - pos[chosen[-1]]]
    print('pads', k, 'first', pos[chosen[0]], 'gaps', gaps, 'code bytes', end, file=sys.stderr)
    return head + pre + '\n'.join(body) + '\n' + post, nst

if __name__ == '__main__':
    kw = eval('dict(' + (sys.argv[2] if len(sys.argv) > 2 else '') + ')')
    s, nst = gen(**kw)
    open(sys.argv[1], 'w').write(s)
    if nst: print(nst)
```

```python
import sys
from asmlib import Asm, assemble_syms
NAME = 'sequential_preLN__gqa_block_cached__glu_gated_geglu__decode'
KN = NAME + '_kernel'

QP   = 0x00000
LAM  = 0x10000
EPOCH = 0x19000
M2   = 0x20000
M1   = 0x40000
M3   = 0x80000
MF   = 0x100000
STAMP = 0x8000000
L_WQ = 0
L_G  = 16384
L_U  = 24576 + 64
L_XN = 33792
L_Q  = 34816
L_MX = 35840
L_LS = 35904
L_FAST = 35968
L_W  = 36096
L_EP = 36864
L_YW = 45568
L_HP = 46592
L_ACT = 47616
L_D  = 47872
L_SP = 56320
LDS_BYTES = 56064
SX, SK, SV, SWQ, SWO, SG, SU, SD, SO, SDBG, SWS = 40, 44, 48, 52, 56, 60, 64, 68, 72, 76, 80
def srd(b): return f's[{b}:{b+3}]'
LOG2E = 0x3fb8aa3b
SPIN = 1 << 16
TAGB = 10
TAGM = 0x3ff
FULL = 'row_mask:0xf bank_mask:0xf'

HEADER = open('cdna_kernels/' + NAME + '.s.ref').read().split('; Override launch')[0]

DOC = """; One persistent launch, 256 workgroups (one per CU) x 8 waves; text written by my own generator script.
;     exact row max / row sum of the workgroup, PV with 16x16x32 MFMA, publish the normalised partial O (M1).
;     R  (sum of 28 partials + h)                                                                   -> d_out
;   owner publishes its log-sum-exp words, which every reader of the slot has received.
"""

def gen(D=6, lead_ss=14, lead_sm=16, lead_end=None, n_end=0, wg='b4', wu='hop1', wd='hop1', thr=8, wint=True, shift=0, nf=7, p1nat=True, wo='b4', b4lead=0, dalt=0, spread=False, Dv=None, smi=6, kshrink=1, vshrink=1, smx=2, spill=0, edelay=0, mfs=True, p25first=True, boost=None, bfrom=24, bto=48, D1=None, n1=24, wqpace=0, dbg_cbrot=0, epi=True, preinv=False, hfirst=False, D0=11, align=None, qlocal=6, clrpos=1, progw=True, dlo=None, dmask=0xaa, dfrom=0, dstep=1, pcs=18, padgap=900, sfirst=True, hprio=2, sprio=0, lpos=0, qdelay=0, pd=(0, 15, 0, 11), pdslow=0, local=True, pretouch=False, touch=True, lamdelay=0, early='g', outsc='',
        klin=False, stamps=False, warm=True, nslots=40, dbgwg=0, dbg_now=False, dbg_notail=False, dbg_sleep=0, dbg_extra=0, dbg_rtt=0, dbg_noclr=False, dbg_noq=False, dbg_nomid=False, dbg_klin=False, dbg_nocomp=False, dbg_tlb=0):
    a = Asm()
    nst = {}
    stubs = []
    SST, HST = (248 if klin else 88), 200
    assert nslots <= (36 if klin else 40)
    def stamp(role, name, vreg):
        if not stamps: return
        if stamps == 'lite' and name not in ('pub', 'out'): return
        idx = nst.setdefault(role, []); idx.append(name)
        a(f's_memrealtime s[90:91]\ns_waitcnt lgkmcnt(0)\nv_writelane_b32 v{vreg}, s90, {len(idx)-1}')
    def stamp_store(vreg):
        if not stamps: return
        if stamps == 'dbg':
            if vreg == SST: return
            a(f's_cmp_lg_u32 s2, {dbgwg}\ns_cbranch_scc1 L_nodbg\ns_cmp_lg_u32 s3, 0\ns_cbranch_scc1 L_nodbg')
            a(f's_mov_b64 exec, -1\nv_subrev_u32 v{vreg}, s94, v{vreg}\nv_lshlrev_b32 v{vreg+1}, 2, v0\nbuffer_store_dword v{vreg}, v{vreg+1}, {srd(SDBG)}, 0 offen\nL_nodbg:')
            return
        a(f's_lshl_b32 s92, s2, 3\ns_add_u32 s92, s92, s3\ns_lshl_b32 s92, s92, 8\ns_add_u32 s92, s92, {STAMP}')
        a(f's_mov_b64 exec, -1\nv_lshlrev_b32 v{vreg+1}, 2, v0\nbuffer_store_dword v{vreg}, v{vreg+1}, {srd(SWS)}, s92 offen')
    def crossg(r, t, op='add'):
        a(f'v_mov_b32 v{t}, v{r}\nv_permlane16_swap_b32 v{t}, v{r}\nv_{op}_f32 v{r}, v{r}, v{t}')
        a(f'v_mov_b32 v{t}, v{r}\nv_permlane32_swap_b32 v{t}, v{r}\nv_{op}_f32 v{r}, v{r}, v{t}')
    def allreduce(r, t, op='add'):
        for sh in (8, 4, 2, 1): a(f'v_{op}_f32_dpp v{r}, v{r}, v{r} row_ror:{sh} {FULL}')
        crossg(r, t, op)
    def rbf(r):
        a(f'v_cvt_pk_bf16_f32 v{r}, v{r}, v{r}\nv_lshlrev_b32 v{r}, 16, v{r}')
    def saddr(dst, terms, const=0, tmp='s10'):
        first = True
        for reg, sh in terms:
            t = dst if first else tmp
            a(f's_lshl_b32 {t}, {reg}, {sh}' if sh else f's_mov_b32 {t}, {reg}')
            if not first: a(f's_add_u32 {dst}, {dst}, {tmp}')
            first = False
        if const: a(f's_add_u32 {dst}, {dst}, {const}')
    def tags():
        a(f's_mul_i32 s96, s33, 1664525\ns_add_u32 s96, s96, 1013904223\ns_and_b32 s34, s96, {TAGM}\ns_bfe_u32 s35, s96, {TAGB << 16 | 10}\ns_bfe_u32 s36, s96, {TAGB << 16 | 20}\ns_lshr_b32 s37, s96, 22')
    def lanetag(dst, idx):
        a(f'v_mul_u32_u24 v{dst}, 10, v{idx}\nv_min_u32 v{dst}, 22, v{dst}\nv_lshrrev_b32_e64 v{dst}, v{dst}, s96')
    def dual_store(ins, name):
        if not local:
            a(ins + ' sc1'); return
        a(f's_cmp_eq_u32 s39, 0\ns_cbranch_scc1 L_{name}_s\n{ins}\nL_{name}_e:')
        stubs.append(f'L_{name}_s:\n{ins} sc1\ns_branch L_{name}_e')

    a('; ================================================================== entry')
    a(f'{KN}:')
    a('s_cmp_ge_u32 s2, 256\ns_cbranch_scc1 L_end')
    if stamps: a('s_memrealtime s[94:95]')
    PTRS = ((SK, 8, 64 << 20), (SX, 0, 1024), (SWQ, 24, 4 << 20), (SWS, 88, 268435456), (SV, 16, 64 << 20), (SWO, 32, 4 << 20), (SG, 48, 512 * 3584),
            (SU, 56, 512 * 3584), (SD, 64, 1792 * 1024), (SO, 72, 1024)) + (((SDBG, 80, 256),) if stamps == 'dbg' else ())
    def srds(which):
        for b, off, n in which: a(f's_load_dwordx2 s[{b}:{b+1}], s[0:1], {off}')
        for b, off, n in which: a(f's_mov_b32 s{b+2}, {n}\ns_mov_b32 s{b+3}, 0x20000')
    a(f's_load_dwordx2 s[{SK}:{SK+1}], s[0:1], 8')
    a('v_lshrrev_b32 v1, 6, v0\nv_and_b32 v0, 63, v0')
    a('v_readfirstlane_b32 s3, v1')
    a(f's_mov_b32 s{SK+2}, {64 << 20}\ns_mov_b32 s{SK+3}, 0x20000')
    a('s_and_b32 s4, s2, 7\ns_lshr_b32 s5, s2, 3')
    if sfirst: a('s_xor_b32 s3, s3, 4')
    a('s_and_b32 s6, s3, 3')
    a('s_cmp_lt_u32 s3, 4\ns_cbranch_scc1 L_H')
    RING = 96
    if sprio: a(f's_setprio {sprio}')
    def slot(k): return RING + 4 * k
    a('v_and_b32 v1, 3, v0\nv_lshlrev_b32 v1, 8, v1\nv_lshrrev_b32 v2, 2, v0\nv_lshl_add_u32 v1, v2, 4, v1')
    a('v_lshlrev_b32 v2, 4, v0')
    if dbg_klin: a('v_mov_b32 v1, v2')
    saddr('s7', (('s4', 23), ('s5', pcs), ('s6', 12)), tmp='s8')
    a('s_mov_b32 s8, s7')
    if dlo: a(f's_getreg_b32 s9, hwreg(HW_REG_XCC_ID)\ns_and_b32 s9, s9, 7\ns_lshr_b32 s9, {dmask}, s9\ns_and_b32 s9, s9, 1\ns_cselect_b64 vcc, -1, 0')
    if stamps: a(f'v_mov_b32 v{SST}, 0')
    a('s_waitcnt lgkmcnt(0)')
    if stamps: a(f'v_writelane_b32 v{SST}, s94, 0'); nst['S'] = ['start']
    st = dict(I=0, free=list(range(nslots)), where={})
    def issue(pace=True):
        n = st['I']
        fl = st['free']
        parked = nslots <= n < nslots + spill
        if not parked:
            k = next(x for x in fl if n < 64 or x >= 8)
            fl.remove(k); st['where'][n] = k
        if boost and pace and bfrom <= n < bto:
            a(f's_waitcnt vmcnt({boost-1})\ns_cbranch_vccnz L_b{n}\ns_waitcnt vmcnt({D-1})\nL_b{n}:')
        elif pace and n >= (D0 or D): a(f's_waitcnt vmcnt({(D1 if (D1 and n < n1) else (Dv if (Dv and n >= 96) else D))-1+(1 if (dalt and n % dalt == 0) else 0)})')
        if dlo and n >= max(dlo, dfrom) and n % dstep == 0 and not (80 - lead_sm <= n - 0 < 80 and not pace and n < 64 + lead_sm):
            a(f's_cbranch_vccnz L_d{n}\ns_waitcnt vmcnt({dlo-1})\nL_d{n}:')
        if stamps is True and n in (7, 16, 24, 33): stamp('S', f'n{n}', SST)
        if n == 64: a('s_mov_b32 s8, s7')
        if parked:
            if n & 3 == 0: a(f's_mul_i32 s9, s6, {spill * 1024}\ns_add_u32 m0, s9, {L_SP + (n - nslots) * 1024}')
            a(f'buffer_load_dwordx4 v1, {srd(SK)}, s8 offen offset:{(n & 3) * 1024} nt lds')
        else: a(f'buffer_load_dwordx4 v[{slot(k)}:{slot(k)+3}], {"v1" if (n < 64 and not klin) else "v2"}, {srd(SK if n < 64 else SV)}, s8 offen offset:{(n & 3) * 1024} nt')
        if n & 3 == 3 and n != 63 and n != 127:
            jump = ((n + 1) * 4096) % (1 << pcs) == 0
            a(f's_add_u32 s8, s8, {0x4000 + (31 << pcs if jump else 0)}')
        st['I'] = n + 1
    def more(k):
        while k > 0 and st['I'] < st['tgt'] and can_issue():
            issue(); k -= 1
    def can_issue():
        n = st['I']
        return n < 128 and any(n < 64 or x >= 8 for x in st['free'])
    if dbg_extra:
        a('s_add_u32 s9, s7, 0x20000')
        for n in range(dbg_extra):
            if n >= D: a(f's_waitcnt vmcnt({D-1})')
            a(f'buffer_load_dwordx4 v[{slot(n % D)}:{slot(n % D)+3}], v2, {srd(SV)}, s9 offen offset:{(n & 3) * 1024} nt')
            if n & 3 == 3: a('s_add_u32 s9, s9, 0x4000')
        a('s_waitcnt vmcnt(0)')
    for n in range(nslots + spill):
        if n == (D0 or D):
            if hfirst:
                a('s_branch L_S0'); srest0 = len(a.L); a('L_S0:')
            srds(PTRS[1:])
            if boost: a('s_and_b32 s9, s5, 7\ns_cmp_eq_u32 s9, 3\ns_cselect_b64 vcc, -1, 0')
        issue()
    a('s_waitcnt lgkmcnt(0)')
    stamp('S', 'pref', SST)
    a('s_barrier')
    a('s_branch L_S')
    if hfirst:
        srest = a.L[srest0:]; del a.L[srest0:]

    a('; ================================================================== H start')
    a('L_H:')
    srds(PTRS[1:])
    if stamps: a(f'v_mov_b32 v{HST}, 0')
    a('s_and_b32 s17, s5, 7\ns_lshr_b32 s18, s5, 3')
    a('s_cmp_lg_u32 s3, 0\ns_cbranch_scc1 L_Hwarm')
    if dbg_noq: a('s_branch L_Hwarm')
    if hprio: a(f's_setprio {hprio}')
    a('v_lshlrev_b32 v2, 4, v0')
    a('v_lshrrev_b32 v1, 3, v0\nv_lshlrev_b32 v1, 13, v1\nv_and_b32 v3, 7, v0\nv_lshl_add_u32 v1, v3, 4, v1')
    if dbg_cbrot: a(f's_add_u32 s17, s17, {dbg_cbrot}\ns_and_b32 s17, s17, 7')
    saddr('s8', (('s18', 20), ('s4', 10), ('s17', 7)))
    a(f's_mov_b32 m0, {L_WQ}')
    a('s_getreg_b32 s38, hwreg(HW_REG_XCC_ID)\ns_and_b32 s38, s38, 15')
    a('s_waitcnt lgkmcnt(0)')
    if stamps: a(f'v_writelane_b32 v{HST}, s94, 0'); nst['H'] = ['start']
    a(f's_load_dword s33, s[{SWS}:{SWS+1}], {EPOCH}')
    a(f'buffer_load_dwordx4 v[4:7], v2, {srd(SX)}, 0 offen')
    for m in range(16):
        a(f'buffer_load_dwordx4 v1, {srd(SWQ)}, s8 offen nt lds')
        if m < 15: a(f's_add_u32 m0, m0, 1024\ns_add_u32 s8, s8, 0x10000')
        if wqpace and m < 15: a(f's_sleep {wqpace}')
    a.cand()
    a('s_mov_b32 s12, 0xffff0000')
    a('s_waitcnt vmcnt(16)')
    for d in range(4): a(f'v_lshlrev_b32 v{8+2*d}, 16, v{4+d}\nv_and_b32 v{9+2*d}, s12, v{4+d}')
    a('v_add_f32 v16, v8, v9\nv_add_f32 v17, v10, v11\nv_add_f32 v18, v12, v13\nv_add_f32 v19, v14, v15\nv_add_f32 v16, v16, v17\nv_add_f32 v18, v18, v19\nv_add_f32 v16, v16, v18')
    allreduce(16, 17)
    a('v_mul_f32 v16, 0x3b000000, v16')
    a('v_sub_f32 v17, v8, v16\nv_mul_f32 v18, v17, v17')
    for e in range(1, 8): a(f'v_sub_f32 v17, v{8+e}, v16\nv_fmac_f32 v18, v17, v17')
    allreduce(18, 17)
    a('v_mul_f32 v18, 0x3b000000, v18'); rbf(18)
    a('v_add_f32 v18, 0x3727c5ac, v18'); rbf(18)
    a('v_sqrt_f32 v18, v18'); rbf(18)
    a('v_rcp_f32 v18, v18'); rbf(16)
    for e in range(8): a(f'v_sub_f32 v{8+e}, v{8+e}, v16')
    for d in range(4): a(f'v_cvt_pk_bf16_f32 v{4+d}, v{8+2*d}, v{9+2*d}')
    for d in range(4): a(f'v_lshlrev_b32 v{8+2*d}, 16, v{4+d}\nv_and_b32 v{9+2*d}, s12, v{4+d}')
    for e in range(8): a(f'v_mul_f32 v{8+e}, v{8+e}, v18')
    for d in range(4): a(f'v_cvt_pk_bf16_f32 v{4+d}, v{8+2*d}, v{9+2*d}')
    a(f'ds_write_b128 v2, v[4:7] offset:{L_XN}')
    a.cand()
    a('v_lshrrev_b32 v3, 4, v0\nv_lshlrev_b32 v16, 4, v3\ns_lshl_b32 s9, s18, 8\nv_add_u32 v16, s9, v16')
    a('v_lshlrev_b32 v17, 10, v3\nv_bfe_u32 v18, v0, 2, 2\nv_lshl_add_u32 v17, v18, 7, v17\nv_and_b32 v18, 3, v0\nv_lshl_add_u32 v17, v18, 3, v17')
    a('s_waitcnt lgkmcnt(0)')
    for s_ in range(4): a(f'ds_read_b128 v[{64+4*s_}:{67+4*s_}], v16 offset:{L_XN + s_*64}')
    tags()
    lanetag(19, 18)
    a(f'v_cmp_eq_u32 vcc, 3, v18\nv_mov_b32 v21, s38\nv_mov_b32 v20, {TAGM}\nv_cndmask_b32 v21, 0, v21, vcc\nv_xor_b32 v19, v19, v21\ns_xor_b32 s13, s37, s38')
    a('s_waitcnt vmcnt(0) lgkmcnt(0)')
    stamp('H', 'wq', HST)
    a.cand()
    order = [(s_, cg) for s_ in range(4) for cg in range(4)]
    def qmfma(q):
        s_, cg = order[q]
        a(f'v_mfma_f32_16x16x32_bf16 v[{24+4*cg}:{27+4*cg}], v[{64+4*s_}:{67+4*s_}], v[{128+4*q}:{131+4*q}], {"0" if s_ == 0 else f"v[{24+4*cg}:{27+4*cg}]"}')
    for q, (s_, cg) in enumerate(order):
        for eh in range(2): a(f'ds_read_b64_tr_b16 v[{128+4*q+2*eh}:{129+4*q+2*eh}], v17 offset:{L_WQ + s_*4096 + eh*512 + cg*32}')
        if q >= 4:
            a(f's_waitcnt lgkmcnt(8)'); qmfma(q - 4)
    for q in range(12, 16):
        a(f's_waitcnt lgkmcnt({2*(15-q)})'); qmfma(q)
    a('v_lshlrev_b32 v3, 2, v0')
    saddr('s9', (('s4', 13), ('s18', 11), ('s17', 8)), QP)
    saddr('s16', (('s4', 13),), QP); a('s_add_u32 s15, s16, 4096')
    for cg in range(1, 4): a(f'v_mov_b32_dpp v24, v{24+4*cg} quad_perm:[0,1,2,3] row_mask:{1 << cg} bank_mask:0xf')
    a(f'v_add_u32 v24, {(TAGM + 1) // 2}, v24\nv_bfi_b32 v24, v20, v19, v24')
    if qlocal: a('; first without device scope (enough if the group shares a die); repeated with device scope after a few failed sweeps or on seeing another die')
    a(f'buffer_store_dword v24, v3, {srd(SWS)}, s9 offen {"" if qlocal else "sc1"}')
    a('s_mov_b32 s14, 0')
    stamp('H', 'qpub', HST)
    a.cand()
    def tagcheck(base, n, tmp, waits=True):
        for k in range(n):
            if waits: a(f's_waitcnt vmcnt({n-1-k})')
            r = base + 4*k
            for e in range(4): a(f'v_xor_b32 v{r+e}, s{34+e}, v{r+e}')
            if k == 0: a(f'v_or_b32 v{tmp}, v{r}, v{r+1}\nv_or_b32 v{tmp+1}, v{r+2}, v{r+3}')
            else: a(f'v_or3_b32 v{tmp}, v{tmp}, v{r}, v{r+1}\nv_or3_b32 v{tmp+1}, v{tmp+1}, v{r+2}, v{r+3}')
        a(f'v_bitop3_b32 v{tmp}, v{tmp}, v{tmp+1}, v{VM} bitop3:0xa8\nv_cmp_ne_u32 vcc, 0, v{tmp}')
    VM = 20
    a('L_qpoll:')
    if qlocal:
        a(f's_cmp_lg_u32 s14, {qlocal}\ns_cbranch_scc1 L_qnr\ns_mov_b64 s[22:23], exec\ns_mov_b64 exec, -1\nbuffer_store_dword v24, v3, {srd(SWS)}, s9 offen sc1\ns_mov_b64 exec, s[22:23]\nL_qnr:')
    if qdelay: a(f's_sleep {min(127, 8 * qdelay)}      ; back-off: every failed sweep takes 8 KB out of this CU\'s K/V stream')
    for k in range(8):
        a(f'buffer_load_dwordx4 v[{64+4*k}:{67+4*k}], v2, {srd(SWS)}, {"s16" if k < 4 else "s15"} offen offset:{(k & 3) * 1024} sc1')
    a(f's_add_u32 s14, s14, 1\ns_cmp_gt_u32 s14, {SPIN}\ns_cbranch_scc1 L_qdone')
    for k in range(8):
        r = 64 + 4*k
        a(f's_waitcnt vmcnt({7-k})\nv_xor_b32 v{r}, s34, v{r}\nv_xor_b32 v{r+1}, s35, v{r+1}\nv_xor_b32 v{r+2}, s36, v{r+2}\nv_xor_b32 v{r+3}, s13, v{r+3}')
        if k == 0: a(f'v_or3_b32 v8, v{r}, v{r+1}, v{r+2}\nv_mov_b32 v9, v{r+3}')
        else: a(f'v_or3_b32 v8, v8, v{r}, v{r+1}\nv_or_b32 v8, v8, v{r+2}\nv_or_b32 v9, v9, v{r+3}')
    a(f'v_and_b32 v10, {TAGM & ~15}, v9\nv_bitop3_b32 v8, v8, v10, v20 bitop3:0xa8\nv_cmp_ne_u32 vcc, 0, v8')
    a('s_and_b64 exec, exec, vcc\ns_cbranch_execnz L_qpoll')
    a('L_qdone:')
    a('s_mov_b64 exec, -1\ns_waitcnt vmcnt(0)')
    a(f'v_and_b32 v9, 15, v9\nv_cmp_ne_u32 vcc, 0, v9\ns_cmp_eq_u64 vcc, 0\ns_cselect_b32 s39, 1, 0\nv_mov_b32 v9, s39\nv_mov_b32 v10, 0\nds_write_b32 v10, v9 offset:{L_FAST}')
    if qlocal:
        a(f's_cmp_lg_u32 s39, 0\ns_cbranch_scc1 L_qsame\nbuffer_store_dword v24, v3, {srd(SWS)}, s9 offen sc1\nL_qsame:')
    for k in range(8): a(f'v_and_b32 v{67+4*k}, -16, v{67+4*k}')
    a('v_lshlrev_b32 v3, 3, v0')
    for e in range(8): a(f'v_add_f32 v{64+e}, v{64+e}, v{72+e}')
    for e in range(8): a(f'v_add_f32 v{80+e}, v{80+e}, v{88+e}')
    for e in range(8): a(f'v_add_f32 v{64+e}, v{64+e}, v{80+e}')
    for d in range(4): a(f'v_cvt_pk_bf16_f32 v{4+d}, v{64+2*d}, v{65+2*d}')
    a(f'ds_write2st64_b64 v3, v[4:5], v[6:7] offset0:{L_Q//512} offset1:{L_Q//512+1}')
    a('s_waitcnt lgkmcnt(0)')
    stamp('H', 'qgot', HST)
    if hprio: a('s_setprio 0')
    a('s_branch L_Hb1')
    if hfirst: a.L += srest
    a('L_Hwarm:')
    a('s_waitcnt lgkmcnt(0)')
    if stamps: a(f'v_writelane_b32 v{HST}, s94, 0')
    a(f's_load_dword s33, s[{SWS}:{SWS+1}], {EPOCH}')
    if warm:
        a('s_mov_b64 exec, 0')
        a('s_cmp_eq_u32 s3, 1\ns_cbranch_scc1 @W0\ns_cmp_eq_u32 s3, 2\ns_cbranch_scc1 @W1\ns_branch @W2')
        a('L_warm_end:')
        a('s_mov_b64 exec, -1')
        if stamps is True: a(f's_memrealtime s[90:91]\ns_waitcnt lgkmcnt(0)\nv_writelane_b32 v{HST}, s90, 1')
    a('s_waitcnt lgkmcnt(0)')
    tags()
    a('L_Hb1:')
    a('s_barrier      ; B1')
    a('s_branch L_Hmid')

    smain0 = len(a.L)
    a('; ================================================================== S main')
    a('L_S:')
    a.cand()
    Q, P, ACC = 20, 24, 56
    QM = (20, 16, 88, 92)
    if klin:
        a('v_and_b32 v1, 3, v0\nv_lshlrev_b32 v1, 8, v1\nv_bfe_u32 v4, v0, 2, 2\nv_lshl_add_u32 v1, v4, 6, v1')
        for m in range(4): a(f'ds_read_b128 v[{QM[m]}:{QM[m]+3}], v1 offset:{L_Q + 16*m}')
        a('s_mov_b32 s20, 0x55555555\ns_mov_b32 s21, s20\ns_not_b64 s[22:23], s[20:21]\ns_mov_b32 s24, 0x33333333\ns_mov_b32 s25, s24\ns_not_b64 s[26:27], s[24:25]')
    else:
        a(f'ds_read_b128 v[{Q}:{Q+3}], v1 offset:{L_Q}')
    a(f'v_mov_b32 v12, 0\nds_read_b32 v12, v12 offset:{L_FAST}')
    a('s_mov_b32 s12, 0xffff0000\ns_mov_b32 s13, 0x3db504f3\nv_mov_b32 v3, 0xff800000')
    a(f'v_lshrrev_b32 v14, 4, v0')
    a('s_waitcnt lgkmcnt(0)\nv_readfirstlane_b32 s39, v12')
    stamp('S', 'q', SST)
    lead = nslots + spill
    if spill: a(f's_mul_i32 s9, s6, {spill * 1024}\ns_add_u32 s9, s9, {L_SP}\nv_add_u32 v11, s9, v2')
    for u in range(16):
        a.cand()
        T = [ACC + 4*e for e in range(4)]
        a(f's_waitcnt vmcnt({st["I"] - (4*u+4)})')
        if nslots <= 4*u < nslots + spill:
            for e in range(4):
                k = st['free'].pop(0); st['where'][4*u+e] = k
                a(f'ds_read_b128 v[{slot(k)}:{slot(k)+3}], v11 offset:{(4*u + e - nslots) * 1024}')
            a('s_waitcnt lgkmcnt(0)')
        ks = [slot(st['where'][4*u+e]) for e in range(4)]
        def refill():
            nonlocal lead
            for e in range(4): st['free'].append(st['where'][4*u+e])
            C = 4*u + 4
            lead = max(lead_ss, lead - kshrink)
            if vshrink is None:
                tgt = C + lead if u < 15 else C + lead_sm
                while st['I'] < tgt and can_issue(): issue(pace=(u < 15))
            else:
                st['tgt'] = C + lead
                if spread: more(1)
                else: more(9)
                if u == 15 and not spread:
                    for k in range(smx):
                        if can_issue(): issue(pace=False)
                    lead = st['I'] - C
        if klin:
            Z = [ACC + 4*e for e in range(4)]; Yk = [ACC + 16 + 4*e for e in range(4)]; DA, DB = 240, 244
            def sel(dst, own, other, perm):
                for d in range(4): a(f'v_cndmask_b32_dpp v{dst+d}, v{other+d}, v{own+d}, vcc quad_perm:{perm} {FULL}')
            def km(m):
                a(f'v_mfma_f32_4x4x4_16b_bf16 v[{DA}:{DA+3}], v[{Yk[m]}:{Yk[m]+1}], v[{QM[m]}:{QM[m]+1}], {"0" if m == 0 else f"v[{DA}:{DA+3}]"}')
                a(f'v_mfma_f32_4x4x4_16b_bf16 v[{DB}:{DB+3}], v[{Yk[m]+2}:{Yk[m]+3}], v[{QM[m]+2}:{QM[m]+3}], {"0" if m == 0 else f"v[{DB}:{DB+3}]"}')
            a('s_mov_b64 vcc, s[20:21]'); sel(Z[0], ks[0], ks[1], '[1,0,3,2]'); sel(Z[2], ks[2], ks[3], '[1,0,3,2]')
            a('s_mov_b64 vcc, s[22:23]'); sel(Z[1], ks[1], ks[0], '[1,0,3,2]'); sel(Z[3], ks[3], ks[2], '[1,0,3,2]')
            refill()
            a('s_mov_b64 vcc, s[24:25]'); sel(Yk[0], Z[0], Z[2], '[2,3,0,1]'); sel(Yk[1], Z[1], Z[3], '[2,3,0,1]')
            a('s_mov_b64 vcc, s[26:27]'); km(0); sel(Yk[2], Z[2], Z[0], '[2,3,0,1]'); km(1); sel(Yk[3], Z[3], Z[1], '[2,3,0,1]'); km(2); a('s_nop 0'); km(3)
            for e in range(4): a(f'v_add_f32 v{T[e]}, v{DA+e}, v{DB+e}')
        else:
            for e in range(4): a(f'v_mfma_f32_4x4x4_16b_bf16 v[{T[e]}:{T[e]+3}], v[{ks[e]}:{ks[e]+1}], v[{Q}:{Q+1}], 0')
            for e in range(4): a(f'v_mfma_f32_4x4x4_16b_bf16 v[{T[e]}:{T[e]+3}], v[{ks[e]+2}:{ks[e]+3}], v[{Q+2}:{Q+3}], v[{T[e]}:{T[e]+3}]')
            refill()
            for e in range(4): a(f'v_permlane32_swap_b32 v{T[e]}, v{T[e]+2}\nv_permlane32_swap_b32 v{T[e]+1}, v{T[e]+3}')
            for e in range(4): a(f'v_add_f32 v{T[e]}, v{T[e]}, v{T[e]+2}\nv_add_f32 v{T[e]+1}, v{T[e]+1}, v{T[e]+3}')
            if spread: more(1)
            for e in range(4): a(f'v_permlane16_swap_b32 v{T[e]}, v{T[e]+1}')
            for e in range(4): a(f'v_add_f32 v{T[e]}, v{T[e]}, v{T[e]+1}')
        a.cand()
        for e in range(4): a(f'v_add_f32_dpp v{T[e]+1}, v{T[e]}, v{T[e]} row_ror:4 {FULL}')
        for e in range(4): a(f'v_add_f32_dpp v{T[e]}, v{T[e]+1}, v{T[e]+1} row_ror:8 {FULL}')
        if spread: more(1)
        a(f'v_cvt_pk_bf16_f32 v5, v{T[0]}, v{T[1]}\nv_cvt_pk_bf16_f32 v6, v{T[2]}, v{T[3]}')
        a('v_lshlrev_b32 v7, 16, v5\nv_and_b32 v8, s12, v5\nv_lshlrev_b32 v9, 16, v6\nv_and_b32 v10, s12, v6')
        a('v_mul_f32 v7, s13, v7\nv_mul_f32 v8, s13, v8\nv_mul_f32 v9, s13, v9\nv_mul_f32 v10, s13, v10')
        a(f'v_cvt_pk_bf16_f32 v{P+2*u}, v7, v8\nv_cvt_pk_bf16_f32 v{P+2*u+1}, v9, v10')
        a('v_max3_f32 v3, v3, v7, v8\nv_max3_f32 v3, v3, v9, v10')
        if spread:
            more(9)
            if u == 15:
                for k in range(smx):
                    if can_issue(): issue(pace=False)
    stamp('S', 'kdone', SST)
    a.cand()
    crossg(3, 5, 'max')
    a(f'v_and_b32 v5, 3, v0\nv_lshlrev_b32 v5, 4, v5\ns_lshl_b32 s9, s6, 2\nv_add_u32 v6, s9, v5')
    a(f's_mov_b64 exec, 15\nds_write_b32 v6, v3 offset:{L_MX}\ns_mov_b64 exec, -1\ns_waitcnt lgkmcnt(0)')
    a('s_barrier')
    a(f'ds_read_b128 v[8:11], v5 offset:{L_MX}')
    a(f's_mov_b32 s14, {LOG2E}\nv_mov_b32 v4, 0')
    a('s_waitcnt lgkmcnt(0)')
    a('v_max3_f32 v3, v8, v9, v10\nv_max_f32 v3, v3, v11'); rbf(3)
    a('v_mul_f32 v3, s14, v3')
    for r in range(0, 32, 2):
        a.cand()
        if smi and (r // 2 * smi) // 16 != ((r // 2 + 1) * smi) // 16 and can_issue(): issue()
        a(f'v_lshlrev_b32 v7, 16, v{P+r}\nv_and_b32 v8, s12, v{P+r}\nv_lshlrev_b32 v9, 16, v{P+r+1}\nv_and_b32 v10, s12, v{P+r+1}')
        for t in range(7, 11): a(f'v_fma_f32 v{t}, v{t}, s14, -v3')
        for t in range(7, 11): a(f'v_exp_f32 v{t}, v{t}')
        a(f'v_cvt_pk_bf16_f32 v{P+r}, v7, v8\nv_add_f32 v7, v7, v8\nv_cvt_pk_bf16_f32 v{P+r+1}, v9, v10\nv_add_f32 v9, v9, v10\nv_add_f32 v4, v4, v7\nv_add_f32 v4, v4, v9')
        if r >= 2:
            for q in (3, 2, 1, 0):
                for k in (r - 2, r - 1): a(f'v_mov_b32_dpp v{P+k}, v{P+k} row_newbcast:{q} row_mask:0xf bank_mask:{1 << q}')
                if q: a(f'v_mov_b32 v11, v11')
    for q in (3, 2, 1, 0):
        for k in (30, 31): a(f'v_mov_b32_dpp v{P+k}, v{P+k} row_newbcast:{q} row_mask:0xf bank_mask:{1 << q}')
    crossg(4, 7, 'add')
    a(f's_mov_b64 exec, 15\nds_write_b32 v6, v4 offset:{L_LS}\ns_mov_b64 exec, -1\ns_waitcnt lgkmcnt(0)')
    a('s_barrier')
    stamp('S', 'smdone', SST)
    a(f's_lshl_b32 s9, s6, 4\nv_mov_b32 v13, s9\nds_read_b128 v[8:11], v13 offset:{L_LS}')
    a(f's_lshl_b32 s9, s6, 11\ns_add_u32 s9, s9, {L_EP}\nv_lshl_add_u32 v15, v0, 2, s9')
    a(f'v_and_b32 v17, 3, v0\nv_lshlrev_b32 v16, 9, v17\nv_and_b32 v17, 60, v0\nv_add_u32 v16, v16, v17\ns_lshl_b32 s9, s6, 6\ns_add_u32 s9, s9, {L_EP}\nv_add_u32 v16, s9, v16')
    a(f'v_lshlrev_b32 v17, 2, v0')
    saddr('s15', (('s4', 15), ('s5', 8), ('s6', 13)), M1)
    a('s_mov_b32 s16, 0x05040100\ns_mov_b32 s17, 0x07060302')
    a('s_waitcnt lgkmcnt(0)')
    a('v_add_f32 v8, v8, v9\nv_add_f32 v10, v10, v11\nv_add_f32 v8, v8, v10\nv_rcp_f32 v18, v8')
    AT = RING
    b4_done = False
    if vshrink is not None: lead = st['I'] - 64
    for G in range(8):
        a.cand()
        for p in range(4):
            n = 64 + 8*G + 2*p
            k0, k1 = slot(st['where'][n]), slot(st['where'][n+1])
            a(f's_waitcnt vmcnt({st["I"] - (n+2)})')
            lastp = epi and G == 7 and p == 3
            if lastp: stamp('S', 'lastdata', SST)
            pm = [f'v_perm_b32 v{AT+8*d+p}, v{k1+d}, v{k0+d}, s16\nv_perm_b32 v{AT+8*d+4+p}, v{k1+d}, v{k0+d}, s17' for d in range(4)]
            for d in range(2 if lastp else 4): a(pm[d])
            a.cand()
            st['free'] += [st['where'][n], st['where'][n+1]]
            C = n + 2
            ld_ = lead_end if (lead_end and C >= 128 - n_end) else lead_ss
            if vshrink is not None:
                lead = max(lead_ss, lead - vshrink); ld_ = lead
            while st['I'] < C + ld_ and can_issue(): issue(pace=(ld_ > D + 1))
            if st['I'] == 128 and not b4_done and C >= b4lead:
                a('s_barrier'); b4_done = True
                stamp('S', 'lastiss', SST)
        if G == 7 and not epi: stamp('S', 'lastdata', SST)
        for dd in range(8):
            a(f'v_mfma_f32_16x16x32_bf16 v[{ACC+4*dd}:{ACC+4*dd+3}], v[{P+4*G}:{P+4*G+3}], v[{AT+4*dd}:{AT+4*dd+3}], {"0" if G == 0 else f"v[{ACC+4*dd}:{ACC+4*dd+3}]"}')
            if epi and G == 7 and dd < 2: a(pm[2 + dd])
            if epi and G == 7 and dd == 6: a(f'ds_write2st64_b32 v15, v{ACC}, v{ACC+4} offset0:0 offset1:1')
    for dd in range(2 if epi else 0, 8, 2): a(f'ds_write2st64_b32 v15, v{ACC+4*dd}, v{ACC+4*dd+4} offset0:{dd} offset1:{dd+1}')
    a('s_waitcnt lgkmcnt(0)')
    a('s_barrier      ; B5: partial outputs of the four waves')
    for w in range(4): a(f'ds_read2st64_b32 v[{4+2*w}:{5+2*w}], v16 offset0:{8*w} offset1:{8*w+1}')
    a('s_waitcnt lgkmcnt(2)\nv_add_f32 v4, v4, v6\nv_add_f32 v5, v5, v7\ns_waitcnt lgkmcnt(0)\nv_add_f32 v8, v8, v10\nv_add_f32 v9, v9, v11')
    a('v_add_f32 v4, v4, v8\nv_add_f32 v5, v5, v9\nv_mul_f32 v4, v4, v18\nv_mul_f32 v5, v5, v18\nv_cvt_pk_bf16_f32 v4, v4, v5\nv_min_u32 v4, -2, v4')
    dual_store(f'buffer_store_dword v4, v17, {srd(SWS)}, s15 offen', 'm1')
    stamp('S', 'pub', SST)
    stamp_store(SST)
    a('s_endpgm')

    if dbg_nocomp:
        keepmn = ('v_writelane', 'v_lshlrev_b32 v17, 2', 'v_mov_b32 v12, 0', 'v_readfirstlane', 'v_lshlrev_b32 v%d' % (SST + 1))
        pat = {1: ('v_',), 2: ('v_mfma',), 3: ('v_perm_b32', 'v_permlane', 'v_add', 'v_cvt', 'v_mul', 'v_fma', 'v_exp', 'v_max', 'v_and', 'v_mov_b32_dpp')}[dbg_nocomp]
        a.L[smain0:] = [l for l in a.L[smain0:] if not (l.startswith(pat) and not l.startswith(keepmn))]
    a('; ================================================================== H mid')
    a('L_Hmid:')
    if dbg_cbrot: a('s_and_b32 s17, s5, 7')
    a.cand()
    W8, WOB, GUB, WDB, A1, DW, Y = 28, 44, 60, 76, 100, 132, 164
    VM = 17
    a('v_lshrrev_b32 v3, 4, v0\nv_and_b32 v4, 15, v0\nv_lshlrev_b32 v5, 4, v3\nv_and_b32 v6, 7, v0')
    a('s_mov_b32 s12, 0xffff0000\ns_lshl_b32 s29, s4, 2\ns_add_u32 s29, s29, s18')
    a(f's_cmp_gt_u32 s4, {nf}\ns_subb_u32 s11, s4, 0\ns_cmp_eq_u32 s4, {nf}\ns_cselect_b32 s11, 7, s11\ns_lshl_b32 s97, s11, 2\ns_add_u32 s97, s97, s18')
    a(f'v_lshlrev_b32 v7, 1, v0\ns_lshl_b32 s9, s17, 7\nbuffer_load_ushort v40, v7, {srd(SX)}, s9 offen')
    a('v_lshlrev_b32 v25, 2, v0\nv_lshlrev_b32 v19, 4, v0')
    a('v_lshlrev_b32 v20, 8, v4\nv_add_u32 v20, v20, v5\nv_add_u32 v7, 0x1000, v20')
    saddr('s20', (('s29', 13), ('s6', 6)), M1)
    saddr('s21', (('s17', 13), ('s29', 8)), M2)
    saddr('s22', (('s17', 13), ('s6', 11)), M2)
    a(f'v_lshlrev_b32 v23, 4, v4\nv_lshl_add_u32 v23, v3, 2, v23\ns_lshl_b32 s9, s6, 8\nv_add_u32 v23, s9, v23\nv_and_b32 v12, 3, v0')
    AH = 92
    for d in range(8): a(f'v_mov_b32 v{AH+d}, 0x3f803f80')
    lanetag(16, 12)
    a(f'v_mov_b32 v{VM}, {TAGM}')
    a(f's_lshl_b32 s9, s6, 8\ns_add_u32 s9, s9, {L_YW}\nv_add_u32 v26, s9, v25')
    a(f'v_lshlrev_b32 v27, 4, v4\nv_lshl_add_u32 v27, v3, 11, v27')
    saddr('s23', (('s97', 14), ('s17', 8), ('s6', 12)), MF)
    saddr('s24', (('s97', 14), ('s6', 12)), MF)
    saddr('s25', (('s97', 11), ('s17', 8), ('s6', 7)), M3)
    a(f'v_mov_b32 v42, 0\nds_read_b32 v42, v42 offset:{L_FAST}')
    a('s_lshl_b32 s9, s17, 1\ns_sub_u32 s28, s11, s9\ns_add_u32 s28, s28, 14\ns_mul_i32 s9, s28, 37\ns_lshr_b32 s9, s9, 8\ns_mul_i32 s9, s9, 7\ns_sub_u32 s28, s28, s9\ns_lshl_b32 s28, s28, 2\ns_add_u32 s28, s28, s18')
    a(f's_lshl_b32 s15, s17, 3\ns_add_u32 s15, s15, s28')
    a(f'v_and_b32 v12, 1, v0\nv_lshrrev_b32 v36, 1, v0\nv_lshlrev_b32 v36, 11, v36\nv_lshl_add_u32 v36, v12, 4, v36')
    saddr('s84', (('s15', 5),), M3)
    a(f'v_lshl_add_u32 v37, v12, 2, v3\ns_lshl_b32 s9, s28, 5\nv_lshl_add_u32 v38, v37, 2, s9\nv_lshlrev_b32 v37, 1, v37\ns_lshl_b32 s15, s15, 4')
    a.cand()
    a('s_waitcnt vmcnt(0) lgkmcnt(0)\nv_lshlrev_b32 v40, 16, v40\nv_readfirstlane_b32 s39, v42')
    def wo_issue():
        if dbg_now: return
        saddr('s9', (('s29', 17), ('s6', 15), ('s17', 7)))
        a(f's_lshl_b32 s10, s6, 12\ns_add_u32 m0, s10, {L_WQ}')
        for m in range(4):
            a(f'buffer_load_dwordx4 v18, {srd(SWO)}, s9 offen nt lds')
            if m < 3: a('s_add_u32 m0, m0, 1024\ns_add_u32 s9, s9, 0x2000')
    a('; For the group without an F role these offsets lie past the end of the weight buffers: the loads return zeros.')
    def gu_addr():
        a(f'v_lshrrev_b32 v14, 3, v0\nv_mul_u32_u24 v14, 0xe00, v14\nv_lshl_add_u32 v14, v6, 4, v14')
        a(f's_mul_i32 s30, s17, {64*3584}\ns_mul_i32 s10, s6, {16*3584}\ns_add_u32 s30, s30, s10\ns_lshl_b32 s10, s97, 7\ns_add_u32 s30, s30, s10')
        a(f's_cmp_eq_u32 s4, {nf}\ns_cselect_b32 s30, 0x1000000, s30\ns_add_u32 s31, s30, {8*3584 - 1024}')
        saddr('s32', (('s97', 16), ('s6', 14), ('s17', 7)))
        a(f's_add_u32 s19, s32, {0x2000 - 1024}\ns_lshl_b32 s13, s6, 11\ns_add_u32 s85, s13, {L_G}\ns_add_u32 s87, s13, {L_U}\ns_add_u32 s33, s13, {L_D}')
        if wd == 'p2':
            saddr('s32', (('s97', 16), ('s17', 7), ('s6', 6)))
            a(f's_cmp_gt_u32 s6, 1\ns_cselect_b32 s32, 0x1000000, s32\ns_lshl_b32 s33, s6, 12\ns_add_u32 s33, s33, {L_D}')
            a('v_lshrrev_b32 v41, 2, v0\nv_lshlrev_b32 v41, 10, v41\nv_and_b32 v12, 3, v0\nv_lshl_add_u32 v41, v12, 4, v41')
        a('v_lshrrev_b32 v18, 3, v0\nv_lshlrev_b32 v18, 10, v18\nv_lshl_add_u32 v18, v6, 4, v18')
        a(f'v_lshrrev_b32 v1, 5, v0\nv_lshl_add_u32 v1, v1, 3, v6\ns_lshl_b32 s9, s6, 4\nv_add_u32 v1, s9, v1\nv_lshlrev_b32 v1, 1, v1')
    def gu_issue(when):
        if dbg_now: return 0
        n = 0
        for w_, base, sr in ((wg, 's85', SG), (wu, 's87', SU)):
            if w_ != when: continue
            a(f's_mov_b32 m0, {base}')
            a(f'buffer_load_dwordx4 v14, {srd(sr)}, s30 offen nt lds')
            a(f'buffer_load_dwordx4 v14, {srd(sr)}, s31 offen offset:1024 nt lds')
            n += 2
        return n
    def dn_issue(when):
        if dbg_now or wd != when: return 0
        if wd == 'p2':
            a(f's_mov_b32 m0, s33')
            for m in range(4):
                a(f'buffer_load_dwordx4 v41, {srd(SD)}, s32 offen offset:{1024*m} nt lds')
                if m < 3: a(f's_add_u32 s32, s32, {0x4000 - 1024}')
            return 4
        a(f's_mov_b32 m0, s33')
        a(f'buffer_load_dwordx4 v18, {srd(SD)}, s32 offen nt lds')
        a(f'buffer_load_dwordx4 v18, {srd(SD)}, s19 offen offset:1024 nt lds')
        return 2
    adapt = 'adapt' in (wg, wu, wd)
    gu_late = 'hop1' in (wg, wu) or 'adapt' in (wg, wu)
    def wo_read():
        for cg in range(4):
            for eh in range(2): a(f'ds_read_b64_tr_b16 v[{WOB+4*cg+2*eh}:{WOB+4*cg+2*eh+1}], v22 offset:{L_WQ + eh*512 + cg*32}')
    def gu_read():
        for s_ in range(2):
            for sb in range(2):
                for eh in range(2): a(f'ds_read_b64_tr_b16 v[{GUB+8*sb+4*s_+2*eh}:{GUB+8*sb+4*s_+2*eh+1}], v15 offset:{L_G + s_*1024 + eh*512 + sb*16}')
    def dn_read():
        for cgl in range(2):
            for s_ in range(2):
                for eh in range(2):
                    off = L_D + (s_*2048 + eh*256 if wd == 'p2' else s_*4096 + eh*512) + cgl*32
                    a(f'ds_read_b64_tr_b16 v[{WDB+8*cgl+4*s_+2*eh}:{WDB+8*cgl+4*s_+2*eh+1}], v39 offset:{off}')
    gu_addr()
    a('v_lshlrev_b32 v15, 10, v3\nv_bfe_u32 v13, v0, 2, 2\nv_lshl_add_u32 v15, v13, 7, v15\nv_and_b32 v12, 3, v0\nv_lshl_add_u32 v22, v12, 3, v15\ns_lshl_b32 s9, s6, 6\nv_add_u32 v39, s9, v22\ns_lshl_b32 s9, s6, 12\nv_add_u32 v22, s9, v22')
    a(f'v_and_b32 v12, 1, v0\nv_lshl_add_u32 v15, v12, 3, v15\nv_bfe_u32 v12, v0, 1, 1\nv_mul_u32_u24 v12, {L_U - L_G}, v12\nv_add_u32 v15, v15, v12\nv_lshl_add_u32 v15, v3, 10, v15\ns_lshl_b32 s9, s6, 5\nv_add_u32 v15, s9, v15')
    if wd == 'p2': a('v_lshlrev_b32 v39, 9, v3\nv_lshl_add_u32 v39, v13, 6, v39\nv_and_b32 v12, 3, v0\nv_lshl_add_u32 v39, v12, 3, v39\ns_lshl_b32 s9, s6, 12\nv_add_u32 v39, s9, v39')
    def m1_clear():
        a('; empty the own M1 and MF slots; the log-sum-exp words are published only after these stores are acknowledged')
        a('v_mov_b32 v8, -1\nv_mov_b32 v9, -1\nv_mov_b32 v10, -1\nv_mov_b32 v11, -1\nv_lshlrev_b32 v12, 13, v3\nv_lshl_add_u32 v12, v4, 4, v12')
        saddr('s9', (('s4', 15), ('s5', 8)), M1)
        if not dbg_noclr: dual_store(f'buffer_store_dwordx4 v[8:11], v12, {srd(SWS)}, s9 offen', 'clr')
        if mfs:
            a(f's_cmp_eq_u32 s4, {nf}\ns_cbranch_scc1 L_clrf\ns_add_u32 s9, s23, 8192')
            dual_store(f'buffer_store_dwordx4 v[8:11], v27, {srd(SWS)}, s23 offen', 'clr2')
            dual_store(f'buffer_store_dwordx4 v[8:11], v27, {srd(SWS)}, s9 offen', 'clr3')
            a('L_clrf:')
        a('s_waitcnt vmcnt(0)')
    if clrpos == 1:
        a('s_cmp_lg_u32 s3, 0\ns_cbranch_scc1 L_clre'); m1_clear(); a('L_clre:')
    a('s_barrier      ; B2')
    a('s_barrier      ; B3')
    a.cand()
    if dbg_nomid: a('s_branch L_noearly')
    gu_issue('mid'); dn_issue('mid')
    a('s_cmp_lg_u32 s3, 0\ns_cbranch_scc1 L_nolam')
    if clrpos == 3: m1_clear()
    if touch:
        a('; read the own M2 / M3 slots once, so that the lines sit in the memory-side cache when they are written')
        a(f'buffer_load_dword v{Y+8}, v25, {srd(SWS)}, s25 offen sc1\nbuffer_load_dword v{Y+9}, v25, {srd(SWS)}, s21 offen sc1')
    a("; publish the log2-sum-exp of this workgroup's chunk, collect those of the head it will combine")
    a(f'v_and_b32 v12, 3, v0\nv_lshlrev_b32 v12, 4, v12\nds_read_b128 v[8:11], v12 offset:{L_MX}\nds_read_b128 v[{Y}:{Y+3}], v12 offset:{L_LS}\ns_mov_b32 s14, {LOG2E}')
    saddr('s11', (('s4', 10), ('s5', 5)), LAM)
    saddr('s27', (('s4', 10), ('s18', 3)), LAM)
    a('s_waitcnt lgkmcnt(0)')
    a('v_max3_f32 v8, v8, v9, v10\nv_max_f32 v8, v8, v11'); rbf(8)
    a(f'v_add_f32 v9, v{Y}, v{Y+1}\nv_add_f32 v10, v{Y+2}, v{Y+3}\nv_add_f32 v9, v9, v10\nv_log_f32 v9, v9\nv_mul_f32 v8, s14, v8\nv_add_f32 v8, v8, v9\nv_mov_b32 v9, s96')
    a(f'v_lshlrev_b32 v12, 3, v0\ns_mov_b64 exec, 15')
    dual_store(f'buffer_store_dwordx2 v[8:9], v12, {srd(SWS)}, s11 offen', 'lam')
    a('s_mov_b64 exec, -1\nv_and_b32 v12, 31, v0\nv_lshlrev_b32 v12, 5, v12\ns_mov_b32 s14, 0')
    a.cand()
    a('L_lpoll:')
    if lamdelay: a(f's_sleep {lamdelay}')
    a(f'buffer_load_dwordx2 v[10:11], v12, {srd(SWS)}, s27 offen sc1')
    a(f's_add_u32 s14, s14, 1\ns_cmp_gt_u32 s14, {SPIN}\ns_waitcnt vmcnt(0)\ns_cbranch_scc1 L_ldone')
    a('v_cmp_ne_u32 vcc, s96, v11\ns_cbranch_vccnz L_lpoll')
    a('L_ldone:')
    a('v_mov_b32 v8, v10'); allreduce(8, 9, 'max')
    a('v_sub_f32 v10, v10, v8\nv_exp_f32 v10, v10\ns_nop 0\nv_mov_b32 v8, v10'); allreduce(8, 9, 'add')
    a(f'v_rcp_f32 v8, v8\nv_add_f32 v10, v10, v10\nv_mul_f32 v10, v10, v8\ns_mov_b32 exec_hi, 0\nds_write_b32 v25, v10 offset:{L_W}\ns_mov_b64 exec, -1')
    a('L_nolam:')
    stamp('H', 'lam', HST)
    R = Y + 4
    m1_loads = [f'buffer_load_dwordx4 v[{A1+4*t}:{A1+4*t+3}], {("v20", "v7")[t]}, {srd(SWS)}, s20 offen sc1' for t in range(2)]
    m2_loads = [f'buffer_load_dwordx4 v[{Y+4*j}:{Y+4*j+3}], v19, {srd(SWS)}, s22 offen offset:{j*1024} sc1' for j in range(2)]
    mf_loads = [f'buffer_load_dwordx4 v[{A1+4*j}:{A1+4*j+3}], v19, {srd(SWS)}, s24 offen offset:{j*1024} sc1' for j in range(4)]
    m3_loads = [f'buffer_load_dwordx4 v[{R}:{R+3}], v36, {srd(SWS)}, s84 offen sc1']
    if edelay: a(f's_cmp_eq_u32 s3, 0\ns_cbranch_scc1 L_ned\ns_sleep {edelay}\nL_ned:')
    if '1' in early:
        for l in m1_loads: a(l)
    if 'h' in early:
        a('s_cmp_lg_u32 s3, 2\ns_cbranch_scc1 L_noearly4')
        saddr('s9', (('s29', 13), ('s17', 10)), M1)
        a(f'buffer_load_dwordx4 v[{A1}:{A1+3}], v19, {srd(SWS)}, s9 offen sc1')
        a('L_noearly4:')
    a(f's_cmp_eq_u32 s4, {nf}\ns_cbranch_scc1 L_noearly')
    if '2' in early:
        for l in m2_loads: a(l)
    if 'f' in early:
        a('s_cmp_lg_u32 s17, 0\ns_cbranch_scc1 L_noearly2')
        for l in mf_loads: a(l)
        a('L_noearly2:')
    if 'g' in early:
        a('s_cmp_lg_u32 s3, 1\ns_cbranch_scc1 L_noearly3')
        saddr('s9', (('s97', 14), ('s17', 11)), MF)
        for j in range(2): a(f'buffer_load_dwordx4 v[{A1+4*j}:{A1+4*j+3}], v19, {srd(SWS)}, s9 offen offset:{j*1024} sc1')
        a('L_noearly3:')
    if 'o' in early:
        a(f's_cmp_gt_u32 s28, 7\ns_cbranch_scc1 L_noearly5\ns_cmp_lg_u32 s3, 2\ns_cbranch_scc1 L_noearly5\nbuffer_load_ushort v{A1}, v37, {srd(SO)}, s15 offen\nL_noearly5:')
    if '3' in early:
        a('s_cmp_gt_u32 s28, 7\ns_cbranch_scc1 L_noearly\ns_cmp_lg_u32 s3, 2\ns_cbranch_scc1 L_noearly')
        for l in m3_loads: a(l)
    a('L_noearly:')
    a('s_waitcnt vmcnt(0) lgkmcnt(0)')
    a.cand()
    for k in range(shift): a('s_nop 0')
    a('s_barrier      ; B4')
    if wo == 'b4': wo_issue()
    nwf = gu_issue('b4') + dn_issue('b4')
    if adapt: a('s_mov_b32 s86, 0')
    a(f'ds_read_b128 v[{W8}:{W8+3}], v5 offset:{L_W}\nds_read_b128 v[{W8+4}:{W8+7}], v5 offset:{L_W + 64}')
    a('s_barrier      ; B5')
    stamp('H', 'b5', HST)
    if wo == 'b5':
        assert nwf == 0
        wo_issue()
    nwf += gu_issue('b5') + dn_issue('b5')
    if dbg_notail:
        stamp('H', 'out', HST); a('s_branch L_Hend')
    a.cand()
    names = ('p1', 'p2', 'p25', 'p3')
    def poll(name, loads, base, tmp=8, tagged=True, after_first=None):
        n = len(loads); nreg = 4 * n
        a('s_mov_b32 s14, 0')
        dl = pd[names.index(name)]
        if name == 'p25' and local and pdslow: a(f's_cmp_lg_u32 s39, 0\ns_cbranch_scc1 L_{name}_0\ns_sleep {pdslow}\nL_{name}_0:')
        elif dl: a(f's_sleep {dl}')
        if after_first:
            for l in loads: a(l)
            after_first()
            a(f's_branch L_{name}_c')
        a(f'L_{name}:')
        for l in loads: a(l)
        a(f's_add_u32 s14, s14, 1\ns_cmp_gt_u32 s14, {SPIN}\ns_cbranch_scc1 L_{name}_x')
        if tagged:
            prog = progw and not (name == 'p2' and (pretouch or wd == 'p2'))
            a(f'L_{name}_c:' if prog else f's_waitcnt vmcnt(0)\nL_{name}_c:')
            tagcheck(base, n, tmp, waits=prog)
        else:
            a(f'L_{name}_c:')
            for k in range(n):
                r = base + 4*k
                a(f's_waitcnt vmcnt({n-1-k})')
                if k == 0: a(f'v_max_u32 v{tmp}, v{r}, v{r+1}\nv_max_u32 v{tmp+1}, v{r+2}, v{r+3}')
                else: a(f'v_max3_u32 v{tmp}, v{tmp}, v{r}, v{r+1}\nv_max3_u32 v{tmp+1}, v{tmp+1}, v{r+2}, v{r+3}')
            a(f'v_max_u32 v{tmp}, v{tmp}, v{tmp+1}')
            a(f'v_cmp_eq_u32 vcc, -1, v{tmp}')
        if name == 'p1' and adapt:
            a(f's_and_b64 exec, exec, vcc\ns_cbranch_execnz L_p1_more')
            keep = a.L; a.L = []
            a(f'L_p1_more:\ns_cmp_lg_u32 s14, 0\ns_cbranch_scc1 L_p1\ns_bcnt1_i32_b64 s9, exec\ns_cmp_lt_u32 s9, {4 * thr}\ns_cbranch_scc1 L_p1')
            a('s_mov_b64 s[88:89], exec\ns_mov_b64 exec, -1\ns_mov_b32 s86, 1')
            gu_issue('adapt'); dn_issue('adapt')
            a('s_mov_b64 exec, s[88:89]\ns_branch L_p1')
            stubs.append('\n'.join(a.L)); a.L = keep
        else:
            a(f's_and_b64 exec, exec, vcc\ns_cbranch_execnz L_{name}')
        a(f'L_{name}_x:')
        a('s_mov_b64 exec, -1')
        if stamps is True: a(f's_add_u32 s14, s14, 1\nv_writelane_b32 v{HST}, s14, {40 + names.index(name)}')
    def p1_first():
        a(f's_waitcnt vmcnt({nwf + 2})'); wo_read()
    if p1nat:
        a(f's_waitcnt vmcnt({nwf})'); wo_read()
    poll('p1', m1_loads, A1, tagged=False, after_first=None if p1nat else p1_first)
    a('s_waitcnt vmcnt(0) lgkmcnt(0)')
    stamp('H', 'hop1', HST)
    if preinv:
        a(f's_cmp_lg_u32 s3, 0\ns_cbranch_scc1 L_npi\nv_not_b32 v12, v16\nbuffer_store_dword v12, v25, {srd(SWS)}, s21 offen sc1\nL_npi:')
    fm = [f'v_mul_f32 v8, v{W8}, v{DW}'] + [f'v_fmac_f32 v8, v{W8+r}, v{DW+r}' for r in range(1, 8)]
    for cg in range(4):
        for t in range(2):
            a(f'v_mfma_f32_16x16x32_bf16 v[{DW+8*cg+4*t}:{DW+8*cg+4*t+3}], v[{A1+4*t}:{A1+4*t+3}], v[{WOB+4*cg}:{WOB+4*cg+3}], 0')
            if wint and 2*cg + t >= 6:
                for k in range(2): a(fm.pop(0))
    def late_issue():
        if adapt:
            a('s_cmp_lg_u32 s86, 0\ns_cbranch_scc1 L_ad')
            gu_issue('adapt'); dn_issue('adapt')
            a('L_ad:')
        gu_issue('hop1'); dn_issue('hop1')
    if lpos == 0: late_issue()
    if wint:
        for l in fm: a(l)
    for cg in range(1 if wint else 0, 4):
        a(f'v_pk_mul_f32 v[{DW+8*cg}:{DW+8*cg+1}], v[{W8}:{W8+1}], v[{DW+8*cg}:{DW+8*cg+1}]')
        for r in range(2, 8, 2): a(f'v_pk_fma_f32 v[{DW+8*cg}:{DW+8*cg+1}], v[{W8+r}:{W8+r+1}], v[{DW+8*cg+r}:{DW+8*cg+r+1}], v[{DW+8*cg}:{DW+8*cg+1}]')
    for cg in ((2, 1, 3) if wint else (0, 2, 1, 3)): a(f'v_add_f32 v{8+cg}, v{DW+8*cg}, v{DW+8*cg+1}')
    a('v_permlane32_swap_b32 v8, v10\nv_add_f32 v8, v8, v10\nv_permlane32_swap_b32 v9, v11\nv_add_f32 v9, v9, v11\nv_permlane16_swap_b32 v8, v9\nv_add_f32 v8, v8, v9')
    a('ds_write_b32 v26, v8')
    if lpos == 1: late_issue()
    a('s_waitcnt lgkmcnt(0)')
    a('s_barrier      ; BW')
    a('s_cmp_lg_u32 s3, 0\ns_cbranch_scc1 L_nowpub')
    a(f'ds_read2st64_b32 v[8:9], v25 offset0:{L_YW//256} offset1:{L_YW//256+1}\nds_read2st64_b32 v[10:11], v25 offset0:{L_YW//256+2} offset1:{L_YW//256+3}')
    a(f's_waitcnt lgkmcnt(0)\nv_add_f32 v8, v8, v9\nv_add_f32 v10, v10, v11\nv_add_f32 v8, v8, v10\nv_bfi_b32 v8, v{VM}, v16, v8')
    a(f'buffer_store_dword v8, v25, {srd(SWS)}, s21 offen sc1')
    a('L_nowpub:')
    if lpos == 2: late_issue()
    stamp('H', 'wpub', HST)
    a(f's_cmp_eq_u32 s4, {nf}\ns_cbranch_scc1 L_Hend')
    if not gu_late: gu_read()
    a.cand()
    def p2_first():
        npt = 0
        if local and pretouch:
            for l in mf_loads: a(l)
            npt = 4
        npt += dn_issue('p2')
        if npt or not progw: a(f's_waitcnt vmcnt({npt})')
    poll('p2', m2_loads, Y, after_first=p2_first)
    stamp('H', 'hop2', HST)
    for e in range(4): a(f'v_add_f32 v{Y+e}, v{Y+e}, v{Y+4+e}')
    a(f'v_permlane32_swap_b32 v{Y}, v{Y+2}\nv_permlane32_swap_b32 v{Y+1}, v{Y+3}\nv_add_f32 v{Y}, v{Y}, v{Y+2}\nv_add_f32 v{Y+1}, v{Y+1}, v{Y+3}')
    a(f'v_permlane16_swap_b32 v{Y}, v{Y+1}\nv_add_f32 v8, v{Y}, v{Y+1}')
    a(f'ds_write_b32 v23, v8 offset:{L_HP}\ns_waitcnt lgkmcnt(0)')
    a('s_barrier      ; BF')
    a(f'ds_read2st64_b32 v[8:9], v25 offset0:{L_HP//256} offset1:{L_HP//256+1}\nds_read2st64_b32 v[10:11], v25 offset0:{L_HP//256+2} offset1:{L_HP//256+3}')
    if gu_late: gu_read()
    nx = 8 if gu_late else 0
    a(f's_waitcnt lgkmcnt({nx + 1})\nv_add_f32 v8, v8, v40\nv_add_f32 v8, v8, v9\ns_waitcnt lgkmcnt({nx})\nv_add_f32 v10, v10, v11\nv_add_f32 v21, v8, v10')
    a(f'v_mov_b32_dpp v9, v21 quad_perm:[1,0,3,2] {FULL}\nv_cvt_pk_bf16_f32 v8, v21, v9')
    a(f's_mov_b32 exec_lo, 0xdddddddd\ns_mov_b32 exec_hi, 0xdddddddd')
    for d in range(8): a(f'v_mov_b32_dpp v{AH+d}, v8 row_newbcast:{2*d} {FULL}')
    a('s_mov_b64 exec, -1')
    for s_ in range(2):
        a(f'v_mfma_f32_16x16x32_bf16 v[{DW+8}:{DW+11}], v[{AH+4*s_}:{AH+4*s_+3}], v[{AH+4*s_}:{AH+4*s_+3}], {"0" if s_ == 0 else f"v[{DW+8}:{DW+11}]"}')
        if nx: a(f's_waitcnt lgkmcnt({4 - 4*s_})')
        for sb in range(2):
            a(f'v_mfma_f32_16x16x32_bf16 v[{DW+4*sb}:{DW+4*sb+3}], v[{AH+4*s_}:{AH+4*s_+3}], v[{GUB+8*sb+4*s_}:{GUB+8*sb+4*s_+3}], {"0" if s_ == 0 else f"v[{DW+4*sb}:{DW+4*sb+3}]"}')
    a('s_mov_b32 exec_hi, 0')
    a(f'v_mov_b32_dpp v10, v{DW+8} quad_perm:[0,0,2,3] {FULL}\nv_mov_b32_dpp v11, v{DW+9} quad_perm:[0,0,2,3] {FULL}')
    a('v_min_u32 v10, -2, v10\nv_min_u32 v11, -2, v11' if mfs else f'v_bfi_b32 v10, v{VM}, s36, v10\nv_bfi_b32 v11, v{VM}, s37, v11')
    a(f'v_mov_b32_dpp v{DW}, v{DW+4} quad_perm:[0,1,2,3] row_mask:2 bank_mask:0xf\nv_mov_b32_dpp v{DW+1}, v{DW+5} quad_perm:[0,1,2,3] row_mask:2 bank_mask:0xf')
    a(f'v_min_u32 v8, -2, v{DW}\nv_min_u32 v9, -2, v{DW+1}' if mfs else f'v_bfi_b32 v8, v{VM}, s34, v{DW}\nv_bfi_b32 v9, v{VM}, s35, v{DW+1}')
    if pretouch or wd == 'p2': a('s_waitcnt vmcnt(0)')
    dual_store(f'buffer_store_dwordx4 v[8:11], v27, {srd(SWS)}, s23 offen', 'mf')
    a('s_mov_b64 exec, -1')
    stamp('H', 'f1pub', HST)
    a.cand()
    a('s_mov_b32 s13, 0x3b000000\ns_mov_b32 s16, 0xc0135761\ns_mov_b32 s26, 0xbdd2d3e8')
    if not p25first: dn_read()
    poll('p25', mf_loads, A1, tmp=12, tagged=not mfs, after_first=dn_read if p25first else None)
    a('s_waitcnt vmcnt(0)')
    stamp('H', 'hop25', HST)
    Z = A1
    for e in range(4): a(f'v_add_f32 v{Z+e}, v{Z+e}, v{Z+4+e}\nv_add_f32 v{Z+8+e}, v{Z+8+e}, v{Z+12+e}')
    for e in range(4): a(f'v_permlane32_swap_b32 v{Z+e}, v{Z+8+e}')
    for e in range(4): a(f'v_add_f32 v{Z+e}, v{Z+e}, v{Z+8+e}')
    for e in range(4): a(f'v_mov_b32 v{Z+4+e}, v{Z+e}')
    for e in (3, 2, 0, 1): a(f'v_permlane16_swap_b32 v{Z+e}, v{Z+4+e}')
    for e in (3, 2, 0, 1): a(f'v_add_f32 v{Z+e}, v{Z+e}, v{Z+4+e}')
    a(f'v_mul_f32 v13, s13, v{Z+3}\nv_mul_f32 v14, v13, v13\nv_fma_f32 v12, v{Z+2}, s13, -v14\nv_max_f32 v12, 0, v12\nv_add_f32 v12, 0x3727c5ac, v12\nv_rsq_f32 v12, v12')
    a(f'v_fma_f32 v14, -v13, v{Z+1}, v{Z}\nv_mul_f32 v14, v14, v12')
    a('v_mul_f32 v15, v14, v14\nv_mov_b32 v12, s16\nv_fmac_f32 v12, s26, v15\nv_mul_f32 v12, v12, v14\nv_exp_f32 v12, v12')
    a(f'v_mov_b32_dpp v15, v14 row_ror:8 {FULL}')
    a('v_add_f32 v12, 1.0, v12\nv_rcp_f32 v12, v12\nv_mul_f32 v14, v14, v15\ns_mov_b32 exec_lo, 0xff\ns_mov_b32 exec_hi, 0xff\nv_mul_f32 v14, v14, v12')
    a(f'v_cvt_pk_bf16_f32 v14, v14, v14\nds_write_b16 v1, v14 offset:{L_ACT}\ns_mov_b64 exec, -1\ns_waitcnt lgkmcnt(0)')
    a('s_barrier      ; BA')
    a('s_cmp_gt_u32 s3, 1\ns_cbranch_scc1 L_R')
    a(f'ds_read_b128 v[{Z}:{Z+3}], v5 offset:{L_ACT}\nds_read_b128 v[{Z+4}:{Z+7}], v5 offset:{L_ACT + 64}')
    for s_ in range(2):
        a(f's_waitcnt lgkmcnt({1 - s_})')
        for cgl in range(2):
            a(f'v_mfma_f32_16x16x32_bf16 v[{DW+4*cgl}:{DW+4*cgl+3}], v[{Z+4*s_}:{Z+4*s_+3}], v[{WDB+8*cgl+4*s_}:{WDB+8*cgl+4*s_+3}], {"0" if s_ == 0 else f"v[{DW+4*cgl}:{DW+4*cgl+3}]"}')
    a('s_mov_b32 exec_hi, 0')
    a(f'v_mov_b32_dpp v{DW}, v{DW+4} quad_perm:[0,1,2,3] row_mask:2 bank_mask:0xf\nv_bfi_b32 v8, v{VM}, v16, v{DW}')
    a(f'buffer_store_dword v8, v25, {srd(SWS)}, s25 offen sc1')
    stamp('H', 'fpub', HST)
    a('s_branch L_Hend')
    a('L_R:')
    a('s_cmp_eq_u32 s3, 2\ns_cbranch_scc1 L_R2')
    a(f's_cmp_lg_u32 s2, 0\ns_cbranch_scc1 L_Hend\ns_mov_b64 exec, 1\nv_mov_b32 v9, s96\nv_mov_b32 v10, {EPOCH}\nbuffer_store_dword v9, v10, {srd(SWS)}, 0 offen sc1\ns_branch L_Hend')
    a('L_R2:')
    a('s_cmp_gt_u32 s28, 7\ns_cbranch_scc1 L_Hend')
    a.cand()
    a(f'ds_bpermute_b32 v21, v38, v21')
    for e in range(4): a(f'v_mov_b32 v{R+e}, 0')
    a('s_waitcnt lgkmcnt(0)'); rbf(21)
    a('s_mov_b32 exec_hi, 0x00ffffff')
    poll('p3', m3_loads, R)
    stamp('H', 'hop3', HST)
    a(f'v_permlane32_swap_b32 v{R}, v{R+2}\nv_permlane32_swap_b32 v{R+1}, v{R+3}\nv_add_f32 v{R}, v{R}, v{R+2}\nv_add_f32 v{R+1}, v{R+1}, v{R+3}')
    a(f'v_permlane16_swap_b32 v{R}, v{R+1}\nv_add_f32 v8, v{R}, v{R+1}')
    a(f'v_add_f32_dpp v8, v8, v8 row_ror:8 {FULL}\nv_add_f32_dpp v8, v8, v8 row_ror:4 {FULL}\nv_add_f32_dpp v8, v8, v8 quad_perm:[2,3,0,1] {FULL}')
    for k in range(dbg_sleep): a('s_sleep 125')
    for k in range(abs(dbg_tlb)):
        a(f's_add_u32 s9, s4, {1 + (k % 7 if dbg_tlb > 0 else 0)}\ns_and_b32 s9, s9, 7\ns_lshl_b32 s9, s9, 23\ns_lshl_b32 s10, s2, 10\ns_add_u32 s9, s9, s10\ns_add_u32 s9, s9, {((k // 7 * 2 + (k & 1)) << 21 if dbg_tlb > 0 else 0) + k * 0x40000 % 0x200000 * (dbg_tlb < 0)}\nbuffer_load_dword v9, v37, {srd(SK)}, s9 offen nt\ns_waitcnt vmcnt(0)')
    rbf(8)
    a('v_add_f32 v8, v8, v21\ns_mov_b32 exec_lo, 0x00030003\ns_mov_b32 exec_hi, 0x00030003\nv_cvt_pk_bf16_f32 v8, v8, v8')
    a(f'buffer_store_short v8, v37, {srd(SO)}, s15 offen {outsc}')
    stamp('H', 'out', HST)
    a('L_Hend:')
    stamp_store(HST)
    a('L_end:')
    a('s_endpgm')
    for t in stubs: a(t)

    head = HEADER + DOC + f'; @launch grid=(256,1,1) block=(512,1,1) lds={L_SP + 4096 * spill if spill else LDS_BYTES}\n'
    al = '' if align is None else f'.p2align 12\n.fill {align // 4}, 4, 0xbf800000\n'
    pre = f'.amdgcn_target "amdgcn-amd-amdhsa--gfx950"\n.text\n.globl {KN}\n{al}.p2align 8\n.type {KN},@function\n'
    post = f'''.section .rodata,"a"
.p2align 6
.amdhsa_kernel {KN}
  .amdhsa_next_free_vgpr 256
  .amdhsa_next_free_sgpr 98
  .amdhsa_accum_offset 256
  .amdhsa_group_segment_fixed_size 0
  .amdhsa_kernarg_size 96
  .amdhsa_user_sgpr_count 2
  .amdhsa_user_sgpr_kernarg_segment_ptr 1
  .amdhsa_system_sgpr_workgroup_id_x 1
  .amdhsa_float_denorm_mode_32 3
.end_amdhsa_kernel
'''
    if not warm:
        return head + pre + '\n'.join(a.render(chosen=[])) + '\n' + post, nst
    saveL = list(a.L)
    a.L = [l.replace('@W0', 'L_warm_end').replace('@W1', 'L_warm_end').replace('@W2', 'L_warm_end') for l in saveL]
    syms = assemble_syms(pre + '\n'.join(a.render(None)) + '\n')
    pos = [syms[f'L_cand{n}'] for n in range(a.ncand)]
    end = syms['L_end']
    chosen = []; last = None
    for n in range(a.ncand):
        nxt = pos[n+1] if n + 1 < a.ncand else end
        if last is None or nxt - last > padgap:
            chosen.append(n); last = pos[n]
    k = len(chosen)
    ent = [0, (k + 2) // 3, (2 * k + 2) // 3]
    a.L = [l.replace('@W0', f'L_pad{ent[0]}').replace('@W1', f'L_pad{ent[1]}').replace('@W2', f'L_pad{ent[2]}') for l in saveL]
    body = a.render(chosen)
    gaps = [pos[chosen[i+1]] - pos[chosen[i]] for i in range(k-1)] + [end - pos[chosen[-1]]]
    print('pads', k, 'first', pos[chosen[0]], 'gaps', gaps, 'code bytes', end, file=sys.stderr)
    return head + pre + '\n'.join(body) + '\n' + post, nst

if __name__ == '__main__':
    kw = eval('dict(' + (sys.argv[2] if len(sys.argv) > 2 else '') + ')')
    s, nst = gen(**kw)
    open(sys.argv[1], 'w').write(s)
    if nst: print(nst)
```

```python
import sys
from asmlib import Asm, assemble_syms
NAME = 'sequential_preLN__gqa_block_cached__glu_gated_geglu__decode'
KN = NAME + '_kernel'

QP   = 0x00000
LAM  = 0x10000
EPOCH = 0x19000
M2   = 0x20000
M1   = 0x40000
M3   = 0x80000
MF   = 0x100000
STAMP = 0x8000000
L_WQ = 0
L_G  = 16384
L_U  = 24576 + 64
L_XN = 33792
L_Q  = 34816
L_MX = 35840
L_LS = 35904
L_FAST = 35968
L_W  = 36096
L_EP = 36864
L_YW = 45568
L_HP = 46592
L_ACT = 47616
L_D  = 47872
L_SP = 56320
LDS_BYTES = 56064
SX, SK, SV, SWQ, SWO, SG, SU, SD, SO, SDBG, SWS = 40, 44, 48, 52, 56, 60, 64, 68, 72, 76, 80
def srd(b): return f's[{b}:{b+3}]'
LOG2E = 0x3fb8aa3b
SPIN = 1 << 16
TAGB = 10
TAGM = 0x3ff
FULL = 'row_mask:0xf bank_mask:0xf'

HEADER = open('cdna_kernels/' + NAME + '.s.ref').read().split('; Override launch')[0]

DOC = """; One persistent launch, 256 workgroups (one per CU) x 8 waves; text written by my own generator script.
;     exact row max / row sum of the workgroup, PV with 16x16x32 MFMA, publish the normalised partial O (M1).
;     R  (sum of 28 partials + h)                                                                   -> d_out
;   owner publishes its log-sum-exp words, which every reader of the slot has received.
"""

def gen(D=6, lead_ss=14, lead_sm=16, lead_end=None, n_end=0, wg='b4', wu='hop1', wd='hop1', thr=8, wint=True, sw='', shift=0, nf=7, p1nat=True, wo='b4', b4lead=0, dalt=0, spread=False, Dv=None, smi=6, kshrink=1, vshrink=1, smx=2, spill=0, edelay=0, mfs=True, p25first=True, boost=None, bfrom=24, bto=48, D1=None, n1=24, wqpace=0, dbg_cbrot=0, epi=True, preinv=False, hfirst=False, D0=11, align=None, qlocal=6, clrpos=1, progw=True, dlo=None, dmask=0xaa, dfrom=0, dstep=1, pcs=18, padgap=900, sfirst=True, hprio=2, sprio=0, lpos=0, qdelay=0, pd=(0, 13, 0, 10), pdslow=0, local=True, pretouch=False, touch=True, lamdelay=0, early='g', outsc='',
        klin=False, stamps=False, warm=True, nslots=40, dbgwg=0, dbg_now=False, dbg_notail=False, dbg_sleep=0, dbg_extra=0, dbg_rtt=0, dbg_noclr=False, dbg_noq=False, dbg_nomid=False, dbg_klin=False, dbg_nocomp=False, dbg_tlb=0):
    a = Asm()
    nst = {}
    stubs = []
    SST, HST = (248 if klin else 88), 200
    assert nslots <= (36 if klin else 40)
    def stamp(role, name, vreg):
        if not stamps: return
        if stamps == 'lite' and name not in ('pub', 'out'): return
        idx = nst.setdefault(role, []); idx.append(name)
        a(f's_memrealtime s[90:91]\ns_waitcnt lgkmcnt(0)\nv_writelane_b32 v{vreg}, s90, {len(idx)-1}')
    def stamp_store(vreg):
        if not stamps: return
        if stamps == 'dbg':
            if vreg == SST: return
            a(f's_cmp_lg_u32 s2, {dbgwg}\ns_cbranch_scc1 L_nodbg\ns_cmp_lg_u32 s3, 0\ns_cbranch_scc1 L_nodbg')
            a(f's_mov_b64 exec, -1\nv_subrev_u32 v{vreg}, s94, v{vreg}\nv_lshlrev_b32 v{vreg+1}, 2, v0\nbuffer_store_dword v{vreg}, v{vreg+1}, {srd(SDBG)}, 0 offen\nL_nodbg:')
            return
        a(f's_lshl_b32 s92, s2, 3\ns_add_u32 s92, s92, s3\ns_lshl_b32 s92, s92, 8\ns_add_u32 s92, s92, {STAMP}')
        a(f's_mov_b64 exec, -1\nv_lshlrev_b32 v{vreg+1}, 2, v0\nbuffer_store_dword v{vreg}, v{vreg+1}, {srd(SWS)}, s92 offen')
    def crossg(r, t, op='add'):
        a(f'v_mov_b32 v{t}, v{r}\nv_permlane16_swap_b32 v{t}, v{r}\nv_{op}_f32 v{r}, v{r}, v{t}')
        a(f'v_mov_b32 v{t}, v{r}\nv_permlane32_swap_b32 v{t}, v{r}\nv_{op}_f32 v{r}, v{r}, v{t}')
    def allreduce(r, t, op='add'):
        for sh in (8, 4, 2, 1): a(f'v_{op}_f32_dpp v{r}, v{r}, v{r} row_ror:{sh} {FULL}')
        crossg(r, t, op)
    def rbf(r):
        a(f'v_cvt_pk_bf16_f32 v{r}, v{r}, v{r}\nv_lshlrev_b32 v{r}, 16, v{r}')
    def saddr(dst, terms, const=0, tmp='s10'):
        first = True
        for reg, sh in terms:
            t = dst if first else tmp
            a(f's_lshl_b32 {t}, {reg}, {sh}' if sh else f's_mov_b32 {t}, {reg}')
            if not first: a(f's_add_u32 {dst}, {dst}, {tmp}')
            first = False
        if const: a(f's_add_u32 {dst}, {dst}, {const}')
    def tags():
        a(f's_mul_i32 s96, s33, 1664525\ns_add_u32 s96, s96, 1013904223\ns_and_b32 s34, s96, {TAGM}\ns_bfe_u32 s35, s96, {TAGB << 16 | 10}\ns_bfe_u32 s36, s96, {TAGB << 16 | 20}\ns_lshr_b32 s37, s96, 22')
    def lanetag(dst, idx):
        a(f'v_mul_u32_u24 v{dst}, 10, v{idx}\nv_min_u32 v{dst}, 22, v{dst}\nv_lshrrev_b32_e64 v{dst}, v{dst}, s96')
    def dual_store(ins, name):
        if not local:
            a(ins + ' sc1'); return
        a(f's_cmp_eq_u32 s39, 0\ns_cbranch_scc1 L_{name}_s\n{ins}\nL_{name}_e:')
        stubs.append(f'L_{name}_s:\n{ins} sc1\ns_branch L_{name}_e')

    a('; ================================================================== entry')
    a(f'{KN}:')
    a('s_cmp_ge_u32 s2, 256\ns_cbranch_scc1 L_end')
    if stamps: a('s_memrealtime s[94:95]')
    PTRS = ((SK, 8, 64 << 20), (SX, 0, 1024), (SWQ, 24, 4 << 20), (SWS, 88, 268435456), (SV, 16, 64 << 20), (SWO, 32, 4 << 20), (SG, 48, 512 * 3584),
            (SU, 56, 512 * 3584), (SD, 64, 1792 * 1024), (SO, 72, 1024)) + (((SDBG, 80, 256),) if stamps == 'dbg' else ())
    def srds(which):
        for b, off, n in which: a(f's_load_dwordx2 s[{b}:{b+1}], s[0:1], {off}')
        for b, off, n in which: a(f's_mov_b32 s{b+2}, {n}\ns_mov_b32 s{b+3}, 0x20000')
    a(f's_load_dwordx2 s[{SK}:{SK+1}], s[0:1], 8')
    a('v_lshrrev_b32 v1, 6, v0\nv_and_b32 v0, 63, v0')
    a('v_readfirstlane_b32 s3, v1')
    a(f's_mov_b32 s{SK+2}, {64 << 20}\ns_mov_b32 s{SK+3}, 0x20000')
    a('s_and_b32 s4, s2, 7\ns_lshr_b32 s5, s2, 3')
    if sfirst: a('s_xor_b32 s3, s3, 4')
    a('s_and_b32 s6, s3, 3')
    a('s_cmp_lt_u32 s3, 4\ns_cbranch_scc1 L_H')
    RING = 96
    if sprio: a(f's_setprio {sprio}')
    def slot(k): return RING + 4 * k
    a('v_and_b32 v1, 3, v0\nv_lshlrev_b32 v1, 8, v1\nv_lshrrev_b32 v2, 2, v0\nv_lshl_add_u32 v1, v2, 4, v1')
    a('v_lshlrev_b32 v2, 4, v0')
    if dbg_klin: a('v_mov_b32 v1, v2')
    saddr('s7', (('s4', 23), ('s5', pcs), ('s6', 12)), tmp='s8')
    a('s_mov_b32 s8, s7')
    if dlo: a(f's_getreg_b32 s9, hwreg(HW_REG_XCC_ID)\ns_and_b32 s9, s9, 7\ns_lshr_b32 s9, {dmask}, s9\ns_and_b32 s9, s9, 1\ns_cselect_b64 vcc, -1, 0')
    if stamps: a(f'v_mov_b32 v{SST}, 0')
    a('s_waitcnt lgkmcnt(0)')
    if stamps: a(f'v_writelane_b32 v{SST}, s94, 0'); nst['S'] = ['start']
    st = dict(I=0, free=list(range(nslots)), where={})
    def issue(pace=True):
        n = st['I']
        fl = st['free']
        parked = nslots <= n < nslots + spill
        if not parked:
            k = next(x for x in fl if n < 64 or x >= 8)
            fl.remove(k); st['where'][n] = k
        if boost and pace and bfrom <= n < bto:
            a(f's_waitcnt vmcnt({boost-1})\ns_cbranch_vccnz L_b{n}\ns_waitcnt vmcnt({D-1})\nL_b{n}:')
        elif pace and n >= (D0 or D): a(f's_waitcnt vmcnt({(D1 if (D1 and n < n1) else (Dv if (Dv and n >= 96) else D))-1+(1 if (dalt and n % dalt == 0) else 0)})')
        if dlo and n >= max(dlo, dfrom) and n % dstep == 0 and not (80 - lead_sm <= n - 0 < 80 and not pace and n < 64 + lead_sm):
            a(f's_cbranch_vccnz L_d{n}\ns_waitcnt vmcnt({dlo-1})\nL_d{n}:')
        if stamps is True and n in (7, 16, 24, 33): stamp('S', f'n{n}', SST)
        if n == 64: a('s_mov_b32 s8, s7')
        if parked:
            if n & 3 == 0: a(f's_mul_i32 s9, s6, {spill * 1024}\ns_add_u32 m0, s9, {L_SP + (n - nslots) * 1024}')
            a(f'buffer_load_dwordx4 v1, {srd(SK)}, s8 offen offset:{(n & 3) * 1024} nt lds')
        else: a(f'buffer_load_dwordx4 v[{slot(k)}:{slot(k)+3}], {"v1" if (n < 64 and not klin) else "v2"}, {srd(SK if n < 64 else SV)}, s8 offen offset:{(n & 3) * 1024} nt')
        if n & 3 == 3 and n != 63 and n != 127:
            jump = ((n + 1) * 4096) % (1 << pcs) == 0
            a(f's_add_u32 s8, s8, {0x4000 + (31 << pcs if jump else 0)}')
        st['I'] = n + 1
    def more(k):
        while k > 0 and st['I'] < st['tgt'] and can_issue():
            issue(); k -= 1
    def can_issue():
        n = st['I']
        return n < 128 and any(n < 64 or x >= 8 for x in st['free'])
    if dbg_extra:
        a('s_add_u32 s9, s7, 0x20000')
        for n in range(dbg_extra):
            if n >= D: a(f's_waitcnt vmcnt({D-1})')
            a(f'buffer_load_dwordx4 v[{slot(n % D)}:{slot(n % D)+3}], v2, {srd(SV)}, s9 offen offset:{(n & 3) * 1024} nt')
            if n & 3 == 3: a('s_add_u32 s9, s9, 0x4000')
        a('s_waitcnt vmcnt(0)')
    for n in range(nslots + spill):
        if n == (D0 or D):
            if hfirst:
                a('s_branch L_S0'); srest0 = len(a.L); a('L_S0:')
            srds(PTRS[1:])
            if boost: a('s_and_b32 s9, s5, 7\ns_cmp_eq_u32 s9, 3\ns_cselect_b64 vcc, -1, 0')
        issue()
    a('s_waitcnt lgkmcnt(0)')
    stamp('S', 'pref', SST)
    a('s_barrier')
    a('s_branch L_S')
    if hfirst:
        srest = a.L[srest0:]; del a.L[srest0:]

    a('; ================================================================== H start')
    a('L_H:')
    srds(PTRS[1:])
    if stamps: a(f'v_mov_b32 v{HST}, 0')
    a('s_and_b32 s17, s5, 7\ns_lshr_b32 s18, s5, 3')
    a('s_cmp_lg_u32 s3, 0\ns_cbranch_scc1 L_Hwarm')
    if dbg_noq: a('s_branch L_Hwarm')
    if hprio: a(f's_setprio {hprio}')
    a('v_lshlrev_b32 v2, 4, v0')
    a('v_lshrrev_b32 v1, 3, v0\nv_lshlrev_b32 v1, 13, v1\nv_and_b32 v3, 7, v0\nv_lshl_add_u32 v1, v3, 4, v1')
    if dbg_cbrot: a(f's_add_u32 s17, s17, {dbg_cbrot}\ns_and_b32 s17, s17, 7')
    saddr('s8', (('s18', 20), ('s4', 10), ('s17', 7)))
    a(f's_mov_b32 m0, {L_WQ}')
    a('s_getreg_b32 s38, hwreg(HW_REG_XCC_ID)\ns_and_b32 s38, s38, 15')
    a('s_waitcnt lgkmcnt(0)')
    if stamps: a(f'v_writelane_b32 v{HST}, s94, 0'); nst['H'] = ['start']
    a(f's_load_dword s33, s[{SWS}:{SWS+1}], {EPOCH}')
    a(f'buffer_load_dwordx4 v[4:7], v2, {srd(SX)}, 0 offen')
    for m in range(16):
        a(f'buffer_load_dwordx4 v1, {srd(SWQ)}, s8 offen nt lds')
        if m < 15: a(f's_add_u32 m0, m0, 1024\ns_add_u32 s8, s8, 0x10000')
        if wqpace and m < 15: a(f's_sleep {wqpace}')
    a.cand()
    a('s_mov_b32 s12, 0xffff0000')
    a('s_waitcnt vmcnt(16)')
    for d in range(4): a(f'v_lshlrev_b32 v{8+2*d}, 16, v{4+d}\nv_and_b32 v{9+2*d}, s12, v{4+d}')
    a('v_add_f32 v16, v8, v9\nv_add_f32 v17, v10, v11\nv_add_f32 v18, v12, v13\nv_add_f32 v19, v14, v15\nv_add_f32 v16, v16, v17\nv_add_f32 v18, v18, v19\nv_add_f32 v16, v16, v18')
    allreduce(16, 17)
    a('v_mul_f32 v16, 0x3b000000, v16')
    a('v_sub_f32 v17, v8, v16\nv_mul_f32 v18, v17, v17')
    for e in range(1, 8): a(f'v_sub_f32 v17, v{8+e}, v16\nv_fmac_f32 v18, v17, v17')
    allreduce(18, 17)
    a('v_mul_f32 v18, 0x3b000000, v18'); rbf(18)
    a('v_add_f32 v18, 0x3727c5ac, v18'); rbf(18)
    a('v_sqrt_f32 v18, v18'); rbf(18)
    a('v_rcp_f32 v18, v18'); rbf(16)
    for e in range(8): a(f'v_sub_f32 v{8+e}, v{8+e}, v16')
    for d in range(4): a(f'v_cvt_pk_bf16_f32 v{4+d}, v{8+2*d}, v{9+2*d}')
    for d in range(4): a(f'v_lshlrev_b32 v{8+2*d}, 16, v{4+d}\nv_and_b32 v{9+2*d}, s12, v{4+d}')
    for e in range(8): a(f'v_mul_f32 v{8+e}, v{8+e}, v18')
    for d in range(4): a(f'v_cvt_pk_bf16_f32 v{4+d}, v{8+2*d}, v{9+2*d}')
    a(f'ds_write_b128 v2, v[4:7] offset:{L_XN}')
    a.cand()
    a('v_lshrrev_b32 v3, 4, v0\nv_lshlrev_b32 v16, 4, v3\ns_lshl_b32 s9, s18, 8\nv_add_u32 v16, s9, v16')
    a('v_lshlrev_b32 v17, 10, v3\nv_bfe_u32 v18, v0, 2, 2\nv_lshl_add_u32 v17, v18, 7, v17\nv_and_b32 v18, 3, v0\nv_lshl_add_u32 v17, v18, 3, v17')
    a('s_waitcnt lgkmcnt(0)')
    for s_ in range(4): a(f'ds_read_b128 v[{64+4*s_}:{67+4*s_}], v16 offset:{L_XN + s_*64}')
    tags()
    lanetag(19, 18)
    a(f'v_cmp_eq_u32 vcc, 3, v18\nv_mov_b32 v21, s38\nv_mov_b32 v20, {TAGM}\nv_cndmask_b32 v21, 0, v21, vcc\nv_xor_b32 v19, v19, v21\ns_xor_b32 s13, s37, s38')
    a('s_waitcnt vmcnt(0) lgkmcnt(0)')
    stamp('H', 'wq', HST)
    a.cand()
    order = [(s_, cg) for s_ in range(4) for cg in range(4)]
    def qmfma(q):
        s_, cg = order[q]
        a(f'v_mfma_f32_16x16x32_bf16 v[{24+4*cg}:{27+4*cg}], v[{64+4*s_}:{67+4*s_}], v[{128+4*q}:{131+4*q}], {"0" if s_ == 0 else f"v[{24+4*cg}:{27+4*cg}]"}')
    for q, (s_, cg) in enumerate(order):
        for eh in range(2): a(f'ds_read_b64_tr_b16 v[{128+4*q+2*eh}:{129+4*q+2*eh}], v17 offset:{L_WQ + s_*4096 + eh*512 + cg*32}')
        if q >= 4:
            a(f's_waitcnt lgkmcnt(8)'); qmfma(q - 4)
    for q in range(12, 16):
        a(f's_waitcnt lgkmcnt({2*(15-q)})'); qmfma(q)
    a('v_lshlrev_b32 v3, 2, v0')
    saddr('s9', (('s4', 13), ('s18', 11), ('s17', 8)), QP)
    saddr('s16', (('s4', 13),), QP); a('s_add_u32 s15, s16, 4096')
    for cg in range(1, 4): a(f'v_mov_b32_dpp v24, v{24+4*cg} quad_perm:[0,1,2,3] row_mask:{1 << cg} bank_mask:0xf')
    a(f'v_add_u32 v24, {(TAGM + 1) // 2}, v24\nv_bfi_b32 v24, v20, v19, v24')
    if qlocal: a('; first without device scope (enough if the group shares a die); repeated with device scope after a few failed sweeps or on seeing another die')
    a(f'buffer_store_dword v24, v3, {srd(SWS)}, s9 offen {"" if qlocal else "sc1"}')
    a('s_mov_b32 s14, 0')
    stamp('H', 'qpub', HST)
    a.cand()
    def tagcheck(base, n, tmp, waits=True):
        for k in range(n):
            if waits: a(f's_waitcnt vmcnt({n-1-k})')
            r = base + 4*k
            for e in range(4): a(f'v_xor_b32 v{r+e}, s{34+e}, v{r+e}')
            if k == 0: a(f'v_or_b32 v{tmp}, v{r}, v{r+1}\nv_or_b32 v{tmp+1}, v{r+2}, v{r+3}')
            else: a(f'v_or3_b32 v{tmp}, v{tmp}, v{r}, v{r+1}\nv_or3_b32 v{tmp+1}, v{tmp+1}, v{r+2}, v{r+3}')
        a(f'v_bitop3_b32 v{tmp}, v{tmp}, v{tmp+1}, v{VM} bitop3:0xa8\nv_cmp_ne_u32 vcc, 0, v{tmp}')
    VM = 20
    a('L_qpoll:')
    if qlocal:
        a(f's_cmp_lg_u32 s14, {qlocal}\ns_cbranch_scc1 L_qnr\ns_mov_b64 s[22:23], exec\ns_mov_b64 exec, -1\nbuffer_store_dword v24, v3, {srd(SWS)}, s9 offen sc1\ns_mov_b64 exec, s[22:23]\nL_qnr:')
    if qdelay: a(f's_sleep {min(127, 8 * qdelay)}      ; back-off: every failed sweep takes 8 KB out of this CU\'s K/V stream')
    for k in range(8):
        a(f'buffer_load_dwordx4 v[{64+4*k}:{67+4*k}], v2, {srd(SWS)}, {"s16" if k < 4 else "s15"} offen offset:{(k & 3) * 1024} sc1')
    a(f's_add_u32 s14, s14, 1\ns_cmp_gt_u32 s14, {SPIN}\ns_cbranch_scc1 L_qdone')
    for k in range(8):
        r = 64 + 4*k
        a(f's_waitcnt vmcnt({7-k})\nv_xor_b32 v{r}, s34, v{r}\nv_xor_b32 v{r+1}, s35, v{r+1}\nv_xor_b32 v{r+2}, s36, v{r+2}\nv_xor_b32 v{r+3}, s13, v{r+3}')
        if k == 0: a(f'v_or3_b32 v8, v{r}, v{r+1}, v{r+2}\nv_mov_b32 v9, v{r+3}')
        else: a(f'v_or3_b32 v8, v8, v{r}, v{r+1}\nv_or_b32 v8, v8, v{r+2}\nv_or_b32 v9, v9, v{r+3}')
    a(f'v_and_b32 v10, {TAGM & ~15}, v9\nv_bitop3_b32 v8, v8, v10, v20 bitop3:0xa8\nv_cmp_ne_u32 vcc, 0, v8')
    a('s_and_b64 exec, exec, vcc\ns_cbranch_execnz L_qpoll')
    a('L_qdone:')
    a('s_mov_b64 exec, -1\ns_waitcnt vmcnt(0)')
    a(f'v_and_b32 v9, 15, v9\nv_cmp_ne_u32 vcc, 0, v9\ns_cmp_eq_u64 vcc, 0\ns_cselect_b32 s39, 1, 0\nv_mov_b32 v9, s39\nv_mov_b32 v10, 0\nds_write_b32 v10, v9 offset:{L_FAST}')
    if qlocal:
        a(f's_cmp_lg_u32 s39, 0\ns_cbranch_scc1 L_qsame\nbuffer_store_dword v24, v3, {srd(SWS)}, s9 offen sc1\nL_qsame:')
    for k in range(8): a(f'v_and_b32 v{67+4*k}, -16, v{67+4*k}')
    a('v_lshlrev_b32 v3, 3, v0')
    for e in range(8): a(f'v_add_f32 v{64+e}, v{64+e}, v{72+e}')
    for e in range(8): a(f'v_add_f32 v{80+e}, v{80+e}, v{88+e}')
    for e in range(8): a(f'v_add_f32 v{64+e}, v{64+e}, v{80+e}')
    for d in range(4): a(f'v_cvt_pk_bf16_f32 v{4+d}, v{64+2*d}, v{65+2*d}')
    a(f'ds_write2st64_b64 v3, v[4:5], v[6:7] offset0:{L_Q//512} offset1:{L_Q//512+1}')
    a('s_waitcnt lgkmcnt(0)')
    stamp('H', 'qgot', HST)
    if hprio: a('s_setprio 0')
    a('s_branch L_Hb1')
    if hfirst: a.L += srest
    a('L_Hwarm:')
    a('s_waitcnt lgkmcnt(0)')
    if stamps: a(f'v_writelane_b32 v{HST}, s94, 0')
    a(f's_load_dword s33, s[{SWS}:{SWS+1}], {EPOCH}')
    if warm:
        a('s_mov_b64 exec, 0')
        a('s_cmp_eq_u32 s3, 1\ns_cbranch_scc1 @W0\ns_cmp_eq_u32 s3, 2\ns_cbranch_scc1 @W1\ns_branch @W2')
        a('L_warm_end:')
        a('s_mov_b64 exec, -1')
        if stamps is True: a(f's_memrealtime s[90:91]\ns_waitcnt lgkmcnt(0)\nv_writelane_b32 v{HST}, s90, 1')
    a('s_waitcnt lgkmcnt(0)')
    tags()
    a('L_Hb1:')
    a('s_barrier      ; B1')
    a('s_branch L_Hmid')

    smain0 = len(a.L)
    a('; ================================================================== S main')
    a('L_S:')
    a.cand()
    Q, P, ACC = 20, 24, 56
    QM = (20, 16, 88, 92)
    if klin:
        a('v_and_b32 v1, 3, v0\nv_lshlrev_b32 v1, 8, v1\nv_bfe_u32 v4, v0, 2, 2\nv_lshl_add_u32 v1, v4, 6, v1')
        for m in range(4): a(f'ds_read_b128 v[{QM[m]}:{QM[m]+3}], v1 offset:{L_Q + 16*m}')
        a('s_mov_b32 s20, 0x55555555\ns_mov_b32 s21, s20\ns_not_b64 s[22:23], s[20:21]\ns_mov_b32 s24, 0x33333333\ns_mov_b32 s25, s24\ns_not_b64 s[26:27], s[24:25]')
    else:
        a(f'ds_read_b128 v[{Q}:{Q+3}], v1 offset:{L_Q}')
    a(f'v_mov_b32 v12, 0\nds_read_b32 v12, v12 offset:{L_FAST}')
    a('s_mov_b32 s12, 0xffff0000\ns_mov_b32 s13, 0x3db504f3\nv_mov_b32 v3, 0xff800000')
    a(f'v_lshrrev_b32 v14, 4, v0')
    a('s_waitcnt lgkmcnt(0)\nv_readfirstlane_b32 s39, v12')
    stamp('S', 'q', SST)
    lead = nslots + spill
    if spill: a(f's_mul_i32 s9, s6, {spill * 1024}\ns_add_u32 s9, s9, {L_SP}\nv_add_u32 v11, s9, v2')
    for u in range(16):
        a.cand()
        T = [ACC + 4*e for e in range(4)]
        a(f's_waitcnt vmcnt({st["I"] - (4*u+4)})')
        if nslots <= 4*u < nslots + spill:
            for e in range(4):
                k = st['free'].pop(0); st['where'][4*u+e] = k
                a(f'ds_read_b128 v[{slot(k)}:{slot(k)+3}], v11 offset:{(4*u + e - nslots) * 1024}')
            a('s_waitcnt lgkmcnt(0)')
        ks = [slot(st['where'][4*u+e]) for e in range(4)]
        def refill():
            nonlocal lead
            for e in range(4): st['free'].append(st['where'][4*u+e])
            C = 4*u + 4
            lead = max(lead_ss, lead - kshrink)
            if vshrink is None:
                tgt = C + lead if u < 15 else C + lead_sm
                while st['I'] < tgt and can_issue(): issue(pace=(u < 15))
            else:
                st['tgt'] = C + lead
                if spread: more(1)
                else: more(9)
                if u == 15 and not spread:
                    for k in range(smx):
                        if can_issue(): issue(pace=False)
                    lead = st['I'] - C
        if klin:
            Z = [ACC + 4*e for e in range(4)]; Yk = [ACC + 16 + 4*e for e in range(4)]; DA, DB = 240, 244
            def sel(dst, own, other, perm):
                for d in range(4): a(f'v_cndmask_b32_dpp v{dst+d}, v{other+d}, v{own+d}, vcc quad_perm:{perm} {FULL}')
            def km(m):
                a(f'v_mfma_f32_4x4x4_16b_bf16 v[{DA}:{DA+3}], v[{Yk[m]}:{Yk[m]+1}], v[{QM[m]}:{QM[m]+1}], {"0" if m == 0 else f"v[{DA}:{DA+3}]"}')
                a(f'v_mfma_f32_4x4x4_16b_bf16 v[{DB}:{DB+3}], v[{Yk[m]+2}:{Yk[m]+3}], v[{QM[m]+2}:{QM[m]+3}], {"0" if m == 0 else f"v[{DB}:{DB+3}]"}')
            a('s_mov_b64 vcc, s[20:21]'); sel(Z[0], ks[0], ks[1], '[1,0,3,2]'); sel(Z[2], ks[2], ks[3], '[1,0,3,2]')
            a('s_mov_b64 vcc, s[22:23]'); sel(Z[1], ks[1], ks[0], '[1,0,3,2]'); sel(Z[3], ks[3], ks[2], '[1,0,3,2]')
            refill()
            a('s_mov_b64 vcc, s[24:25]'); sel(Yk[0], Z[0], Z[2], '[2,3,0,1]'); sel(Yk[1], Z[1], Z[3], '[2,3,0,1]')
            a('s_mov_b64 vcc, s[26:27]'); km(0); sel(Yk[2], Z[2], Z[0], '[2,3,0,1]'); km(1); sel(Yk[3], Z[3], Z[1], '[2,3,0,1]'); km(2); a('s_nop 0'); km(3)
            for e in range(4): a(f'v_add_f32 v{T[e]}, v{DA+e}, v{DB+e}')
        else:
            for e in range(4): a(f'v_mfma_f32_4x4x4_16b_bf16 v[{T[e]}:{T[e]+3}], v[{ks[e]}:{ks[e]+1}], v[{Q}:{Q+1}], 0')
            for e in range(4): a(f'v_mfma_f32_4x4x4_16b_bf16 v[{T[e]}:{T[e]+3}], v[{ks[e]+2}:{ks[e]+3}], v[{Q+2}:{Q+3}], v[{T[e]}:{T[e]+3}]')
            refill()
            for e in range(4): a(f'v_permlane32_swap_b32 v{T[e]}, v{T[e]+2}\nv_permlane32_swap_b32 v{T[e]+1}, v{T[e]+3}')
            for e in range(4): a(f'v_add_f32 v{T[e]}, v{T[e]}, v{T[e]+2}\nv_add_f32 v{T[e]+1}, v{T[e]+1}, v{T[e]+3}')
            if spread: more(1)
            for e in range(4): a(f'v_permlane16_swap_b32 v{T[e]}, v{T[e]+1}')
            for e in range(4): a(f'v_add_f32 v{T[e]}, v{T[e]}, v{T[e]+1}')
        a.cand()
        for e in range(4): a(f'v_add_f32_dpp v{T[e]+1}, v{T[e]}, v{T[e]} row_ror:4 {FULL}')
        for e in range(4): a(f'v_add_f32_dpp v{T[e]}, v{T[e]+1}, v{T[e]+1} row_ror:8 {FULL}')
        if spread: more(1)
        a(f'v_cvt_pk_bf16_f32 v5, v{T[0]}, v{T[1]}\nv_cvt_pk_bf16_f32 v6, v{T[2]}, v{T[3]}')
        a('v_lshlrev_b32 v7, 16, v5\nv_and_b32 v8, s12, v5\nv_lshlrev_b32 v9, 16, v6\nv_and_b32 v10, s12, v6')
        a('v_mul_f32 v7, s13, v7\nv_mul_f32 v8, s13, v8\nv_mul_f32 v9, s13, v9\nv_mul_f32 v10, s13, v10')
        a(f'v_cvt_pk_bf16_f32 v{P+2*u}, v7, v8\nv_cvt_pk_bf16_f32 v{P+2*u+1}, v9, v10')
        a('v_max3_f32 v3, v3, v7, v8\nv_max3_f32 v3, v3, v9, v10')
        if spread:
            more(9)
            if u == 15:
                for k in range(smx):
                    if can_issue(): issue(pace=False)
    stamp('S', 'kdone', SST)
    a.cand()
    crossg(3, 5, 'max')
    a(f'v_and_b32 v5, 3, v0\nv_lshlrev_b32 v5, 4, v5\ns_lshl_b32 s9, s6, 2\nv_add_u32 v6, s9, v5')
    a(f's_mov_b64 exec, 15\nds_write_b32 v6, v3 offset:{L_MX}\ns_mov_b64 exec, -1\ns_waitcnt lgkmcnt(0)')
    a('s_barrier')
    a(f'ds_read_b128 v[8:11], v5 offset:{L_MX}')
    a(f's_mov_b32 s14, {LOG2E}\nv_mov_b32 v4, 0')
    a('s_waitcnt lgkmcnt(0)')
    a('v_max3_f32 v3, v8, v9, v10\nv_max_f32 v3, v3, v11'); rbf(3)
    a('v_mul_f32 v3, s14, v3')
    for r in range(0, 32, 2):
        a.cand()
        if smi and (r // 2 * smi) // 16 != ((r // 2 + 1) * smi) // 16 and can_issue(): issue()
        a(f'v_lshlrev_b32 v7, 16, v{P+r}\nv_and_b32 v8, s12, v{P+r}\nv_lshlrev_b32 v9, 16, v{P+r+1}\nv_and_b32 v10, s12, v{P+r+1}')
        for t in range(7, 11): a(f'v_fma_f32 v{t}, v{t}, s14, -v3')
        for t in range(7, 11): a(f'v_exp_f32 v{t}, v{t}')
        a(f'v_cvt_pk_bf16_f32 v{P+r}, v7, v8\nv_add_f32 v7, v7, v8\nv_cvt_pk_bf16_f32 v{P+r+1}, v9, v10\nv_add_f32 v9, v9, v10\nv_add_f32 v4, v4, v7\nv_add_f32 v4, v4, v9')
        if r >= 2:
            for q in (3, 2, 1, 0):
                for k in (r - 2, r - 1): a(f'v_mov_b32_dpp v{P+k}, v{P+k} row_newbcast:{q} row_mask:0xf bank_mask:{1 << q}')
                if q: a(f'v_mov_b32 v11, v11')
    for q in (3, 2, 1, 0):
        for k in (30, 31): a(f'v_mov_b32_dpp v{P+k}, v{P+k} row_newbcast:{q} row_mask:0xf bank_mask:{1 << q}')
    crossg(4, 7, 'add')
    a(f's_mov_b64 exec, 15\nds_write_b32 v6, v4 offset:{L_LS}\ns_mov_b64 exec, -1\ns_waitcnt lgkmcnt(0)')
    a('s_barrier')
    stamp('S', 'smdone', SST)
    a(f's_lshl_b32 s9, s6, 4\nv_mov_b32 v13, s9\nds_read_b128 v[8:11], v13 offset:{L_LS}')
    a(f's_lshl_b32 s9, s6, 11\ns_add_u32 s9, s9, {L_EP}\nv_lshl_add_u32 v15, v0, 2, s9')
    a(f'v_and_b32 v17, 3, v0\nv_lshlrev_b32 v16, 9, v17\nv_and_b32 v17, 60, v0\nv_add_u32 v16, v16, v17\ns_lshl_b32 s9, s6, 6\ns_add_u32 s9, s9, {L_EP}\nv_add_u32 v16, s9, v16')
    a(f'v_lshlrev_b32 v17, 2, v0')
    saddr('s15', (('s4', 15), ('s5', 8), ('s6', 13)), M1)
    if sw:
        a("; this wave's share of the wo (and w_gate) blocks: fetched right behind its last V load")
        a('s_and_b32 s17, s5, 7\ns_lshr_b32 s18, s5, 3\ns_lshl_b32 s29, s4, 2\ns_add_u32 s29, s29, s18')
        a('v_lshrrev_b32 v12, 3, v0\nv_and_b32 v19, 7, v0\nv_lshlrev_b32 v19, 4, v19')
        a('s_movk_i32 s9, 0xe00\nv_mad_u32_u24 v20, v12, s9, v19\nv_lshl_add_u32 v19, v12, 10, v19')
        saddr('s20', (('s29', 17), ('s6', 15), ('s17', 7)))
        a(f's_lshl_b32 s21, s6, 12\ns_add_u32 s21, s21, {L_WQ}')
        a(f's_cmp_gt_u32 s4, {nf}\ns_subb_u32 s11, s4, 0\ns_lshl_b32 s11, s11, 2\ns_add_u32 s11, s11, s18')
        a(f's_mul_i32 s30, s17, {64*3584}\ns_mul_i32 s10, s6, {16*3584}\ns_add_u32 s30, s30, s10\ns_lshl_b32 s10, s11, 7\ns_add_u32 s30, s30, s10')
        a(f's_cmp_eq_u32 s4, {nf}\ns_cselect_b32 s30, 0x1000000, s30\ns_add_u32 s31, s30, {8*3584 - 1024}\ns_lshl_b32 s22, s6, 11\ns_add_u32 s23, s22, {L_U}\ns_add_u32 s22, s22, {L_G}')
    a('s_mov_b32 s16, 0x05040100\ns_mov_b32 s17, 0x07060302')
    a('s_waitcnt lgkmcnt(0)')
    a('v_add_f32 v8, v8, v9\nv_add_f32 v10, v10, v11\nv_add_f32 v8, v8, v10\nv_rcp_f32 v18, v8')
    AT = RING
    b4_done = False
    if vshrink is not None: lead = st['I'] - 64
    for G in range(8):
        a.cand()
        for p in range(4):
            n = 64 + 8*G + 2*p
            k0, k1 = slot(st['where'][n]), slot(st['where'][n+1])
            a(f's_waitcnt vmcnt({st["I"] - (n+2) + st.get("X", 0)})')
            lastp = epi and G == 7 and p == 3
            if lastp: stamp('S', 'lastdata', SST)
            pm = [f'v_perm_b32 v{AT+8*d+p}, v{k1+d}, v{k0+d}, s16\nv_perm_b32 v{AT+8*d+4+p}, v{k1+d}, v{k0+d}, s17' for d in range(4)]
            for d in range(2 if lastp else 4): a(pm[d])
            a.cand()
            st['free'] += [st['where'][n], st['where'][n+1]]
            C = n + 2
            ld_ = lead_end if (lead_end and C >= 128 - n_end) else lead_ss
            if vshrink is not None:
                lead = max(lead_ss, lead - vshrink); ld_ = lead
            while st['I'] < C + ld_ and can_issue(): issue(pace=(ld_ > D + 1))
            if st['I'] == 128 and not b4_done and C >= b4lead:
                b4_done = True
                if not sw: a('s_barrier')
                else:
                    a('s_mov_b32 m0, s21')
                    for m in range(4):
                        a(f'buffer_load_dwordx4 v19, {srd(SWO)}, s20 offen offset:{1024*m} nt lds')
                        if m < 3: a(f's_add_u32 s20, s20, {0x2000 - 1024}')
                    st['X'] = 4
                    for ch, m0r, sr in (('g', 's22', SG), ('u', 's23', SU)):
                        if ch in sw:
                            a(f's_mov_b32 m0, {m0r}\nbuffer_load_dwordx4 v20, {srd(sr)}, s30 offen nt lds\nbuffer_load_dwordx4 v20, {srd(sr)}, s31 offen offset:1024 nt lds')
                            st['X'] += 2
                stamp('S', 'lastiss', SST)
        if G == 7 and not epi: stamp('S', 'lastdata', SST)
        for dd in range(8):
            a(f'v_mfma_f32_16x16x32_bf16 v[{ACC+4*dd}:{ACC+4*dd+3}], v[{P+4*G}:{P+4*G+3}], v[{AT+4*dd}:{AT+4*dd+3}], {"0" if G == 0 else f"v[{ACC+4*dd}:{ACC+4*dd+3}]"}')
            if epi and G == 7 and dd < 2: a(pm[2 + dd])
            if epi and G == 7 and dd == 6: a(f'ds_write2st64_b32 v15, v{ACC}, v{ACC+4} offset0:0 offset1:1')
    for dd in range(2 if epi else 0, 8, 2): a(f'ds_write2st64_b32 v15, v{ACC+4*dd}, v{ACC+4*dd+4} offset0:{dd} offset1:{dd+1}')
    a('s_waitcnt lgkmcnt(0)')
    a('s_barrier      ; B5: partial outputs of the four waves')
    for w in range(4): a(f'ds_read2st64_b32 v[{4+2*w}:{5+2*w}], v16 offset0:{8*w} offset1:{8*w+1}')
    a('s_waitcnt lgkmcnt(2)\nv_add_f32 v4, v4, v6\nv_add_f32 v5, v5, v7\ns_waitcnt lgkmcnt(0)\nv_add_f32 v8, v8, v10\nv_add_f32 v9, v9, v11')
    a('v_add_f32 v4, v4, v8\nv_add_f32 v5, v5, v9\nv_mul_f32 v4, v4, v18\nv_mul_f32 v5, v5, v18\nv_cvt_pk_bf16_f32 v4, v4, v5\nv_min_u32 v4, -2, v4')
    dual_store(f'buffer_store_dword v4, v17, {srd(SWS)}, s15 offen', 'm1')
    stamp('S', 'pub', SST)
    if sw: a('s_waitcnt vmcnt(0)\ns_barrier      ; B6')
    stamp_store(SST)
    a('s_endpgm')

    if dbg_nocomp:
        keepmn = ('v_writelane', 'v_lshlrev_b32 v17, 2', 'v_mov_b32 v12, 0', 'v_readfirstlane', 'v_lshlrev_b32 v%d' % (SST + 1))
        pat = {1: ('v_',), 2: ('v_mfma',), 3: ('v_perm_b32', 'v_permlane', 'v_add', 'v_cvt', 'v_mul', 'v_fma', 'v_exp', 'v_max', 'v_and', 'v_mov_b32_dpp')}[dbg_nocomp]
        a.L[smain0:] = [l for l in a.L[smain0:] if not (l.startswith(pat) and not l.startswith(keepmn))]
    a('; ================================================================== H mid')
    a('L_Hmid:')
    if dbg_cbrot: a('s_and_b32 s17, s5, 7')
    a.cand()
    W8, WOB, GUB, WDB, A1, DW, Y = 28, 44, 60, 76, 100, 132, 164
    VM = 17
    a('v_lshrrev_b32 v3, 4, v0\nv_and_b32 v4, 15, v0\nv_lshlrev_b32 v5, 4, v3\nv_and_b32 v6, 7, v0')
    a('s_mov_b32 s12, 0xffff0000\ns_lshl_b32 s29, s4, 2\ns_add_u32 s29, s29, s18')
    a(f's_cmp_gt_u32 s4, {nf}\ns_subb_u32 s11, s4, 0\ns_cmp_eq_u32 s4, {nf}\ns_cselect_b32 s11, 7, s11\ns_lshl_b32 s97, s11, 2\ns_add_u32 s97, s97, s18')
    a(f'v_lshlrev_b32 v7, 1, v0\ns_lshl_b32 s9, s17, 7\nbuffer_load_ushort v40, v7, {srd(SX)}, s9 offen')
    a('v_lshlrev_b32 v25, 2, v0\nv_lshlrev_b32 v19, 4, v0')
    a('v_lshlrev_b32 v20, 8, v4\nv_add_u32 v20, v20, v5\nv_add_u32 v7, 0x1000, v20')
    saddr('s20', (('s29', 13), ('s6', 6)), M1)
    saddr('s21', (('s17', 13), ('s29', 8)), M2)
    saddr('s22', (('s17', 13), ('s6', 11)), M2)
    a(f'v_lshlrev_b32 v23, 4, v4\nv_lshl_add_u32 v23, v3, 2, v23\ns_lshl_b32 s9, s6, 8\nv_add_u32 v23, s9, v23\nv_and_b32 v12, 3, v0')
    AH = 92
    for d in range(8): a(f'v_mov_b32 v{AH+d}, 0x3f803f80')
    lanetag(16, 12)
    a(f'v_mov_b32 v{VM}, {TAGM}')
    a(f's_lshl_b32 s9, s6, 8\ns_add_u32 s9, s9, {L_YW}\nv_add_u32 v26, s9, v25')
    a(f'v_lshlrev_b32 v27, 4, v4\nv_lshl_add_u32 v27, v3, 11, v27')
    saddr('s23', (('s97', 14), ('s17', 8), ('s6', 12)), MF)
    saddr('s24', (('s97', 14), ('s6', 12)), MF)
    saddr('s25', (('s97', 11), ('s17', 8), ('s6', 7)), M3)
    a(f'v_mov_b32 v42, 0\nds_read_b32 v42, v42 offset:{L_FAST}')
    a('s_lshl_b32 s9, s17, 1\ns_sub_u32 s28, s11, s9\ns_add_u32 s28, s28, 14\ns_mul_i32 s9, s28, 37\ns_lshr_b32 s9, s9, 8\ns_mul_i32 s9, s9, 7\ns_sub_u32 s28, s28, s9\ns_lshl_b32 s28, s28, 2\ns_add_u32 s28, s28, s18')
    a(f's_lshl_b32 s15, s17, 3\ns_add_u32 s15, s15, s28')
    a(f'v_and_b32 v12, 1, v0\nv_lshrrev_b32 v36, 1, v0\nv_lshlrev_b32 v36, 11, v36\nv_lshl_add_u32 v36, v12, 4, v36')
    saddr('s84', (('s15', 5),), M3)
    a(f'v_lshl_add_u32 v37, v12, 2, v3\ns_lshl_b32 s9, s28, 5\nv_lshl_add_u32 v38, v37, 2, s9\nv_lshlrev_b32 v37, 1, v37\ns_lshl_b32 s15, s15, 4')
    a.cand()
    a('s_waitcnt vmcnt(0) lgkmcnt(0)\nv_lshlrev_b32 v40, 16, v40\nv_readfirstlane_b32 s39, v42')
    def wo_issue():
        if dbg_now: return
        saddr('s9', (('s29', 17), ('s6', 15), ('s17', 7)))
        a(f's_lshl_b32 s10, s6, 12\ns_add_u32 m0, s10, {L_WQ}')
        for m in range(4):
            a(f'buffer_load_dwordx4 v18, {srd(SWO)}, s9 offen nt lds')
            if m < 3: a('s_add_u32 m0, m0, 1024\ns_add_u32 s9, s9, 0x2000')
    a('; For the group without an F role these offsets lie past the end of the weight buffers: the loads return zeros.')
    def gu_addr():
        a(f'v_lshrrev_b32 v14, 3, v0\nv_mul_u32_u24 v14, 0xe00, v14\nv_lshl_add_u32 v14, v6, 4, v14')
        a(f's_mul_i32 s30, s17, {64*3584}\ns_mul_i32 s10, s6, {16*3584}\ns_add_u32 s30, s30, s10\ns_lshl_b32 s10, s97, 7\ns_add_u32 s30, s30, s10')
        a(f's_cmp_eq_u32 s4, {nf}\ns_cselect_b32 s30, 0x1000000, s30\ns_add_u32 s31, s30, {8*3584 - 1024}')
        saddr('s32', (('s97', 16), ('s6', 14), ('s17', 7)))
        a(f's_add_u32 s19, s32, {0x2000 - 1024}\ns_lshl_b32 s13, s6, 11\ns_add_u32 s85, s13, {L_G}\ns_add_u32 s87, s13, {L_U}\ns_add_u32 s33, s13, {L_D}')
        if wd == 'p2':
            saddr('s32', (('s97', 16), ('s17', 7), ('s6', 6)))
            a(f's_cmp_gt_u32 s6, 1\ns_cselect_b32 s32, 0x1000000, s32\ns_lshl_b32 s33, s6, 12\ns_add_u32 s33, s33, {L_D}')
            a('v_lshrrev_b32 v41, 2, v0\nv_lshlrev_b32 v41, 10, v41\nv_and_b32 v12, 3, v0\nv_lshl_add_u32 v41, v12, 4, v41')
        a('v_lshrrev_b32 v18, 3, v0\nv_lshlrev_b32 v18, 10, v18\nv_lshl_add_u32 v18, v6, 4, v18')
        a(f'v_lshrrev_b32 v1, 5, v0\nv_lshl_add_u32 v1, v1, 3, v6\ns_lshl_b32 s9, s6, 4\nv_add_u32 v1, s9, v1\nv_lshlrev_b32 v1, 1, v1')
    def gu_issue(when):
        if dbg_now: return 0
        n = 0
        for w_, base, sr in ((wg, 's85', SG), (wu, 's87', SU)):
            if w_ != when: continue
            a(f's_mov_b32 m0, {base}')
            a(f'buffer_load_dwordx4 v14, {srd(sr)}, s30 offen nt lds')
            a(f'buffer_load_dwordx4 v14, {srd(sr)}, s31 offen offset:1024 nt lds')
            n += 2
        return n
    def dn_issue(when):
        if dbg_now or wd != when: return 0
        if wd == 'p2':
            a(f's_mov_b32 m0, s33')
            for m in range(4):
                a(f'buffer_load_dwordx4 v41, {srd(SD)}, s32 offen offset:{1024*m} nt lds')
                if m < 3: a(f's_add_u32 s32, s32, {0x4000 - 1024}')
            return 4
        a(f's_mov_b32 m0, s33')
        a(f'buffer_load_dwordx4 v18, {srd(SD)}, s32 offen nt lds')
        a(f'buffer_load_dwordx4 v18, {srd(SD)}, s19 offen offset:1024 nt lds')
        return 2
    adapt = 'adapt' in (wg, wu, wd)
    gu_late = 'hop1' in (wg, wu) or 'adapt' in (wg, wu)
    def wo_read():
        for cg in range(4):
            for eh in range(2): a(f'ds_read_b64_tr_b16 v[{WOB+4*cg+2*eh}:{WOB+4*cg+2*eh+1}], v22 offset:{L_WQ + eh*512 + cg*32}')
    def gu_read():
        for s_ in range(2):
            for sb in range(2):
                for eh in range(2): a(f'ds_read_b64_tr_b16 v[{GUB+8*sb+4*s_+2*eh}:{GUB+8*sb+4*s_+2*eh+1}], v15 offset:{L_G + s_*1024 + eh*512 + sb*16}')
    def dn_read():
        for cgl in range(2):
            for s_ in range(2):
                for eh in range(2):
                    off = L_D + (s_*2048 + eh*256 if wd == 'p2' else s_*4096 + eh*512) + cgl*32
                    a(f'ds_read_b64_tr_b16 v[{WDB+8*cgl+4*s_+2*eh}:{WDB+8*cgl+4*s_+2*eh+1}], v39 offset:{off}')
    gu_addr()
    a('v_lshlrev_b32 v15, 10, v3\nv_bfe_u32 v13, v0, 2, 2\nv_lshl_add_u32 v15, v13, 7, v15\nv_and_b32 v12, 3, v0\nv_lshl_add_u32 v22, v12, 3, v15\ns_lshl_b32 s9, s6, 6\nv_add_u32 v39, s9, v22\ns_lshl_b32 s9, s6, 12\nv_add_u32 v22, s9, v22')
    a(f'v_and_b32 v12, 1, v0\nv_lshl_add_u32 v15, v12, 3, v15\nv_bfe_u32 v12, v0, 1, 1\nv_mul_u32_u24 v12, {L_U - L_G}, v12\nv_add_u32 v15, v15, v12\nv_lshl_add_u32 v15, v3, 10, v15\ns_lshl_b32 s9, s6, 5\nv_add_u32 v15, s9, v15')
    if wd == 'p2': a('v_lshlrev_b32 v39, 9, v3\nv_lshl_add_u32 v39, v13, 6, v39\nv_and_b32 v12, 3, v0\nv_lshl_add_u32 v39, v12, 3, v39\ns_lshl_b32 s9, s6, 12\nv_add_u32 v39, s9, v39')
    def m1_clear():
        a('; empty the own M1 and MF slots; the log-sum-exp words are published only after these stores are acknowledged')
        a('v_mov_b32 v8, -1\nv_mov_b32 v9, -1\nv_mov_b32 v10, -1\nv_mov_b32 v11, -1\nv_lshlrev_b32 v12, 13, v3\nv_lshl_add_u32 v12, v4, 4, v12')
        saddr('s9', (('s4', 15), ('s5', 8)), M1)
        if not dbg_noclr: dual_store(f'buffer_store_dwordx4 v[8:11], v12, {srd(SWS)}, s9 offen', 'clr')
        if mfs:
            a(f's_cmp_eq_u32 s4, {nf}\ns_cbranch_scc1 L_clrf\ns_add_u32 s9, s23, 8192')
            dual_store(f'buffer_store_dwordx4 v[8:11], v27, {srd(SWS)}, s23 offen', 'clr2')
            dual_store(f'buffer_store_dwordx4 v[8:11], v27, {srd(SWS)}, s9 offen', 'clr3')
            a('L_clrf:')
        a('s_waitcnt vmcnt(0)')
    if clrpos == 1:
        a('s_cmp_lg_u32 s3, 0\ns_cbranch_scc1 L_clre'); m1_clear(); a('L_clre:')
    a('s_barrier      ; B2')
    a('s_barrier      ; B3')
    a.cand()
    if dbg_nomid: a('s_branch L_noearly')
    gu_issue('mid'); dn_issue('mid')
    a('s_cmp_lg_u32 s3, 0\ns_cbranch_scc1 L_nolam')
    if clrpos == 3: m1_clear()
    if touch:
        a('; read the own M2 / M3 slots once, so that the lines sit in the memory-side cache when they are written')
        a(f'buffer_load_dword v{Y+8}, v25, {srd(SWS)}, s25 offen sc1\nbuffer_load_dword v{Y+9}, v25, {srd(SWS)}, s21 offen sc1')
    a("; publish the log2-sum-exp of this workgroup's chunk, collect those of the head it will combine")
    a(f'v_and_b32 v12, 3, v0\nv_lshlrev_b32 v12, 4, v12\nds_read_b128 v[8:11], v12 offset:{L_MX}\nds_read_b128 v[{Y}:{Y+3}], v12 offset:{L_LS}\ns_mov_b32 s14, {LOG2E}')
    saddr('s11', (('s4', 10), ('s5', 5)), LAM)
    saddr('s27', (('s4', 10), ('s18', 3)), LAM)
    a('s_waitcnt lgkmcnt(0)')
    a('v_max3_f32 v8, v8, v9, v10\nv_max_f32 v8, v8, v11'); rbf(8)
    a(f'v_add_f32 v9, v{Y}, v{Y+1}\nv_add_f32 v10, v{Y+2}, v{Y+3}\nv_add_f32 v9, v9, v10\nv_log_f32 v9, v9\nv_mul_f32 v8, s14, v8\nv_add_f32 v8, v8, v9\nv_mov_b32 v9, s96')
    a(f'v_lshlrev_b32 v12, 3, v0\ns_mov_b64 exec, 15')
    dual_store(f'buffer_store_dwordx2 v[8:9], v12, {srd(SWS)}, s11 offen', 'lam')
    a('s_mov_b64 exec, -1\nv_and_b32 v12, 31, v0\nv_lshlrev_b32 v12, 5, v12\ns_mov_b32 s14, 0')
    a.cand()
    a('L_lpoll:')
    if lamdelay: a(f's_sleep {lamdelay}')
    a(f'buffer_load_dwordx2 v[10:11], v12, {srd(SWS)}, s27 offen sc1')
    a(f's_add_u32 s14, s14, 1\ns_cmp_gt_u32 s14, {SPIN}\ns_waitcnt vmcnt(0)\ns_cbranch_scc1 L_ldone')
    a('v_cmp_ne_u32 vcc, s96, v11\ns_cbranch_vccnz L_lpoll')
    a('L_ldone:')
    a('v_mov_b32 v8, v10'); allreduce(8, 9, 'max')
    a('v_sub_f32 v10, v10, v8\nv_exp_f32 v10, v10\ns_nop 0\nv_mov_b32 v8, v10'); allreduce(8, 9, 'add')
    a(f'v_rcp_f32 v8, v8\nv_add_f32 v10, v10, v10\nv_mul_f32 v10, v10, v8\ns_mov_b32 exec_hi, 0\nds_write_b32 v25, v10 offset:{L_W}\ns_mov_b64 exec, -1')
    a('L_nolam:')
    stamp('H', 'lam', HST)
    R = Y + 4
    m1_loads = [f'buffer_load_dwordx4 v[{A1+4*t}:{A1+4*t+3}], {("v20", "v7")[t]}, {srd(SWS)}, s20 offen sc1' for t in range(2)]
    m2_loads = [f'buffer_load_dwordx4 v[{Y+4*j}:{Y+4*j+3}], v19, {srd(SWS)}, s22 offen offset:{j*1024} sc1' for j in range(2)]
    mf_loads = [f'buffer_load_dwordx4 v[{A1+4*j}:{A1+4*j+3}], v19, {srd(SWS)}, s24 offen offset:{j*1024} sc1' for j in range(4)]
    m3_loads = [f'buffer_load_dwordx4 v[{R}:{R+3}], v36, {srd(SWS)}, s84 offen sc1']
    if edelay: a(f's_cmp_eq_u32 s3, 0\ns_cbranch_scc1 L_ned\ns_sleep {edelay}\nL_ned:')
    if '1' in early:
        for l in m1_loads: a(l)
    if 'h' in early:
        a('s_cmp_lg_u32 s3, 2\ns_cbranch_scc1 L_noearly4')
        saddr('s9', (('s29', 13), ('s17', 10)), M1)
        a(f'buffer_load_dwordx4 v[{A1}:{A1+3}], v19, {srd(SWS)}, s9 offen sc1')
        a('L_noearly4:')
    a(f's_cmp_eq_u32 s4, {nf}\ns_cbranch_scc1 L_noearly')
    if '2' in early:
        for l in m2_loads: a(l)
    if 'f' in early:
        a('s_cmp_lg_u32 s17, 0\ns_cbranch_scc1 L_noearly2')
        for l in mf_loads: a(l)
        a('L_noearly2:')
    if 'g' in early:
        a('s_cmp_lg_u32 s3, 1\ns_cbranch_scc1 L_noearly3')
        saddr('s9', (('s97', 14), ('s17', 11)), MF)
        for j in range(2): a(f'buffer_load_dwordx4 v[{A1+4*j}:{A1+4*j+3}], v19, {srd(SWS)}, s9 offen offset:{j*1024} sc1')
        a('L_noearly3:')
    if 'o' in early:
        a(f's_cmp_gt_u32 s28, 7\ns_cbranch_scc1 L_noearly5\ns_cmp_lg_u32 s3, 2\ns_cbranch_scc1 L_noearly5\nbuffer_load_ushort v{A1}, v37, {srd(SO)}, s15 offen\nL_noearly5:')
    if '3' in early:
        a('s_cmp_gt_u32 s28, 7\ns_cbranch_scc1 L_noearly\ns_cmp_lg_u32 s3, 2\ns_cbranch_scc1 L_noearly')
        for l in m3_loads: a(l)
    a('L_noearly:')
    a('s_waitcnt vmcnt(0) lgkmcnt(0)')
    a.cand()
    for k in range(shift): a('s_nop 0')
    if not sw:
        a('s_barrier      ; B4')
        if wo == 'b4': wo_issue()
    nwf = 0 if sw else gu_issue('b4') + dn_issue('b4')
    if adapt: a('s_mov_b32 s86, 0')
    if not sw: a(f'ds_read_b128 v[{W8}:{W8+3}], v5 offset:{L_W}\nds_read_b128 v[{W8+4}:{W8+7}], v5 offset:{L_W + 64}')
    a('s_barrier      ; B5')
    stamp('H', 'b5', HST)
    if sw: a(f'ds_read_b128 v[{W8}:{W8+3}], v5 offset:{L_W}\nds_read_b128 v[{W8+4}:{W8+7}], v5 offset:{L_W + 64}\ns_barrier      ; B6')
    if wo == 'b5':
        assert nwf == 0
        wo_issue()
    nwf += gu_issue('b5') + dn_issue('b5')
    if dbg_notail:
        stamp('H', 'out', HST); a('s_branch L_Hend')
    a.cand()
    names = ('p1', 'p2', 'p25', 'p3')
    def poll(name, loads, base, tmp=8, tagged=True, after_first=None):
        n = len(loads); nreg = 4 * n
        a('s_mov_b32 s14, 0')
        dl = pd[names.index(name)]
        if name == 'p25' and local and pdslow: a(f's_cmp_lg_u32 s39, 0\ns_cbranch_scc1 L_{name}_0\ns_sleep {pdslow}\nL_{name}_0:')
        elif dl: a(f's_sleep {dl}')
        if after_first:
            for l in loads: a(l)
            after_first()
            a(f's_branch L_{name}_c')
        a(f'L_{name}:')
        for l in loads: a(l)
        a(f's_add_u32 s14, s14, 1\ns_cmp_gt_u32 s14, {SPIN}\ns_cbranch_scc1 L_{name}_x')
        if tagged:
            prog = progw and not (name == 'p2' and (pretouch or wd == 'p2'))
            a(f'L_{name}_c:' if prog else f's_waitcnt vmcnt(0)\nL_{name}_c:')
            tagcheck(base, n, tmp, waits=prog)
        else:
            a(f'L_{name}_c:')
            for k in range(n):
                r = base + 4*k
                a(f's_waitcnt vmcnt({n-1-k})')
                if k == 0: a(f'v_max_u32 v{tmp}, v{r}, v{r+1}\nv_max_u32 v{tmp+1}, v{r+2}, v{r+3}')
                else: a(f'v_max3_u32 v{tmp}, v{tmp}, v{r}, v{r+1}\nv_max3_u32 v{tmp+1}, v{tmp+1}, v{r+2}, v{r+3}')
            a(f'v_max_u32 v{tmp}, v{tmp}, v{tmp+1}')
            a(f'v_cmp_eq_u32 vcc, -1, v{tmp}')
        if name == 'p1' and adapt:
            a(f's_and_b64 exec, exec, vcc\ns_cbranch_execnz L_p1_more')
            keep = a.L; a.L = []
            a(f'L_p1_more:\ns_cmp_lg_u32 s14, 0\ns_cbranch_scc1 L_p1\ns_bcnt1_i32_b64 s9, exec\ns_cmp_lt_u32 s9, {4 * thr}\ns_cbranch_scc1 L_p1')
            a('s_mov_b64 s[88:89], exec\ns_mov_b64 exec, -1\ns_mov_b32 s86, 1')
            gu_issue('adapt'); dn_issue('adapt')
            a('s_mov_b64 exec, s[88:89]\ns_branch L_p1')
            stubs.append('\n'.join(a.L)); a.L = keep
        else:
            a(f's_and_b64 exec, exec, vcc\ns_cbranch_execnz L_{name}')
        a(f'L_{name}_x:')
        a('s_mov_b64 exec, -1')
        if stamps is True: a(f's_add_u32 s14, s14, 1\nv_writelane_b32 v{HST}, s14, {40 + names.index(name)}')
    def p1_first():
        a(f's_waitcnt vmcnt({nwf + 2})'); wo_read()
    if p1nat:
        a(f's_waitcnt vmcnt({nwf})'); wo_read()
    poll('p1', m1_loads, A1, tagged=False, after_first=None if p1nat else p1_first)
    a('s_waitcnt vmcnt(0) lgkmcnt(0)')
    stamp('H', 'hop1', HST)
    if preinv:
        a(f's_cmp_lg_u32 s3, 0\ns_cbranch_scc1 L_npi\nv_not_b32 v12, v16\nbuffer_store_dword v12, v25, {srd(SWS)}, s21 offen sc1\nL_npi:')
    fm = [f'v_mul_f32 v8, v{W8}, v{DW}'] + [f'v_fmac_f32 v8, v{W8+r}, v{DW+r}' for r in range(1, 8)]
    for cg in range(4):
        for t in range(2):
            a(f'v_mfma_f32_16x16x32_bf16 v[{DW+8*cg+4*t}:{DW+8*cg+4*t+3}], v[{A1+4*t}:{A1+4*t+3}], v[{WOB+4*cg}:{WOB+4*cg+3}], 0')
            if wint and 2*cg + t >= 6:
                for k in range(2): a(fm.pop(0))
    def late_issue():
        if adapt:
            a('s_cmp_lg_u32 s86, 0\ns_cbranch_scc1 L_ad')
            gu_issue('adapt'); dn_issue('adapt')
            a('L_ad:')
        gu_issue('hop1'); dn_issue('hop1')
    if lpos == 0: late_issue()
    if wint:
        for l in fm: a(l)
    for cg in range(1 if wint else 0, 4):
        a(f'v_pk_mul_f32 v[{DW+8*cg}:{DW+8*cg+1}], v[{W8}:{W8+1}], v[{DW+8*cg}:{DW+8*cg+1}]')
        for r in range(2, 8, 2): a(f'v_pk_fma_f32 v[{DW+8*cg}:{DW+8*cg+1}], v[{W8+r}:{W8+r+1}], v[{DW+8*cg+r}:{DW+8*cg+r+1}], v[{DW+8*cg}:{DW+8*cg+1}]')
    for cg in ((2, 1, 3) if wint else (0, 2, 1, 3)): a(f'v_add_f32 v{8+cg}, v{DW+8*cg}, v{DW+8*cg+1}')
    a('v_permlane32_swap_b32 v8, v10\nv_add_f32 v8, v8, v10\nv_permlane32_swap_b32 v9, v11\nv_add_f32 v9, v9, v11\nv_permlane16_swap_b32 v8, v9\nv_add_f32 v8, v8, v9')
    a('ds_write_b32 v26, v8')
    if lpos == 1: late_issue()
    a('s_waitcnt lgkmcnt(0)')
    a('s_barrier      ; BW')
    a('s_cmp_lg_u32 s3, 0\ns_cbranch_scc1 L_nowpub')
    a(f'ds_read2st64_b32 v[8:9], v25 offset0:{L_YW//256} offset1:{L_YW//256+1}\nds_read2st64_b32 v[10:11], v25 offset0:{L_YW//256+2} offset1:{L_YW//256+3}')
    a(f's_waitcnt lgkmcnt(0)\nv_add_f32 v8, v8, v9\nv_add_f32 v10, v10, v11\nv_add_f32 v8, v8, v10\nv_bfi_b32 v8, v{VM}, v16, v8')
    a(f'buffer_store_dword v8, v25, {srd(SWS)}, s21 offen sc1')
    a('L_nowpub:')
    if lpos == 2: late_issue()
    stamp('H', 'wpub', HST)
    a(f's_cmp_eq_u32 s4, {nf}\ns_cbranch_scc1 L_Hend')
    if not gu_late: gu_read()
    a.cand()
    def p2_first():
        npt = 0
        if local and pretouch:
            for l in mf_loads: a(l)
            npt = 4
        npt += dn_issue('p2')
        if npt or not progw: a(f's_waitcnt vmcnt({npt})')
    poll('p2', m2_loads, Y, after_first=p2_first)
    stamp('H', 'hop2', HST)
    for e in range(4): a(f'v_add_f32 v{Y+e}, v{Y+e}, v{Y+4+e}')
    a(f'v_permlane32_swap_b32 v{Y}, v{Y+2}\nv_permlane32_swap_b32 v{Y+1}, v{Y+3}\nv_add_f32 v{Y}, v{Y}, v{Y+2}\nv_add_f32 v{Y+1}, v{Y+1}, v{Y+3}')
    a(f'v_permlane16_swap_b32 v{Y}, v{Y+1}\nv_add_f32 v8, v{Y}, v{Y+1}')
    a(f'ds_write_b32 v23, v8 offset:{L_HP}\ns_waitcnt lgkmcnt(0)')
    a('s_barrier      ; BF')
    a(f'ds_read2st64_b32 v[8:9], v25 offset0:{L_HP//256} offset1:{L_HP//256+1}\nds_read2st64_b32 v[10:11], v25 offset0:{L_HP//256+2} offset1:{L_HP//256+3}')
    if gu_late: gu_read()
    nx = 8 if gu_late else 0
    a(f's_waitcnt lgkmcnt({nx + 1})\nv_add_f32 v8, v8, v40\nv_add_f32 v8, v8, v9\ns_waitcnt lgkmcnt({nx})\nv_add_f32 v10, v10, v11\nv_add_f32 v21, v8, v10')
    a(f'v_mov_b32_dpp v9, v21 quad_perm:[1,0,3,2] {FULL}\nv_cvt_pk_bf16_f32 v8, v21, v9')
    a(f's_mov_b32 exec_lo, 0xdddddddd\ns_mov_b32 exec_hi, 0xdddddddd')
    for d in range(8): a(f'v_mov_b32_dpp v{AH+d}, v8 row_newbcast:{2*d} {FULL}')
    a('s_mov_b64 exec, -1')
    for s_ in range(2):
        a(f'v_mfma_f32_16x16x32_bf16 v[{DW+8}:{DW+11}], v[{AH+4*s_}:{AH+4*s_+3}], v[{AH+4*s_}:{AH+4*s_+3}], {"0" if s_ == 0 else f"v[{DW+8}:{DW+11}]"}')
        if nx: a(f's_waitcnt lgkmcnt({4 - 4*s_})')
        for sb in range(2):
            a(f'v_mfma_f32_16x16x32_bf16 v[{DW+4*sb}:{DW+4*sb+3}], v[{AH+4*s_}:{AH+4*s_+3}], v[{GUB+8*sb+4*s_}:{GUB+8*sb+4*s_+3}], {"0" if s_ == 0 else f"v[{DW+4*sb}:{DW+4*sb+3}]"}')
    a('s_mov_b32 exec_hi, 0')
    a(f'v_mov_b32_dpp v10, v{DW+8} quad_perm:[0,0,2,3] {FULL}\nv_mov_b32_dpp v11, v{DW+9} quad_perm:[0,0,2,3] {FULL}')
    a('v_min_u32 v10, -2, v10\nv_min_u32 v11, -2, v11' if mfs else f'v_bfi_b32 v10, v{VM}, s36, v10\nv_bfi_b32 v11, v{VM}, s37, v11')
    a(f'v_mov_b32_dpp v{DW}, v{DW+4} quad_perm:[0,1,2,3] row_mask:2 bank_mask:0xf\nv_mov_b32_dpp v{DW+1}, v{DW+5} quad_perm:[0,1,2,3] row_mask:2 bank_mask:0xf')
    a(f'v_min_u32 v8, -2, v{DW}\nv_min_u32 v9, -2, v{DW+1}' if mfs else f'v_bfi_b32 v8, v{VM}, s34, v{DW}\nv_bfi_b32 v9, v{VM}, s35, v{DW+1}')
    if pretouch or wd == 'p2': a('s_waitcnt vmcnt(0)')
    dual_store(f'buffer_store_dwordx4 v[8:11], v27, {srd(SWS)}, s23 offen', 'mf')
    a('s_mov_b64 exec, -1')
    stamp('H', 'f1pub', HST)
    a.cand()
    a('s_mov_b32 s13, 0x3b000000\ns_mov_b32 s16, 0xc0135761\ns_mov_b32 s26, 0xbdd2d3e8')
    if not p25first: dn_read()
    poll('p25', mf_loads, A1, tmp=12, tagged=not mfs, after_first=dn_read if p25first else None)
    a('s_waitcnt vmcnt(0)')
    stamp('H', 'hop25', HST)
    Z = A1
    for e in range(4): a(f'v_add_f32 v{Z+e}, v{Z+e}, v{Z+4+e}\nv_add_f32 v{Z+8+e}, v{Z+8+e}, v{Z+12+e}')
    for e in range(4): a(f'v_permlane32_swap_b32 v{Z+e}, v{Z+8+e}')
    for e in range(4): a(f'v_add_f32 v{Z+e}, v{Z+e}, v{Z+8+e}')
    for e in range(4): a(f'v_mov_b32 v{Z+4+e}, v{Z+e}')
    for e in (3, 2, 0, 1): a(f'v_permlane16_swap_b32 v{Z+e}, v{Z+4+e}')
    for e in (3, 2, 0, 1): a(f'v_add_f32 v{Z+e}, v{Z+e}, v{Z+4+e}')
    a(f'v_mul_f32 v13, s13, v{Z+3}\nv_mul_f32 v14, v13, v13\nv_fma_f32 v12, v{Z+2}, s13, -v14\nv_max_f32 v12, 0, v12\nv_add_f32 v12, 0x3727c5ac, v12\nv_rsq_f32 v12, v12')
    a(f'v_fma_f32 v14, -v13, v{Z+1}, v{Z}\nv_mul_f32 v14, v14, v12')
    a('v_mul_f32 v15, v14, v14\nv_mov_b32 v12, s16\nv_fmac_f32 v12, s26, v15\nv_mul_f32 v12, v12, v14\nv_exp_f32 v12, v12')
    a(f'v_mov_b32_dpp v15, v14 row_ror:8 {FULL}')
    a('v_add_f32 v12, 1.0, v12\nv_rcp_f32 v12, v12\nv_mul_f32 v14, v14, v15\ns_mov_b32 exec_lo, 0xff\ns_mov_b32 exec_hi, 0xff\nv_mul_f32 v14, v14, v12')
    a(f'v_cvt_pk_bf16_f32 v14, v14, v14\nds_write_b16 v1, v14 offset:{L_ACT}\ns_mov_b64 exec, -1\ns_waitcnt lgkmcnt(0)')
    a('s_barrier      ; BA')
    a('s_cmp_gt_u32 s3, 1\ns_cbranch_scc1 L_R')
    a(f'ds_read_b128 v[{Z}:{Z+3}], v5 offset:{L_ACT}\nds_read_b128 v[{Z+4}:{Z+7}], v5 offset:{L_ACT + 64}')
    for s_ in range(2):
        a(f's_waitcnt lgkmcnt({1 - s_})')
        for cgl in range(2):
            a(f'v_mfma_f32_16x16x32_bf16 v[{DW+4*cgl}:{DW+4*cgl+3}], v[{Z+4*s_}:{Z+4*s_+3}], v[{WDB+8*cgl+4*s_}:{WDB+8*cgl+4*s_+3}], {"0" if s_ == 0 else f"v[{DW+4*cgl}:{DW+4*cgl+3}]"}')
    a('s_mov_b32 exec_hi, 0')
    a(f'v_mov_b32_dpp v{DW}, v{DW+4} quad_perm:[0,1,2,3] row_mask:2 bank_mask:0xf\nv_bfi_b32 v8, v{VM}, v16, v{DW}')
    a(f'buffer_store_dword v8, v25, {srd(SWS)}, s25 offen sc1')
    stamp('H', 'fpub', HST)
    a('s_branch L_Hend')
    a('L_R:')
    a('s_cmp_eq_u32 s3, 2\ns_cbranch_scc1 L_R2')
    a(f's_cmp_lg_u32 s2, 0\ns_cbranch_scc1 L_Hend\ns_mov_b64 exec, 1\nv_mov_b32 v9, s96\nv_mov_b32 v10, {EPOCH}\nbuffer_store_dword v9, v10, {srd(SWS)}, 0 offen sc1\ns_branch L_Hend')
    a('L_R2:')
    a('s_cmp_gt_u32 s28, 7\ns_cbranch_scc1 L_Hend')
    a.cand()
    a(f'ds_bpermute_b32 v21, v38, v21')
    for e in range(4): a(f'v_mov_b32 v{R+e}, 0')
    a('s_waitcnt lgkmcnt(0)'); rbf(21)
    a('s_mov_b32 exec_hi, 0x00ffffff')
    poll('p3', m3_loads, R)
    stamp('H', 'hop3', HST)
    a(f'v_permlane32_swap_b32 v{R}, v{R+2}\nv_permlane32_swap_b32 v{R+1}, v{R+3}\nv_add_f32 v{R}, v{R}, v{R+2}\nv_add_f32 v{R+1}, v{R+1}, v{R+3}')
    a(f'v_permlane16_swap_b32 v{R}, v{R+1}\nv_add_f32 v8, v{R}, v{R+1}')
    a(f'v_add_f32_dpp v8, v8, v8 row_ror:8 {FULL}\nv_add_f32_dpp v8, v8, v8 row_ror:4 {FULL}\nv_add_f32_dpp v8, v8, v8 quad_perm:[2,3,0,1] {FULL}')
    for k in range(dbg_sleep): a('s_sleep 125')
    for k in range(abs(dbg_tlb)):
        a(f's_add_u32 s9, s4, {1 + (k % 7 if dbg_tlb > 0 else 0)}\ns_and_b32 s9, s9, 7\ns_lshl_b32 s9, s9, 23\ns_lshl_b32 s10, s2, 10\ns_add_u32 s9, s9, s10\ns_add_u32 s9, s9, {((k // 7 * 2 + (k & 1)) << 21 if dbg_tlb > 0 else 0) + k * 0x40000 % 0x200000 * (dbg_tlb < 0)}\nbuffer_load_dword v9, v37, {srd(SK)}, s9 offen nt\ns_waitcnt vmcnt(0)')
    rbf(8)
    a('v_add_f32 v8, v8, v21\ns_mov_b32 exec_lo, 0x00030003\ns_mov_b32 exec_hi, 0x00030003\nv_cvt_pk_bf16_f32 v8, v8, v8')
    a(f'buffer_store_short v8, v37, {srd(SO)}, s15 offen {outsc}')
    stamp('H', 'out', HST)
    a('L_Hend:')
    stamp_store(HST)
    a('L_end:')
    a('s_endpgm')
    for t in stubs: a(t)

    head = HEADER + DOC + f'; @launch grid=(256,1,1) block=(512,1,1) lds={L_SP + 4096 * spill if spill else LDS_BYTES}\n'
    al = '' if align is None else f'.p2align 12\n.fill {align // 4}, 4, 0xbf800000\n'
    pre = f'.amdgcn_target "amdgcn-amd-amdhsa--gfx950"\n.text\n.globl {KN}\n{al}.p2align 8\n.type {KN},@function\n'
    post = f'''.section .rodata,"a"
.p2align 6
.amdhsa_kernel {KN}
  .amdhsa_next_free_vgpr 256
  .amdhsa_next_free_sgpr 98
  .amdhsa_accum_offset 256
  .amdhsa_group_segment_fixed_size 0
  .amdhsa_kernarg_size 96
  .amdhsa_user_sgpr_count 2
  .amdhsa_user_sgpr_kernarg_segment_ptr 1
  .amdhsa_system_sgpr_workgroup_id_x 1
  .amdhsa_float_denorm_mode_32 3
.end_amdhsa_kernel
'''
    if not warm:
        return head + pre + '\n'.join(a.render(chosen=[])) + '\n' + post, nst
    saveL = list(a.L)
    a.L = [l.replace('@W0', 'L_warm_end').replace('@W1', 'L_warm_end').replace('@W2', 'L_warm_end') for l in saveL]
    syms = assemble_syms(pre + '\n'.join(a.render(None)) + '\n')
    pos = [syms[f'L_cand{n}'] for n in range(a.ncand)]
    end = syms['L_end']
    chosen = []; last = None
    for n in range(a.ncand):
        nxt = pos[n+1] if n + 1 < a.ncand else end
        if last is None or nxt - last > padgap:
            chosen.append(n); last = pos[n]
    k = len(chosen)
    ent = [0, (k + 2) // 3, (2 * k + 2) // 3]
    a.L = [l.replace('@W0', f'L_pad{ent[0]}').replace('@W1', f'L_pad{ent[1]}').replace('@W2', f'L_pad{ent[2]}') for l in saveL]
    body = a.render(chosen)
    gaps = [pos[chosen[i+1]] - pos[chosen[i]] for i in range(k-1)] + [end - pos[chosen[-1]]]
    print('pads', k, 'first', pos[chosen[0]], 'gaps', gaps, 'code bytes', end, file=sys.stderr)
    return head + pre + '\n'.join(body) + '\n' + post, nst

if __name__ == '__main__':
    kw = eval('dict(' + (sys.argv[2] if len(sys.argv) > 2 else '') + ')')
    s, nst = gen(**kw)
    open(sys.argv[1], 'w').write(s)
    if nst: print(nst)
```
